```python
import torch

def _softmax(x, axis=-1):
    return torch.softmax(x, dim=axis)
def _gelu(x):
    return torch.nn.functional.gelu(x, approximate="tanh")
def _silu(x):
    return torch.nn.functional.silu(x)
def _sigmoid(x):
    return torch.sigmoid(x)
def _layernorm(x, axis=-1, eps=1e-5):
    m = x.mean(dim=axis, keepdim=True)
    v = x.var(dim=axis, keepdim=True, unbiased=False)
    return (x - m) / torch.sqrt(v + eps)
def _scatter_add(tgt, idx, src, axis=0):
    return tgt.clone().index_add_(axis, idx, src)
def _segment_sum(src, seg, n):
    out = torch.zeros((n,) + src.shape[1:], dtype=src.dtype)
    return out.index_add_(0, seg, src)
def _pad(x, pw):
    flat = tuple(v for pair in reversed(pw) for v in pair)
    return torch.nn.functional.pad(x, flat)

kernel_name = 'parallel_sum__ssm_conv_h3__glu_gated_swiglu__prompt'

def setup_inputs():

    _w = (lambda a: (lambda t: t.to(torch.bfloat16) if t.is_floating_point() else t)(torch.as_tensor(a)))
    def _A_setup():
        B, S, D = 1, 2048, 448
        ks = 4
        return {
            "q": _w((lambda *s: torch.randn(*s, dtype=torch.bfloat16) * 0.05)(B, S, D)),
            "k": _w((lambda *s: torch.randn(*s, dtype=torch.bfloat16) * 0.2)(B, S, D)),
            "v": _w((lambda *s: torch.randn(*s, dtype=torch.bfloat16) * 0.2)(B, S, D)),
            "shift_k": _w((lambda *s: torch.randn(*s, dtype=torch.bfloat16) * 0.2)(D, ks) * 0.5),
            "ssm_k": _w((lambda *s: torch.randn(*s, dtype=torch.bfloat16) * 0.4)(D, S) * (1.0 / S ** 0.5)),
            "ssm_D": _w((lambda *s: torch.randn(*s, dtype=torch.bfloat16) * 0.2)(D)),
        }
    _A_in = _A_setup()

    def _B_setup():
        B, S, D, F = 1, 2048, 448, 1792
        return {
            "x": _w((lambda *s: torch.randn(*s, dtype=torch.bfloat16) * 0.05)(B, S, D)),
            "w1": _w((lambda *s: torch.randn(*s, dtype=torch.bfloat16) * 0.2)(D, F) * (2.0 / D) ** 0.5),
            "w3": _w((lambda *s: torch.randn(*s, dtype=torch.bfloat16) * 0.2)(D, F) * (2.0 / D) ** 0.5),
            "w2": _w((lambda *s: torch.randn(*s, dtype=torch.bfloat16) * 0.2)(F, D) * (2.0 / F) ** 0.5),
        }
    _B_in = _B_setup()

    return {
        "A_q": _A_in["q"],
        "A_k": _A_in["k"],
        "A_v": _A_in["v"],
        "A_shift_k": _A_in["shift_k"],
        "A_ssm_k": _A_in["ssm_k"],
        "A_ssm_D": _A_in["ssm_D"],
        "B_x": _B_in["x"],
        "B_w1": _B_in["w1"],
        "B_w3": _B_in["w3"],
        "B_w2": _B_in["w2"],
    }

def reference(A_q, A_k, A_v, A_shift_k, A_ssm_k, A_ssm_D, B_x, B_w1, B_w3, B_w2):
    def _A_ref(q, k, v, shift_k, ssm_k, ssm_D):
        B, S, D = q.shape
        ks = shift_k.shape[-1]
        k_pad = _pad(k, ((0, 0), (ks - 1, 0), (0, 0)))
        k_shift = torch.zeros_like(k)
        for t in range(ks):
            k_shift = k_shift + k_pad[:, t:t + S, :] * shift_k[:, ks - 1 - t][None, None, :]
        kv = k_shift * v
        L = 2 * S
        kv_pad = _pad(kv, ((0, 0), (0, S), (0, 0)))
        kf_pad = _pad(ssm_k, ((0, 0), (0, S)))
        kv_f = (lambda x, axes=(-2,-1): torch.fft.rfft2(x.float(), dim=axes))(kv_pad[:, None, :, :], axes=(1, 2))
        kf_f = (lambda x, axes=(-2,-1): torch.fft.rfft2(x.float(), dim=axes))(kf_pad[:, None, :], axes=(1, 2))
        kf_f = (lambda x, *d: x.permute(*d))(kf_f, 1, 2, 0)
        y_f = kv_f * kf_f[None, :, :, :]
        y = (lambda x, s, axes=(-2,-1): torch.fft.irfft2(x, s=s, dim=axes).to(torch.bfloat16))(y_f, (1, L), axes=(1, 2))[:, 0, :S, :]
        y = y + kv * ssm_D[None, None, :]
        return q * y

    def _B_ref(x, w1, w3, w2):
        gate = torch.einsum("bsd,df->bsf", x, w1)
        up = torch.einsum("bsd,df->bsf", x, w3)
        h = _silu(gate) * up
        out = torch.einsum("bsf,fd->bsd", h, w2)
        return out

    x = A_q
    xn = _layernorm(x, axis=-1)
    return x + _A_ref(xn, A_k, A_v, A_shift_k, A_ssm_k, A_ssm_D) + _B_ref(xn, B_w1, B_w3, B_w2)
```

```python
import re

REG_RE = re.compile(r'^(-?)(?:abs\()?\|?([vsa])(\d+|\[(\d+):(\d+)\])\|?\)?$')
TRANS = ('v_exp_f32','v_log_f32','v_rcp_f32','v_rsq_f32','v_sqrt_f32','v_sin_f32','v_cos_f32','v_rcp_iflag_f32')

def regs_of(op):
    op = op.strip()
    if op in ('vcc',): return {('s',106),('s',107)}
    if op == 'vcc_lo': return {('s',106)}
    if op == 'vcc_hi': return {('s',107)}
    if op == 'exec': return {('s',126),('s',127)}
    if op == 'm0': return {('s',124)}
    m = REG_RE.match(op)
    if not m: return set()
    k = m.group(2)
    if m.group(4) is not None:
        return {(k,i) for i in range(int(m.group(4)), int(m.group(5))+1)}
    return {(k,int(m.group(3)))}

class Ins:
    __slots__ = ('text','mn','ops','mods','rd','wr','cls','passes','srcc','dpp','states','label','branch','ab','data')
    def __init__(self, text):
        self.text = text
        t = text.split(';')[0].strip()
        self.label = None; self.branch = None
        parts = t.split(None, 1)
        mn = parts[0]; rest = parts[1] if len(parts) > 1 else ''
        self.dpp = ('_dpp' in mn) or ('quad_perm' in rest) or ('row_' in rest)
        for suf in ('_e32','_e64','_dpp','_sdwa'):
            if mn.endswith(suf): mn = mn[:-len(suf)]
        self.mn = mn
        rest2 = re.sub(r'\b\w+:\[[^\]]*\]', '', rest)
        ops = [o.strip() for o in rest2.split(',')] if rest2.strip() else []
        mods = []
        if ops:
            last = ops[-1].split()
            ops[-1] = last[0] if last else ''
            mods = last[1:]
        self.ops = ops; self.mods = mods
        self.rd = set(); self.wr = set(); self.passes = 0; self.srcc = set(); self.ab = set(); self.data = set()
        self.states = 1
        R = [regs_of(o) for o in ops]
        if mn == 's_nop':
            self.cls = 'nop'; self.states = int(ops[0], 0) + 1
        elif mn.startswith('v_mfma'):
            self.cls = 'mfma'
            self.wr = R[0]; self.ab = R[1] | R[2]; self.srcc = R[3]; self.rd = self.ab | self.srcc
            self.passes = 8 if '32x32x16' in mn else 4 if '16x16x32' in mn else None
            assert self.passes, mn
        elif mn.startswith('v_'):
            self.cls = 'valu'
            if mn.startswith('v_cmp'):
                self.wr = R[0]; self.rd = set().union(*R[1:])
                assert not mn.startswith('v_cmpx')
            elif mn in ('v_add_co_u32','v_sub_co_u32','v_subrev_co_u32'):
                self.wr = R[0] | R[1]; self.rd = set().union(*R[2:])
            elif mn in ('v_addc_co_u32','v_subb_co_u32'):
                self.wr = R[0] | R[1]; self.rd = set().union(*R[2:])
            elif mn.startswith('v_permlane') and 'swap' in mn:
                self.wr = R[0] | R[1]; self.rd = R[0] | R[1]
            elif mn == 'v_nop':
                pass
            else:
                self.wr = R[0]; self.rd = set().union(*R[1:]) if len(R) > 1 else set()
                if mn in ('v_fmac_f32','v_dot2c_f32_bf16','v_writelane_b32') or self.dpp: self.rd |= R[0]
        elif mn.startswith('ds_'):
            self.cls = 'ds'
            if mn.startswith('ds_read') or mn.startswith('ds_bpermute') or mn.startswith('ds_swizzle') or mn.startswith('ds_permute'):
                self.wr = R[0]; self.rd = set().union(*R[1:])
            else:
                self.rd = set().union(*R)
        elif mn.startswith('buffer_') or mn.startswith('global_'):
            self.cls = 'vmem'
            if mn in ('buffer_inv','buffer_wbl2'):
                pass
            elif 'lds' in mods or '_lds_' in mn:
                self.rd = set().union(*R) | {('s',124)}; self.cls = 'dma'
            elif '_load' in mn:
                self.wr = R[0]; self.rd = set().union(*R[1:])
            elif '_store' in mn:
                self.rd = set().union(*R)
                if mn.endswith('x4') or mn.endswith('x3'):
                    self.data = R[0] if mn.startswith('buffer') else R[1]
            elif '_atomic' in mn:
                self.rd = set().union(*R)
                if 'sc0' in mods: self.wr = R[0]
            else:
                raise ValueError(text)
        elif mn.startswith('s_'):
            self.cls = 'salu'
            if mn.startswith('s_cbranch') or mn == 's_branch':
                self.branch = ops[0]
            elif mn.startswith('s_cmp') or mn in ('s_waitcnt','s_barrier','s_endpgm','s_sleep','s_setprio','s_bitcmp1_b32','s_bitcmp0_b32'):
                self.rd = set().union(*R) if R else set()
            elif mn.startswith('s_load') or mn.startswith('s_memtime') or mn.startswith('s_memrealtime') or mn.startswith('s_buffer_load'):
                self.wr = R[0]; self.rd = set().union(*R[1:]) if len(R) > 1 else set()
            else:
                self.wr = R[0]; self.rd = set().union(*R[1:]) if len(R) > 1 else set()
                if 'saveexec' in mn: self.wr = self.wr | {('s',126),('s',127)}
        else:
            raise ValueError("unknown instr: " + text)

def vg(s): return {r for r in s if r[0] in 'va'}
def sg(s): return {r for r in s if r[0] == 's'}

def need(p, c):
    n = 0
    if p.cls == 'valu':
        pv = vg(p.wr); ps = sg(p.wr)
        if pv:
            if c.cls == 'mfma' and pv & c.rd: n = max(n, 2)
            if c.cls == 'valu':
                if c.dpp and pv & c.rd: n = max(n, 2)
                if c.mn.startswith('v_permlane') and pv & c.rd: n = max(n, 2)
                if c.mn in ('v_readlane_b32','v_readfirstlane_b32') and pv & c.rd: n = max(n, 1)
                if p.mn in TRANS and c.mn not in TRANS and pv & c.rd: n = max(n, 1)
            if p.mn in TRANS and c.cls in ('vmem','ds','dma') and pv & c.rd: n = max(n, 1)
            if p.mn.startswith('v_dot'):
                if c.cls in ('valu','mfma','vmem','ds','dma') and pv & (c.rd | c.wr):
                    if c.mn == p.mn:
                        ab = set()
                        for o in c.ops[1:3]: ab |= regs_of(o)
                        if pv & ab: n = max(n, 3)
                    else:
                        n = max(n, 3)
        if ps:
            if c.cls == 'valu' and ps & c.rd:
                n = max(n, 4 if c.mn in ('v_readlane_b32','v_writelane_b32') else 2)
            if c.cls in ('vmem','dma') and ps & c.rd: n = max(n, 5)
            if c.cls == 'mfma' and ps & c.rd: n = max(n, 2)
    if p.cls == 'mfma':
        big = {4: 8, 8: 12}[p.passes]; mid = {4: 6, 8: 10}[p.passes]; war = {4: 3, 8: 7}[p.passes]
        if c.cls == 'mfma':
            if p.wr & c.ab: n = max(n, big)
            if p.wr & c.srcc and not (p.wr == c.srcc and p.passes == c.passes): n = max(n, mid)
            if p.wr & c.wr and not (p.wr == c.srcc): n = max(n, big)
        elif c.cls in ('valu','vmem','ds','dma'):
            if p.wr & (c.rd | c.wr): n = max(n, big)
            if c.cls == 'valu' and p.srcc & c.wr: n = max(n, war)
            if c.cls in ('vmem','ds') and p.srcc & c.wr: n = max(n, war)
    if p.cls == 'salu' and ('s',124) in p.wr and c.cls == 'dma': n = max(n, 1)
    if p.cls == 'vmem' and p.data:
        if c.cls in ('valu','mfma') and p.data & c.wr: n = max(n, 2)
        elif p.data & c.wr: n = max(n, 1)
    return n

class Asm:
    def __init__(self):
        self.items = []
    def __call__(self, text):
        for line in text.strip('\n').split('\n'):
            s = line.strip()
            if not s: continue
            if s.startswith(';') or s.startswith('.'):
                self.items.append(s)
            elif re.match(r'^[\w.$]+:$', s):
                self.items.append(s)
            else:
                self.items.append(Ins(s))
    def label(self, name): self.items.append(name + ':')
    def finalize(self):
        out = []
        win = []
        WINDOW = 16
        for it in self.items:
            if isinstance(it, str):
                out.append(it); continue
            pad = 0; dist = 0
            for p in reversed(win):
                nd = need(p, it)
                if nd > dist: pad = max(pad, nd - dist)
                dist += p.states
                if dist >= WINDOW: break
            while pad > 0:
                k = min(pad, 16)
                nop = Ins(f's_nop {k-1}')
                out.append(nop); win.append(nop); pad -= k
            out.append(it); win.append(it)
            if it.mn in ('s_branch','s_endpgm'): win = []
            win = win[-WINDOW-2:]
        labels = {}
        for idx, it in enumerate(out):
            if isinstance(it, str) and it.endswith(':'): labels[it[:-1]] = idx
        for idx, it in enumerate(out):
            if isinstance(it, Ins) and it.branch:
                tgt = labels[it.branch]
                before = [x for x in out[max(0, idx-WINDOW-2):idx+1] if isinstance(x, Ins)]
                after = [x for x in out[tgt:tgt+2*WINDOW] if isinstance(x, Ins)]
                d_after = 0
                for c in after:
                    dist = d_after
                    for p in reversed(before):
                        nd = need(p, c)
                        if nd > dist:
                            raise RuntimeError(f"hazard across branch {it.text}: {p.text} -> {c.text} need {nd} have {dist}")
                        dist += p.states
                    d_after += c.states
                    if d_after >= WINDOW or c.mn in ('s_branch','s_endpgm'): break
        lines = []
        for it in out:
            if isinstance(it, str):
                lines.append(it if (it.endswith(':') or it.startswith('.')) else '    ' + it)
            else:
                lines.append('    ' + it.text)
        return '\n'.join(lines) + '\n'
```

```python
import sys
from asmdsl import Asm

NAME = "parallel_sum__ssm_conv_h3__glu_gated_swiglu__prompt"
S, D, F = 2048, 448, 1792
WS_STATS = 0x10000
WS_CS    = 0x14000
WS_R     = 0x20000
RP       = 4224
WS_Y     = 0x200000
WS_H     = 0x400000
WS_BYTES = 0x1000000

sQ, sK, sV, sSH, sSK, sD, sW1, sW3, sW2, sO, sWS = 4, 8, 12, 16, 20, 24, 28, 32, 36, 40, 44
def srd(b): return f"s[{b}:{b+3}]"
SRD_INFO = {
    'q': (sQ, 0, S*D*2), 'k': (sK, 8, S*D*2), 'v': (sV, 16, S*D*2), 'sh': (sSH, 24, D*8),
    'sk': (sSK, 32, D*S*2), 'd': (sD, 40, D*2), 'w1': (sW1, 56, D*F*2), 'w3': (sW3, 64, D*F*2),
    'w2': (sW2, 72, D*F*2), 'o': (sO, 80, S*D*2), 'ws': (sWS, 96, WS_BYTES),
}
sX, sLQ, sLR, sWV, sSLOT = 52, 53, 54, 55, 56

def prologue(a, names, tag, spare_exit=True):
    a(f"s_cmp_ge_u32 s2, 256")
    a(f"s_cbranch_scc1 L_end_{tag}")
    for n in names:
        r, off, sz = SRD_INFO[n]
        a(f"s_load_dwordx2 s[{r}:{r+1}], s[0:1], {off}")
    for n in names:
        r, off, sz = SRD_INFO[n]
        a(f"s_mov_b32 s{r+2}, {sz}")
        a(f"s_mov_b32 s{r+3}, 0x20000")
    a(f"s_and_b32 s{sX}, s2, 7")
    a(f"s_lshr_b32 s{sSLOT}, s2, 3")
    a(f"v_lshrrev_b32 v1, 6, v0")
    a(f"v_readfirstlane_b32 s{sWV}, v1")
    a(f"s_sub_u32 s{sLR}, s{sSLOT}, 4")
    a(f"s_mul_i32 s{sLQ}, s{sLR}, 37")
    a(f"s_lshr_b32 s{sLQ}, s{sLQ}, 8")
    a(f"s_mul_i32 s57, s{sLQ}, 7")
    a(f"s_sub_u32 s{sLR}, s{sLR}, s57")
    a(f"s_waitcnt lgkmcnt(0)")
    if spare_exit:
        a(f"s_cmp_lt_u32 s{sSLOT}, 4")
        a(f"s_cbranch_scc1 L_end_{tag}")

def kd(name, vgpr=256, sgpr=96):
    return f""".amdhsa_kernel {name}
  .amdhsa_next_free_vgpr {vgpr}
  .amdhsa_next_free_sgpr {sgpr}
  .amdhsa_accum_offset {(vgpr+3)//4*4}
  .amdhsa_group_segment_fixed_size 0
  .amdhsa_kernarg_size 104
  .amdhsa_user_sgpr_count 2
  .amdhsa_user_sgpr_kernarg_segment_ptr 1
  .amdhsa_system_sgpr_workgroup_id_x 1
  .amdhsa_float_denorm_mode_32 3
.end_amdhsa_kernel
"""

def lo(a, d, s): a(f"v_lshlrev_b32 v{d}, 16, v{s}")
def hi(a, d, s): a(f"v_and_b32 v{d}, 0xffff0000, v{s}")

def prep(a):
    a(f"s_lshl_b32 s60, s{sX}, 2")
    a(f"s_add_u32 s60, s60, s{sLQ}")
    a(f"s_mul_i32 s61, s60, {64*896}")
    a(f"s_lshl_b32 s62, s{sLR}, 7")
    a(f"s_add_u32 s61, s61, s62")
    a("v_and_b32 v2, 31, v0")
    a("v_lshrrev_b32 v3, 5, v0")
    a(f"v_mul_u32_u24 v4, {4*896}, v3")
    a("v_lshl_add_u32 v4, v2, 2, v4")
    a("v_add_u32 v4, s61, v4")
    a("v_subrev_u32 v5, 2688, v4")
    a("v_mov_b32 v6, 0x40000000")
    a("v_cmp_gt_u32 vcc, 2688, v4")
    a("v_cndmask_b32 v5, v5, v6, vcc")
    for j in range(3): a(f"buffer_load_dword v{10+j}, v5, {srd(sK)}, 0 offen offset:{896*j}")
    for j in range(4): a(f"buffer_load_dword v{13+j}, v4, {srd(sK)}, 0 offen offset:{896*j}")
    for j in range(4): a(f"buffer_load_dword v{17+j}, v4, {srd(sV)}, 0 offen offset:{896*j}")
    a(f"s_lshl_b32 s62, s{sLR}, 9")
    a("v_lshlrev_b32 v7, 4, v2")
    a(f"buffer_load_dwordx4 v[24:27], v7, {srd(sSH)}, s62 offen")
    a("v_mul_u32_u24 v8, 288, v2")
    a("v_lshlrev_b32 v9, 3, v3")
    a("v_sub_u32 v8, v8, v9")
    a("v_add_u32 v8, 120, v8")
    a("s_waitcnt vmcnt(0)")
    for h in range(2):
        un = lo if h == 0 else hi
        for j in range(7): un(a, 30+j, 10+j)
        for j in range(4): un(a, 37+j, 17+j)
        lo(a, 41, 24+2*h); hi(a, 42, 24+2*h); lo(a, 43, 25+2*h); hi(a, 44, 25+2*h)
        for t in range(4):
            a(f"v_mul_f32 v{45+t}, v44, v{30+t}")
            a(f"v_fmac_f32 v{45+t}, v43, v{31+t}")
            a(f"v_fmac_f32 v{45+t}, v42, v{32+t}")
            a(f"v_fmac_f32 v{45+t}, v41, v{33+t}")
            a(f"v_mul_f32 v{45+t}, v{45+t}, v{37+t}")
        a(f"v_cvt_pk_bf16_f32 v{50+2*h}, v48, v47")
        a(f"v_cvt_pk_bf16_f32 v{51+2*h}, v46, v45")
        a(f"ds_write_b64 v8, v[{50+2*h}:{51+2*h}] offset:{144*h}")
    a("v_lshrrev_b32 v2, 3, v0")
    a("v_and_b32 v3, 7, v0")
    a("v_mul_u32_u24 v4, 144, v2")
    a("v_lshl_add_u32 v4, v3, 4, v4")
    a(f"v_mul_u32_u24 v5, {RP}, v2")
    a("v_lshl_add_u32 v5, v3, 4, v5")
    a(f"s_mul_i32 s61, s{sLR}, {64*RP}")
    a(f"s_lshl_b32 s62, s60, 7")
    a(f"s_sub_u32 s61, s61, s62")
    a(f"s_add_u32 s61, s61, {WS_R + 1984*2}")
    a("s_waitcnt lgkmcnt(0)")
    a("s_barrier")
    a("ds_read_b128 v[12:15], v4")
    a("v_mov_b32 v16, 0\nv_mov_b32 v17, 0\nv_mov_b32 v18, 0\nv_mov_b32 v19, 0")
    a("s_waitcnt lgkmcnt(0)")
    a(f"buffer_store_dwordx4 v[12:15], v5, {srd(sWS)}, s61 offen")
    a("s_cmp_lg_u32 s60, 0")
    a("s_cbranch_scc1 L_prep_done")
    a("v_cmp_eq_u32 vcc, 7, v3")
    a("s_and_saveexec_b64 s[62:63], vcc")
    a(f"buffer_store_dwordx4 v[16:19], v5, {srd(sWS)}, s61 offen offset:16")
    a("s_mov_b64 exec, s[62:63]")
    a.label("L_prep_done")

def round_bf16(a, v):
    a(f"v_cvt_pk_bf16_f32 v{v}, v{v}, v{v}")
    a(f"v_lshlrev_b32 v{v}, 16, v{v}")

def spare(a):
    a(f"s_lshl_b32 s60, s{sX}, 2")
    a(f"s_add_u32 s60, s60, s{sSLOT}")
    a("v_lshrrev_b32 v2, 3, v0")
    a("v_and_b32 v3, 7, v0")
    a("v_mul_u32_u24 v4, 896, v2")
    a("v_lshl_add_u32 v4, v3, 4, v4")
    a(f"s_mul_i32 s61, s60, {64*896}")
    for n in range(7): a(f"buffer_load_dwordx4 v[{8+4*n}:{11+4*n}], v4, {srd(sQ)}, s61 offen offset:{128*n}")
    a(f"s_lshr_b32 s62, s{sX}, 1")
    a(f"s_lshl_b32 s62, s62, 2")
    a(f"s_add_u32 s62, s62, s{sSLOT}")
    a(f"s_cmp_ge_u32 s62, 7")
    a(f"s_cselect_b32 s64, s{sW3}, s{sW1}")
    a(f"s_cselect_b32 s65, s{sW3+1}, s{sW1+1}")
    a(f"s_cselect_b32 s63, 7, 0")
    a(f"s_cselect_b32 s68, {F*4}, 0")
    a(f"s_mov_b32 s66, {D*F*2}")
    a(f"s_mov_b32 s67, 0x20000")
    a(f"s_sub_u32 s63, s62, s63")
    a(f"s_and_b32 s69, s{sX}, 1")
    a(f"s_mul_i32 s69, s69, 7")
    a(f"s_add_u32 s63, s63, s69")
    a("v_and_b32 v5, 63, v0")
    a("v_lshrrev_b32 v6, 4, v5")
    a("v_and_b32 v5, 15, v5")
    a(f"v_mul_u32_u24 v7, 3584, v6")
    a("v_lshl_add_u32 v7, v5, 4, v7")
    a(f"s_mul_i32 s69, s{sWV}, {56*3584}")
    a(f"s_lshl_b32 s70, s63, 8")
    a(f"s_add_u32 s69, s69, s70")
    a("s_cmp_ge_u32 s62, 14")
    a("s_cbranch_scc1 L_sp_nocs1")
    for n in range(14):
        a(f"buffer_load_dwordx4 v[{64+4*n}:{67+4*n}], v7, s[64:67], s69 offen")
        a(f"s_add_u32 s69, s69, {4*3584}")
    a.label("L_sp_nocs1")
    a("v_mov_b32 v40, 0\nv_mov_b32 v41, 0")
    a("s_mov_b32 s70, 0x3f803f80")
    a("s_waitcnt vmcnt(0)")
    for n in range(28):
        a(f"v_dot2_f32_bf16 v40, v{8+n}, s70, v40")
        a(f"v_dot2_f32_bf16 v41, v{8+n}, v{8+n}, v41")
    for m in ("quad_perm:[1,0,3,2]", "quad_perm:[2,3,0,1]", "row_half_mirror"):
        a(f"v_add_f32_dpp v40, v40, v40 {m} row_mask:0xf bank_mask:0xf")
        a(f"v_add_f32_dpp v41, v41, v41 {m} row_mask:0xf bank_mask:0xf")
    a(f"v_mul_f32 v40, {float_hex(1.0/448)}, v40")
    a(f"v_mul_f32 v41, {float_hex(1.0/448)}, v41")
    a("v_fma_f32 v41, -v40, v40, v41")
    a("v_max_f32 v41, 0, v41")
    round_bf16(a, 40)
    round_bf16(a, 41)
    a(f"v_add_f32 v41, {float_hex(1e-5)}, v41")
    round_bf16(a, 41)
    a("v_sqrt_f32 v41, v41")
    round_bf16(a, 41)
    a("v_rcp_f32 v41, v41")
    a("v_lshlrev_b32 v4, 3, v2")
    a(f"s_lshl_b32 s61, s60, 9")
    a(f"s_add_u32 s61, s61, {WS_STATS}")
    a("v_cmp_eq_u32 vcc, 0, v3")
    a("s_and_saveexec_b64 s[72:73], vcc")
    a(f"buffer_store_dwordx2 v[40:41], v4, {srd(sWS)}, s61 offen")
    a("s_mov_b64 exec, s[72:73]")
    a("s_cmp_ge_u32 s62, 14")
    a("s_cbranch_scc1 L_sp_done")
    a("s_mov_b32 s70, 0x00003f80")
    a("s_mov_b32 s71, 0x3f800000")
    for e in range(8): a(f"v_mov_b32 v{48+e}, 0")
    for n in range(14):
        for dw in range(4):
            a(f"v_dot2_f32_bf16 v{48+2*dw}, v{64+4*n+dw}, s70, v{48+2*dw}")
            a(f"v_dot2_f32_bf16 v{49+2*dw}, v{64+4*n+dw}, s71, v{49+2*dw}")
    a("v_lshlrev_b32 v4, 5, v0")
    a("ds_write_b128 v4, v[48:51]")
    a("ds_write_b128 v4, v[52:55] offset:16")
    a("s_waitcnt lgkmcnt(0)")
    a("s_barrier")
    a(f"s_cmp_ge_u32 s{sWV}, 2")
    a("s_cbranch_scc1 L_sp_done")
    a("v_lshlrev_b32 v4, 2, v0")
    for p in range(32): a(f"ds_read_b32 v{64+p}, v4 offset:{512*p}")
    a("s_waitcnt lgkmcnt(0)")
    for st in (16, 8, 4, 2, 1):
        for p in range(st): a(f"v_add_f32 v{64+p}, v{64+p}, v{64+p+st}")
    a(f"s_lshl_b32 s61, s63, 9")
    a(f"s_add_u32 s61, s61, s68")
    a(f"s_add_u32 s61, s61, {WS_CS}")
    a(f"buffer_store_dword v64, v4, {srd(sWS)}, s61 offen")
    a.label("L_sp_done")

import struct
def float_hex(f): return "0x%08x" % struct.unpack("<I", struct.pack("<f", f))[0]

XR, W1R, W3R = 0, 49152, 98304
def gemm1(a):
    sI, sJ, sXo, sWo, sM = 60, 61, 62, 63, 64
    a(f"s_lshr_b32 s{sI}, s{sX}, 1")
    a(f"s_lshl_b32 s{sI}, s{sI}, 2")
    a(f"s_add_u32 s{sI}, s{sI}, s{sLQ}")
    a(f"s_and_b32 s{sJ}, s{sX}, 1")
    a(f"s_mul_i32 s{sJ}, s{sJ}, 7")
    a(f"s_add_u32 s{sJ}, s{sJ}, s{sLR}")
    a(f"s_mul_i32 s{sXo}, s{sI}, {128*896}")
    a(f"s_mul_i32 s65, s{sWV}, {16*896}")
    a(f"s_add_u32 s{sXo}, s{sXo}, s65")
    a(f"s_lshl_b32 s{sWo}, s{sJ}, 8")
    a(f"s_mul_i32 s65, s{sWV}, {8*3584}")
    a(f"s_add_u32 s{sWo}, s{sWo}, s65")
    a(f"s_lshl_b32 s{sM}, s{sWV}, 11")
    vL, vX0, vX1, vW0, vW1 = 1, 2, 3, 4, 5
    a(f"v_and_b32 v{vL}, 63, v0")
    a(f"v_lshrrev_b32 v6, 3, v{vL}")
    a(f"v_and_b32 v7, 7, v{vL}")
    a(f"v_lshrrev_b32 v8, 4, v{vL}")
    a(f"v_xor_b32 v9, v7, v8")
    a(f"v_mul_u32_u24 v6, 896, v6")
    a(f"v_lshl_add_u32 v{vX0}, v9, 4, v6")
    a(f"v_xor_b32 v9, 4, v9")
    a(f"v_lshl_add_u32 v{vX1}, v9, 4, v6")
    a(f"v_add_u32 v{vX1}, {8*896-1024}, v{vX1}")
    a(f"v_and_b32 v7, 15, v{vL}")
    a(f"v_lshlrev_b32 v9, 2, v8")
    a(f"v_xor_b32 v9, v7, v9")
    a(f"v_mul_u32_u24 v6, 3584, v8")
    a(f"v_lshl_add_u32 v{vW0}, v9, 4, v6")
    a(f"v_add_u32 v{vW1}, {4*3584-1024}, v{vW0}")
    def dma(slab):
        slot = slab % 3
        a(f"s_add_u32 m0, s{sM}, {XR + slot*16384}")
        a(f"buffer_load_dwordx4 v{vX0}, {srd(sQ)}, s{sXo} offen lds")
        a(f"buffer_load_dwordx4 v{vX1}, {srd(sQ)}, s{sXo} offen offset:1024 lds")
        a(f"s_add_u32 m0, s{sM}, {W1R + slot*16384}")
        a(f"buffer_load_dwordx4 v{vW0}, {srd(sW1)}, s{sWo} offen lds")
        a(f"buffer_load_dwordx4 v{vW1}, {srd(sW1)}, s{sWo} offen offset:1024 lds")
        a(f"s_add_u32 m0, s{sM}, {W3R + slot*16384}")
        a(f"buffer_load_dwordx4 v{vW0}, {srd(sW3)}, s{sWo} offen lds")
        a(f"buffer_load_dwordx4 v{vW1}, {srd(sW3)}, s{sWo} offen offset:1024 lds")
        a(f"s_add_u32 s{sXo}, s{sXo}, 128")
        a(f"s_add_u32 s{sWo}, s{sWo}, {64*3584}")
    dma(0); dma(1); dma(2)
    sTH, sCQ = 66, 67
    a(f"s_and_b32 s{sTH}, s{sWV}, 1")
    a(f"s_lshr_b32 s{sCQ}, s{sWV}, 1")
    vXa = [10, 11, 12, 13]; vWa1, vWa3 = 14, 15
    a(f"v_and_b32 v6, 31, v{vL}")
    a(f"v_lshrrev_b32 v7, 5, v{vL}")
    a(f"v_bfe_u32 v9, v6, 1, 3")
    a(f"v_xor_b32 v9, v9, v7")
    a(f"s_lshl_b32 s65, s{sTH}, 13")
    a(f"v_lshlrev_b32 v6, 7, v6")
    a(f"v_add_u32 v6, s65, v6")
    for ks in range(4):
        a(f"v_xor_b32 v16, {2*ks}, v9")
        a(f"v_lshl_add_u32 v{vXa[ks]}, v16, 4, v6")
    a(f"v_bfe_u32 v6, v{vL}, 2, 2")
    a(f"v_lshl_add_u32 v9, v7, 3, v6")
    a(f"v_lshlrev_b32 v9, 8, v9")
    a(f"v_xor_b32 v6, s{sCQ}, v6")
    a(f"v_lshl_add_u32 v9, v6, 6, v9")
    a(f"v_and_b32 v6, 1, v8")
    a(f"v_lshl_add_u32 v9, v6, 5, v9")
    a(f"v_and_b32 v6, 3, v{vL}")
    a(f"v_lshl_add_u32 v9, v6, 3, v9")
    a(f"v_add_u32 v{vWa1}, {W1R}, v9")
    a(f"v_add_u32 v{vWa3}, {W3R}, v9")
    G = [64, 80]; U = [96, 112]
    FR = [32, 48]
    def reads(kap):
        slab, ks = kap // 4, kap % 4
        slot = slab % 3
        f = FR[kap % 2]
        return [
            f"ds_read_b64_tr_b16 v[{f+8}:{f+9}], v{vWa1} offset:{slot*16384 + ks*4096}",
            f"ds_read_b64_tr_b16 v[{f+10}:{f+11}], v{vWa1} offset:{slot*16384 + ks*4096 + 1024}",
            f"ds_read_b128 v[{f}:{f+3}], v{vXa[ks]} offset:{XR + slot*16384}",
            f"ds_read_b128 v[{f+4}:{f+7}], v{vXa[ks]} offset:{XR + slot*16384 + 4096}",
            f"ds_read_b64_tr_b16 v[{f+12}:{f+13}], v{vWa3} offset:{slot*16384 + ks*4096}",
            f"ds_read_b64_tr_b16 v[{f+14}:{f+15}], v{vWa3} offset:{slot*16384 + ks*4096 + 1024}",
        ]
    def mf(acc, A, B, first):
        c = "0" if first else f"v[{acc}:{acc+15}]"
        return f"v_mfma_f32_32x32x16_bf16 v[{acc}:{acc+15}], v[{A}:{A+3}], v[{B}:{B+3}], {c}"
    a("s_waitcnt vmcnt(12)")
    a("s_barrier")
    for r in reads(0): a(r)
    NEPI = 10
    for kap in range(28):
        slab, ks = kap // 4, kap % 4
        f = FR[kap % 2]
        a("s_waitcnt lgkmcnt(0)")
        if ks == 3 and slab < 6:
            n = {0: 6, 1: 6, 2: 6, 3: 6, 4: 6 + NEPI, 5: NEPI}[slab]
            a(f"s_waitcnt vmcnt({n})")
            a("s_barrier")
        rd = reads(kap+1) if kap < 27 else []
        a(mf(G[0], f+8, f, kap == 0))
        for r in rd[:3]: a(r)
        a(mf(G[1], f+8, f+4, kap == 0))
        for r in rd[3:]: a(r)
        a(mf(U[0], f+12, f, kap == 0))
        a(mf(U[1], f+12, f+4, kap == 0))
        if ks == 3 and slab + 3 <= 6:
            dma(slab + 3)
            if slab == 3:
                a(f"v_and_b32 v6, 31, v{vL}")
                a(f"v_lshlrev_b32 v6, 3, v6")
                a(f"s_lshl_b32 s65, s{sI}, 10")
                a(f"s_lshl_b32 s68, s{sTH}, 9")
                a(f"s_add_u32 s65, s65, s68")
                a(f"s_add_u32 s65, s65, {WS_STATS}")
                a(f"buffer_load_dwordx2 v[16:17], v6, {srd(sWS)}, s65 offen")
                a(f"buffer_load_dwordx2 v[18:19], v6, {srd(sWS)}, s65 offen offset:256")
                a(f"v_lshlrev_b32 v6, 4, v7")
                a(f"s_lshl_b32 s65, s{sJ}, 9")
                a(f"s_lshl_b32 s68, s{sCQ}, 7")
                a(f"s_add_u32 s65, s65, s68")
                a(f"s_add_u32 s65, s65, {WS_CS}")
                a(f"s_add_u32 s68, s65, {F*4}")
                for q in range(4):
                    a(f"buffer_load_dwordx4 v[{128+4*q}:{131+4*q}], v6, {srd(sWS)}, s65 offen offset:{32*q}")
                for q in range(4):
                    a(f"buffer_load_dwordx4 v[{144+4*q}:{147+4*q}], v6, {srd(sWS)}, s68 offen offset:{32*q}")
    a("s_waitcnt vmcnt(0)")
    a(f"v_mul_f32 v17, {float_hex(-1.4426950408889634)}, v17")
    a(f"v_mul_f32 v19, {float_hex(-1.4426950408889634)}, v19")
    a(f"s_lshl_b32 s65, s{sI}, 2")
    a(f"s_lshl_b32 s68, s{sTH}, 1")
    a(f"s_add_u32 s65, s65, s68")
    a(f"s_mul_i32 s65, s65, 112")
    a(f"s_lshl_b32 s68, s{sJ}, 3")
    a(f"s_add_u32 s65, s65, s68")
    a(f"s_lshl_b32 s68, s{sCQ}, 1")
    a(f"s_add_u32 s65, s65, s68")
    a(f"s_lshl_b32 s65, s65, 10")
    a(f"s_add_u32 s65, s65, {WS_H}")
    a(f"s_add_u32 s68, s65, {112*1024}")
    a(f"v_lshlrev_b32 v6, 4, v{vL}")
    for tt in range(2):
        m, nrs = 16 + 2*tt, 17 + 2*tt
        for kp in range(2):
            T = 32 + 16*((2*tt + kp) % 2)
            for e8 in range(8):
                e = 8*kp + e8
                g, u = G[tt] + e, U[tt] + e
                a(f"v_fma_f32 v{g}, -v{m}, v{128+e}, v{g}")
                a(f"v_fma_f32 v{u}, -v{m}, v{144+e}, v{u}")
                a(f"v_mul_f32 v{T+e8}, v{nrs}, v{g}")
            for e8 in range(8): a(f"v_exp_f32 v{T+e8}, v{T+e8}")
            for e8 in range(8):
                e = 8*kp + e8
                a(f"v_add_f32 v{T+e8}, 1.0, v{T+e8}")
                a(f"v_mul_f32 v{G[tt]+e}, v{G[tt]+e}, v{U[tt]+e}")
            for e8 in range(8): a(f"v_rcp_f32 v{T+e8}, v{T+e8}")
            for e8 in range(8):
                e = 8*kp + e8
                a(f"v_mul_f32 v{G[tt]+e}, v{G[tt]+e}, v{T+e8}")
            for p in range(4):
                e = 8*kp + 2*p
                a(f"v_cvt_pk_bf16_f32 v{T+8+p}, v{G[tt]+e}, v{G[tt]+e+1}")
            a(f"buffer_store_dwordx4 v[{T+8}:{T+11}], v6, {srd(sWS)}, s{65 if tt == 0 else 68} offen offset:{1024*kp}")

CB = 18176
HA, HB, U0, U1 = 256, 4736, 8960, 13536
CPART = 36864
def conv(a):
    sCP = 60
    a(f"s_mul_i32 s{sCP}, s{sX}, 28")
    a(f"s_add_u32 s{sCP}, s{sCP}, s{sSLOT}")
    a(f"s_sub_u32 s{sCP}, s{sCP}, 4")
    vL = 1
    a(f"v_and_b32 v{vL}, 63, v0")
    a(f"s_and_b32 s61, s{sWV}, 1")
    a(f"s_lshr_b32 s62, s{sWV}, 1")
    a(f"s_lshl_b32 s63, s{sCP}, 1")
    a(f"s_add_u32 s63, s63, s61")
    a(f"s_lshl_b32 s68, s63, 12")
    a(f"s_lshl_b32 s69, s62, 2")
    a(f"s_add_u32 s68, s68, s69")
    a(f"s_mul_i32 s69, s63, {RP}")
    a(f"s_add_u32 s69, s69, {WS_R}")
    a(f"s_cmp_eq_u32 s62, 2")
    a(f"s_cselect_b32 s70, 2, 0")
    a(f"s_add_u32 s69, s69, s70")
    a(f"s_cmp_lt_u32 s62, 2")
    a(f"s_cselect_b32 s64, s{sSK}, s{sWS}")
    a(f"s_cselect_b32 s65, s{sSK+1}, s{sWS+1}")
    a(f"s_cselect_b32 s66, s{sSK+2}, s{sWS+2}")
    a(f"s_mov_b32 s67, 0x20000")
    a(f"s_cselect_b32 s68, s68, s69")
    a(f"s_mov_b32 s70, {HA}")
    a(f"s_cmp_eq_u32 s62, 1\ns_cselect_b32 s70, {HB}, s70")
    a(f"s_cmp_eq_u32 s62, 2\ns_cselect_b32 s70, {U0}, s70")
    a(f"s_cmp_eq_u32 s62, 3\ns_cselect_b32 s70, {U1}, s70")
    a(f"s_mul_i32 s71, s61, {CB}")
    a(f"s_add_u32 m0, s70, s71")
    a(f"v_lshlrev_b32 v2, 4, v{vL}")
    for n in range(4): a(f"buffer_load_dwordx4 v2, s[64:67], s68 offen offset:{1024*n} lds")
    a(f"s_lshl_b32 s72, s63, 1")
    a(f"v_mov_b32 v3, 0")
    a(f"buffer_load_ushort v4, v3, {srd(sD)}, s72 offen")
    a(f"s_lshl_b32 s72, s63, 12")
    a(f"buffer_load_dword v5, v3, {srd(sSK)}, s72 offen")
    a("v_mov_b32 v8, 0\nv_mov_b32 v9, 0\nv_mov_b32 v10, 0\nv_mov_b32 v11, 0")
    a(f"s_add_u32 s70, s70, s71")
    a(f"s_cmp_lt_u32 s62, 2")
    a(f"s_cselect_b32 s72, 0, 4352")
    a(f"s_cselect_b32 s73, 16, 28")
    a(f"s_add_u32 s72, s72, s70")
    a(f"s_sub_u32 s72, s72, 256")
    a(f"v_add_u32 v6, s72, v2")
    a(f"v_cmp_gt_u32 vcc, s73, v{vL}")
    a(f"s_and_saveexec_b64 s[74:75], vcc")
    a(f"ds_write_b128 v6, v[8:11]")
    a(f"s_mov_b64 exec, s[74:75]")
    a(f"s_cmp_ge_u32 s62, 2")
    a(f"s_cbranch_scc1 L_cv_nofix")
    a(f"s_lshl_b32 s72, s62, 2")
    a(f"s_sub_u32 s72, s70, s72")
    a(f"s_sub_u32 s72, s72, 192")
    a(f"v_mov_b32 v6, s72")
    a(f"s_waitcnt vmcnt(0) lgkmcnt(0)")
    a(f"ds_write_b32 v6, v4")
    a(f"s_cmp_eq_u32 s62, 0")
    a(f"s_cbranch_scc1 L_cv_nofix")
    a(f"ds_write_b32 v6, v5 offset:192")
    a.label("L_cv_nofix")
    a("s_waitcnt vmcnt(0) lgkmcnt(0)")
    a("s_barrier")
    a(f"s_cmp_ge_u32 s{sWV}, 4")
    a(f"s_cbranch_scc1 L_cv_red")
    vA, vB, vDl = 2, 3, 4
    a(f"v_and_b32 v5, 15, v{vL}")
    a(f"v_lshrrev_b32 v6, 4, v{vL}")
    a(f"v_and_b32 v7, 1, v5")
    a(f"v_mov_b32 v8, {HB - 4 - 60 - 192}")
    a(f"v_mov_b32 v9, {HA - 60 - 192}")
    a(f"v_cmp_eq_u32 vcc, 1, v7")
    a(f"v_cndmask_b32 v8, v8, v9, vcc")
    a(f"v_lshl_add_u32 v8, v5, 2, v8")
    a(f"v_lshl_add_u32 v8, v6, 4, v8")
    a(f"v_add_u32 v8, s71, v8")
    a(f"s_lshl_b32 s72, s62, 8")
    a(f"v_add_u32 v{vA}, s72, v8")
    a(f"s_add_u32 s73, s71, {U0 + 4096}")
    a(f"v_mov_b32 v9, s73")
    a(f"s_cmp_eq_u32 s62, 0")
    a(f"s_cselect_b64 vcc, -1, 0")
    a(f"v_cndmask_b32 v{vDl}, v9, v8, vcc")
    a(f"v_mov_b32 v8, {U0 + 448}")
    a(f"v_mov_b32 v9, {U1 + 448}")
    a(f"v_cmp_eq_u32 vcc, 1, v7")
    a(f"v_cndmask_b32 v8, v8, v9, vcc")
    a(f"v_lshrrev_b32 v9, 1, v5")
    a(f"v_lshlrev_b32 v9, 6, v9")
    a(f"v_sub_u32 v8, v8, v9")
    a(f"v_lshl_add_u32 v8, v6, 4, v8")
    a(f"s_add_u32 s72, s72, s71")
    a(f"v_add_u32 v{vB}, s72, v8")
    ACC = 16
    HI = 48
    LOW = [80, 112]
    DL = 144
    def Areg(p, it): return (LOW[it % 2] + 4*p) if p < 4 else (HI + 4*(p-4))
    def Breg(q, it): return (LOW[it % 2] + 16 + 4*q) if q < 4 else (HI + 16 + 4*(q-4))
    def rdA(p, it):
        r = Areg(p, it); o = 192 + 512*p + 64*it
        return [f"ds_read_b64 v[{r}:{r+1}], v{vA} offset:{o}", f"ds_read_b64 v[{r+2}:{r+3}], v{vA} offset:{o+8}"]
    def rdB(q, it):
        r = Breg(q, it); o = 3584 - 512*q + 64*it
        return [f"ds_read_b128 v[{r}:{r+3}], v{vB} offset:{o}"]
    def mf(T, A, B, first=False):
        c = "0" if first else f"v[{ACC+4*T}:{ACC+4*T+3}]"
        return f"v_mfma_f32_16x16x32_bf16 v[{ACC+4*T}:{ACC+4*T+3}], v[{A}:{A+3}], v[{B}:{B+3}], {c}"
    a(f"ds_read_b64 v[{DL}:{DL+1}], v{vDl}")
    a(f"ds_read_b64 v[{DL+2}:{DL+3}], v{vDl} offset:8")
    for p in range(4):
        for r in rdA(p, 0) + rdB(p, 0): a(r)
    for it in range(4):
        a("s_waitcnt lgkmcnt(0)")
        rd = []
        for p in range(4, 8): rd += rdA(p, it) + rdB(p, it)
        ms = []
        if it == 0:
            ms += [mf(T, DL, Breg(T, 0), True) for T in range(4)]
        seen = set(range(4)) if it == 0 else set(range(8))
        for p in range(4):
            for q in range(4):
                T = p + q
                ms.append(mf(T, Areg(p, it), Breg(q, it), T not in seen)); seen.add(T)
        for k, m in enumerate(ms):
            a(m)
            if k < len(rd): a(rd[k])
        a("s_waitcnt lgkmcnt(0)")
        rd = []
        if it < 3:
            for p in range(4): rd += rdA(p, it+1) + rdB(p, it+1)
        ms = []
        for hp in range(4, 8):
            for l in range(0, 8 - hp):
                T = hp + l
                ms.append(mf(T, Areg(hp, it), Breg(l, it), T not in seen)); seen.add(T)
                ms.append(mf(T, Areg(l, it), Breg(hp, it)))
        if it == 0:
            ms += [mf(T, DL, Breg(T, 0)) for T in range(4, 8)]
        for k, m in enumerate(ms):
            a(m)
            if k < len(rd): a(rd[k])
    a(f"s_lshl_b32 s72, s{sWV}, 13")
    a(f"v_lshlrev_b32 v5, 4, v{vL}")
    a(f"v_add_u32 v5, s72, v5")
    for T in range(8): a(f"ds_write_b128 v5, v[{ACC+4*T}:{ACC+4*T+3}] offset:{CPART + 1024*T}")
    a.label("L_cv_red")
    a("s_waitcnt lgkmcnt(0)")
    a("s_barrier")
    a(f"v_lshlrev_b32 v5, 4, v0")
    for w in range(4): a(f"ds_read_b128 v[{16+4*w}:{19+4*w}], v5 offset:{CPART + 8192*w}")
    a(f"v_and_b32 v6, 15, v{vL}")
    a(f"v_lshrrev_b32 v7, 4, v{vL}")
    a(f"v_lshrrev_b32 v8, 1, v6")
    a(f"v_and_b32 v6, 1, v6")
    a(f"v_lshlrev_b32 v8, 7, v8")
    a(f"v_lshl_add_u32 v8, v7, 5, v8")
    a(f"v_lshl_add_u32 v8, v6, 4, v8")
    a(f"s_lshl_b32 s72, s{sCP}, 13")
    a(f"s_lshl_b32 s73, s{sWV}, 10")
    a(f"s_add_u32 s72, s72, s73")
    a(f"s_add_u32 s72, s72, {WS_Y}")
    a("s_waitcnt lgkmcnt(0)")
    for r in range(4):
        a(f"v_add_f32 v{16+r}, v{16+r}, v{24+r}")
        a(f"v_add_f32 v{20+r}, v{20+r}, v{28+r}")
    for r in range(4): a(f"v_cvt_pk_bf16_f32 v{32+r}, v{16+r}, v{20+r}")
    a(f"buffer_store_dwordx4 v[32:35], v8, {srd(sWS)}, s72 offen")

def gemm2(a):
    sTau, sKQ, sTH = 60, 61, 62
    a(f"s_lshl_b32 s{sTau}, s{sX}, 2")
    a(f"s_add_u32 s{sTau}, s{sTau}, s{sLQ}")
    a(f"s_lshr_b32 s{sKQ}, s{sWV}, 1")
    a(f"s_and_b32 s{sTH}, s{sWV}, 1")
    vL, vW, vH = 1, 2, 3
    a(f"v_and_b32 v{vL}, 63, v0")
    a(f"v_lshrrev_b32 v4, 3, v{vL}")
    a(f"v_and_b32 v5, 7, v{vL}")
    a(f"v_bfe_u32 v6, v{vL}, 4, 1")
    a(f"v_lshlrev_b32 v6, 2, v6")
    a(f"v_xor_b32 v5, v5, v6")
    a(f"v_mul_u32_u24 v4, 896, v4")
    a(f"v_lshl_add_u32 v{vW}, v5, 4, v4")
    sWo, sM = 63, 64
    a(f"s_mul_i32 s{sWo}, s{sKQ}, {448*896}")
    a(f"s_mul_i32 s65, s{sTH}, {56*896}")
    a(f"s_add_u32 s{sWo}, s{sWo}, s65")
    a(f"s_lshl_b32 s65, s{sLR}, 7")
    a(f"s_add_u32 s{sWo}, s{sWo}, s65")
    a(f"s_mul_i32 s{sM}, s{sKQ}, 28672")
    a(f"s_mul_i32 s65, s{sTH}, 7168")
    a(f"s_add_u32 s{sM}, s{sM}, s65")
    def dma(gi):
        for n in range(7):
            a(f"s_add_u32 m0, s{sM}, {(gi & 1)*14336 + n*1024}")
            a(f"s_add_u32 s65, s{sWo}, {(112*gi + 8*n)*896}")
            a(f"buffer_load_dwordx4 v{vW}, {srd(sW2)}, s65 offen lds")
    sHo = 66
    a(f"s_lshl_b32 s{sHo}, s{sTau}, 1")
    a(f"s_add_u32 s{sHo}, s{sHo}, s{sTH}")
    a(f"s_mul_i32 s{sHo}, s{sHo}, 112")
    a(f"s_mul_i32 s65, s{sKQ}, 28")
    a(f"s_add_u32 s{sHo}, s{sHo}, s65")
    a(f"s_lshl_b32 s{sHo}, s{sHo}, 10")
    a(f"s_add_u32 s{sHo}, s{sHo}, {WS_H}")
    a(f"v_lshlrev_b32 v{vH}, 4, v{vL}")
    HR = 128
    def hload(k0, k1):
        for ks in range(k0, k1):
            if ks % 4 == 0 and ks > 0: a(f"s_add_u32 s{sHo}, s{sHo}, 4096")
            a(f"buffer_load_dwordx4 v[{HR+4*ks}:{HR+4*ks+3}], v{vH}, {srd(sWS)}, s{sHo} offen offset:{1024*(ks%4)}")
    dma(0); hload(0, 7); dma(1); hload(7, 28)
    vT = [4, 5]
    a(f"v_bfe_u32 v6, v{vL}, 2, 2")
    a(f"v_lshrrev_b32 v7, 5, v{vL}")
    a(f"v_lshl_add_u32 v8, v7, 2, v6")
    a(f"v_lshlrev_b32 v8, 7, v8")
    a(f"v_bfe_u32 v9, v{vL}, 4, 1")
    a(f"v_lshl_add_u32 v8, v9, 5, v8")
    a(f"v_and_b32 v9, 3, v{vL}")
    a(f"v_lshl_add_u32 v8, v9, 3, v8")
    a(f"s_mul_i32 s65, s{sKQ}, 28672")
    a(f"v_add_u32 v8, s65, v8")
    a(f"v_lshrrev_b32 v6, 1, v6")
    a(f"v_lshl_add_u32 v{vT[0]}, v6, 6, v8")
    a(f"v_xor_b32 v6, 1, v6")
    a(f"v_lshl_add_u32 v{vT[1]}, v6, 6, v8")
    ACC = [64, 80]
    FR = [32, 40, 48]
    def reads(ks):
        gi, k = ks // 7, ks % 7
        f = FR[ks % 3]
        o = (gi & 1)*14336 + k*2048
        return [f"ds_read_b64_tr_b16 v[{f+4*ct+2*z}:{f+4*ct+2*z+1}], v{vT[ct]} offset:{o + 1024*z}" for ct in range(2) for z in range(2)]
    issued = ['d0']*7 + [f'h{k}' for k in range(7)] + ['d1']*7 + [f'h{k}' for k in range(7, 28)]
    def wait_for(tag):
        idx = max(i for i, t in enumerate(issued) if t == tag)
        a(f"s_waitcnt vmcnt({len(issued) - 1 - idx})")
    for gi in range(4):
        wait_for(f'd{gi}')
        a("s_barrier")
        for r in reads(7*gi): a(r)
        for k in range(7):
            ks = 7*gi + k
            f = FR[ks % 3]
            if k < 6:
                for r in reads(ks+1): a(r)
                a("s_waitcnt lgkmcnt(4)")
            else:
                a("s_waitcnt lgkmcnt(0)")
            wait_for(f'h{ks}')
            for ct in range(2):
                c = "0" if ks == 0 else f"v[{ACC[ct]}:{ACC[ct]+15}]"
                a(f"v_mfma_f32_32x32x16_bf16 v[{ACC[ct]}:{ACC[ct]+15}], v[{f+4*ct}:{f+4*ct+3}], v[{HR+4*ks}:{HR+4*ks+3}], {c}")
        if gi < 2:
            a("s_barrier")
            dma(gi + 2); issued += [f'd{gi+2}']*7
    a(f"v_and_b32 v6, 31, v{vL}")
    a(f"s_lshl_b32 s65, s{sTau}, 6")
    a(f"s_lshl_b32 s67, s{sTH}, 5")
    a(f"s_add_u32 s65, s65, s67")
    a(f"v_add_u32 v6, s65, v6")
    a(f"v_lshlrev_b32 v8, 3, v6")
    a(f"s_mov_b32 s67, {WS_STATS}")
    a(f"buffer_load_dwordx2 v[16:17], v8, {srd(sWS)}, s67 offen")
    a(f"v_mul_u32_u24 v8, 896, v6")
    a(f"v_lshl_add_u32 v8, v7, 4, v8")
    a(f"s_lshl_b32 s67, s{sLR}, 7")
    a(f"s_lshl_b32 s68, s{sKQ}, 5")
    a(f"s_add_u32 s67, s67, s68")
    a(f"buffer_load_dwordx4 v[20:23], v8, {srd(sQ)}, s67 offen")
    a(f"v_and_b32 v9, 0x7f8, v6")
    a(f"v_and_b32 v10, 1, v6")
    a(f"v_lshl_add_u32 v9, v10, 2, v9")
    a(f"v_bfe_u32 v10, v6, 1, 2")
    a(f"v_add_u32 v9, v9, v10")
    a(f"v_lshlrev_b32 v9, 2, v9")
    a(f"v_lshl_add_u32 v9, v7, 15, v9")
    a(f"s_lshl_b32 s68, s{sLR}, 5")
    a(f"s_lshl_b32 s69, s{sKQ}, 3")
    a(f"s_add_u32 s68, s68, s69")
    a(f"s_lshl_b32 s68, s68, 13")
    a(f"s_add_u32 s68, s68, {WS_Y}")
    for p in range(4):
        a(f"buffer_load_dword v{24+p}, v9, {srd(sWS)}, s68 offen")
        a(f"s_add_u32 s68, s68, 8192")
    a("s_barrier")
    a(f"s_lshl_b32 s68, s{sTH}, 15")
    a(f"s_lshl_b32 s69, s{sKQ}, 11")
    a(f"s_add_u32 s68, s68, s69")
    a(f"v_add_u32 v10, s68, v{vH}")
    for dk in range(4):
        base = ACC[dk >> 1] + 8*(dk & 1)
        a(f"ds_write_b128 v10, v[{base}:{base+3}] offset:{8192*dk}")
        a(f"ds_write_b128 v10, v[{base+4}:{base+7}] offset:{8192*dk + 1024}")
    a(f"s_lshl_b32 s68, s{sTH}, 15")
    a(f"s_lshl_b32 s69, s{sKQ}, 13")
    a(f"s_add_u32 s68, s68, s69")
    a(f"v_add_u32 v10, s68, v{vH}")
    a("s_waitcnt lgkmcnt(0)")
    a("s_barrier")
    for sk in range(4):
        a(f"ds_read_b128 v[{32+8*sk}:{35+8*sk}], v10 offset:{2048*sk}")
        a(f"ds_read_b128 v[{36+8*sk}:{39+8*sk}], v10 offset:{2048*sk + 1024}")
    a("s_waitcnt lgkmcnt(0)")
    for e in range(8):
        a(f"v_add_f32 v{32+e}, v{32+e}, v{40+e}")
        a(f"v_add_f32 v{48+e}, v{48+e}, v{56+e}")
    for e in range(8): a(f"v_add_f32 v{32+e}, v{32+e}, v{48+e}")
    for r in range(4): a(f"v_permlane32_swap_b32 v{32+r}, v{36+r}")
    a("s_waitcnt vmcnt(0)")
    a("v_mul_f32 v18, v17, v17")
    for p in range(4):
        lo(a, 40+2*p, 20+p); hi(a, 41+2*p, 20+p)
        lo(a, 48+2*p, 24+p); hi(a, 49+2*p, 24+p)
    for e in range(8):
        a(f"v_sub_f32 v{56+e}, v{40+e}, v16")
        a(f"v_mul_f32 v{56+e}, v{56+e}, v17")
        a(f"v_fmac_f32 v{40+e}, v{56+e}, v{48+e}")
        a(f"v_fmac_f32 v{40+e}, v18, v{32+e}")
    for p in range(4): a(f"v_cvt_pk_bf16_f32 v{56+p}, v{40+2*p}, v{41+2*p}")
    a(f"buffer_store_dwordx4 v[56:59], v8, {srd(sO)}, s67 offen")

def kernel(name, tag, body_fn):
    a = Asm()
    body_fn(a)
    a.label(f"L_end_{tag}")
    a("s_endpgm")
    return f".globl {name}\n.p2align 8\n.type {name},@function\n{name}:\n" + a.finalize()

def k_prep(a):
    prologue(a, ['q','k','v','sh','w1','w3','ws'], 'prep', spare_exit=False)
    a(f"s_cmp_lt_u32 s{sSLOT}, 4")
    a("s_cbranch_scc1 L_spare")
    prep(a)
    a("s_branch L_end_prep")
    a.label("L_spare")
    spare(a)
def k_g1(a):
    prologue(a, ['q','w1','w3','ws'], 'g1'); gemm1(a)
def k_cv(a):
    prologue(a, ['sk','d','ws'], 'cv'); conv(a)
def k_g2(a):
    prologue(a, ['q','w2','o','ws'], 'g2'); gemm2(a)

hdr = open("cdna_kernels/%s.s.ref" % NAME).read().split("; Override launch")[0]
out = hdr
out += "; @launch kernel=prep_kernel grid=(256,1,1) block=(512,1,1) lds=16384\n"
out += "; @launch kernel=g1_kernel grid=(256,1,1) block=(512,1,1) lds=147456\n"
out += "; @launch kernel=cv_kernel grid=(256,1,1) block=(512,1,1) lds=69632\n"
out += "; @launch kernel=g2_kernel grid=(256,1,1) block=(512,1,1) lds=114688\n"
out += '.amdgcn_target "amdgcn-amd-amdhsa--gfx950"\n.text\n'
out += kernel("prep_kernel", "prep", k_prep)
out += kernel("g1_kernel", "g1", k_g1)
out += kernel("cv_kernel", "cv", k_cv)
out += kernel("g2_kernel", "g2", k_g2)
out += '.section .rodata,"a"\n'
for n in ("prep_kernel", "g1_kernel", "cv_kernel", "g2_kernel"):
    out += ".p2align 6\n" + kd(n)
dst = sys.argv[1] if len(sys.argv) > 1 else "cdna_kernels/%s.s" % NAME
open(dst, "w").write(out)
print("wrote", dst, len(out))
```

```python
import sys, struct
from asmdsl import Asm

NAME = "parallel_sum__ssm_conv_h3__glu_gated_swiglu__prompt"
S, D, F = 2048, 448, 1792
WS_F1, WS_F2, WS_F3, WS_F4 = 0x1000, 0x3000, 0x4000, 0x6000
WS_STATS = 0x10000
WS_CS    = 0x14000
WS_R     = 0x20000
RP       = 4224
WS_Y     = 0x200000
WS_H     = 0x400000
WS_BYTES = 0x1000000
WS_DBG   = 0xF00000
STAMP = "--stamp" in sys.argv
CLK = "s_memtime" if "--cyc" in sys.argv else "s_memrealtime"

sQ, sK, sV, sSH, sSK, sD, sW1, sW3, sW2, sO, sWS, sDBG = 4, 8, 12, 16, 20, 24, 28, 32, 36, 40, 44, 48
def srd(b): return f"s[{b}:{b+3}]"
SRD_INFO = {
    'ws': (sWS, 96, WS_BYTES),
    'k': (sK, 8, S*D*2), 'v': (sV, 16, S*D*2), 'sh': (sSH, 24, D*8), 'q': (sQ, 0, S*D*2),
    'w1': (sW1, 56, D*F*2), 'w3': (sW3, 64, D*F*2),
    'sk': (sSK, 32, D*S*2), 'd': (sD, 40, D*2),
    'w2': (sW2, 72, D*F*2), 'o': (sO, 80, S*D*2),
}
sX, sLQ, sLR, sWV, sSLOT, sE = 52, 53, 54, 55, 56, 57
def fh(f): return "0x%08x" % struct.unpack("<I", struct.pack("<f", f))[0]
def lo(a, d, s): a(f"v_lshlrev_b32 v{d}, 16, v{s}")
def hi(a, d, s): a(f"v_and_b32 v{d}, 0xffff0000, v{s}")
NST = 11
HLD = "sc1"; HST = "sc1"
for x in sys.argv:
    if x.startswith("--hld="): HLD = x[6:].replace("_", " ")
    if x.startswith("--hst="): HST = x[6:].replace("_", " ")
SMODE = 1 if "--g1" in sys.argv else 0
def stamp(a, idx, mode=0):
    if STAMP and (mode == SMODE or idx in (0, NST-1)): a(f"{CLK} s[{80+2*idx}:{81+2*idx}]")
def stamp_flush(a):
    if not STAMP: return
    a("s_waitcnt vmcnt(0) lgkmcnt(0)")
    stamp(a, NST-1)
    a(f"s_and_b32 s60, s{sWV}, 3")
    a(f"s_cmp_lg_u32 s60, 0")
    a(f"s_cbranch_scc1 L_end")
    a("s_waitcnt lgkmcnt(0)")
    a(f"s_lshl_b32 s60, s2, 7")
    a(f"s_lshl_b32 s61, s{sWV}, 13")
    a(f"s_add_u32 s60, s60, s61")
    a(f"s_add_u32 s60, s60, {WS_DBG}")
    a("v_mov_b32 v0, 0")
    for i in range(NST):
        a(f"v_mov_b32 v2, s{80+2*i}")
        a(f"v_mov_b32 v3, s{81+2*i}")
        a(f"buffer_store_dwordx2 v[2:3], v0, {srd(sWS)}, s60 offen offset:{8*i}")

POLLN = [0]
def poll(a, vaddr, vtmp, soff):
    n = POLLN[0]; POLLN[0] += 1
    a(f"s_mov_b32 s58, 0")
    a.label(f"L_poll{n}")
    a(f"buffer_load_dword v{vtmp}, v{vaddr}, {srd(sWS)}, s{soff} offen sc1")
    a(f"s_waitcnt vmcnt(0)")
    a(f"v_cmp_ne_u32 vcc, s{sE}, v{vtmp}")
    a(f"s_cbranch_vccz L_polled{n}")
    a(f"s_add_u32 s58, s58, 1")
    a(f"s_cmp_lt_u32 s58, 0x40000")
    a(f"s_cbranch_scc0 L_polled{n}")
    a(f"s_sleep 2")
    a(f"s_branch L_poll{n}")
    a.label(f"L_polled{n}")

def flag(a, soff, tag, v0=2, v1=3):
    a(f"s_cmp_lg_u32 s{sWV}, 0")
    a(f"s_cbranch_scc1 L_flag_{tag}")
    a(f"v_mov_b32 v{v0}, 0")
    a(f"v_mov_b32 v{v1}, s{sE}")
    a(f"s_mov_b64 exec, 1")
    a(f"buffer_store_dword v{v1}, v{v0}, {srd(sWS)}, s{soff} offen sc1")
    a(f"s_mov_b64 exec, -1")
    a.label(f"L_flag_{tag}")

def prologue(a):
    a(f"s_cmp_ge_u32 s2, 256")
    a(f"s_cbranch_scc1 L_end")
    for n, (r, off, sz) in SRD_INFO.items():
        a(f"s_load_dwordx2 s[{r}:{r+1}], s[0:1], {off}")
    for n, (r, off, sz) in SRD_INFO.items():
        a(f"s_mov_b32 s{r+2}, {sz}")
        a(f"s_mov_b32 s{r+3}, 0x20000")
    a(f"s_and_b32 s{sX}, s2, 7")
    a(f"s_lshr_b32 s{sSLOT}, s2, 3")
    a(f"v_lshrrev_b32 v1, 6, v0")
    a(f"v_readfirstlane_b32 s{sWV}, v1")
    a(f"s_sub_u32 s{sLR}, s{sSLOT}, 4")
    a(f"s_mul_i32 s{sLQ}, s{sLR}, 37")
    a(f"s_lshr_b32 s{sLQ}, s{sLQ}, 8")
    a(f"s_mul_i32 s58, s{sLQ}, 7")
    a(f"s_sub_u32 s{sLR}, s{sLR}, s58")
def kernarg_wait(a):
    a(f"s_waitcnt lgkmcnt(0)")
    a(f"s_load_dword s{sE}, s[{sWS}:{sWS+1}], 0")

def epoch_hash(a):
    a(f"s_waitcnt lgkmcnt(0)")
    a(f"s_mul_i32 s{sE}, s{sE}, 0x9E3779B1")
    a(f"s_add_u32 s{sE}, s{sE}, 0x7F4A7C15")

def round_bf16(a, v):
    a(f"v_cvt_pk_bf16_f32 v{v}, v{v}, v{v}")
    a(f"v_lshlrev_b32 v{v}, 16, v{v}")

def spare(a):
    kernarg_wait(a)
    a(f"s_lshl_b32 s60, s{sX}, 2")
    a(f"s_add_u32 s60, s60, s{sSLOT}")
    a("v_lshrrev_b32 v2, 3, v0")
    a("v_and_b32 v3, 7, v0")
    a("v_mul_u32_u24 v4, 896, v2")
    a("v_lshl_add_u32 v4, v3, 4, v4")
    a(f"s_mul_i32 s61, s60, {64*896}")
    for n in range(7): a(f"buffer_load_dwordx4 v[{8+4*n}:{11+4*n}], v4, {srd(sQ)}, s61 offen offset:{128*n}")
    a(f"s_lshr_b32 s62, s{sX}, 1")
    a(f"s_lshl_b32 s62, s62, 2")
    a(f"s_add_u32 s62, s62, s{sSLOT}")
    a(f"s_min_u32 s62, s62, 13")
    a(f"s_cmp_ge_u32 s62, 7")
    a(f"s_cselect_b32 s64, s{sW3}, s{sW1}")
    a(f"s_cselect_b32 s65, s{sW3+1}, s{sW1+1}")
    a(f"s_cselect_b32 s63, 7, 0")
    a(f"s_cselect_b32 s68, {F*4}, 0")
    a(f"s_mov_b32 s66, {D*F*2}")
    a(f"s_mov_b32 s67, 0x20000")
    a(f"s_sub_u32 s63, s62, s63")
    a(f"s_and_b32 s69, s{sX}, 1")
    a(f"s_mul_i32 s69, s69, 7")
    a(f"s_add_u32 s63, s63, s69")
    a("v_and_b32 v5, 63, v0")
    a("v_lshrrev_b32 v6, 4, v5")
    a("v_and_b32 v5, 15, v5")
    a(f"v_mul_u32_u24 v7, 3584, v6")
    a("v_lshl_add_u32 v7, v5, 4, v7")
    a(f"s_mul_i32 s69, s{sWV}, {56*3584}")
    a(f"s_lshl_b32 s70, s63, 8")
    a(f"s_add_u32 s69, s69, s70")
    for n in range(14):
        a(f"buffer_load_dwordx4 v[{64+4*n}:{67+4*n}], v7, s[64:67], s69 offen")
        a(f"s_add_u32 s69, s69, {4*3584}")
    a("v_lshrrev_b32 v44, 1, v5")
    a("v_and_b32 v45, 1, v5")
    a("v_lshlrev_b32 v45, 4, v45")
    a("v_mov_b32 v46, 0x3f80")
    a("v_lshlrev_b32 v46, v45, v46")
    for dw in range(4):
        a(f"v_cmp_eq_u32 vcc, {dw}, v44")
        a(f"v_cndmask_b32 v{48+dw}, 0, v46, vcc")
    epoch_hash(a)
    a("v_mov_b32 v40, 0\nv_mov_b32 v41, 0\nv_mov_b32 v42, 0\nv_mov_b32 v43, 0")
    a("s_mov_b32 s70, 0x3f803f80")
    a("s_waitcnt vmcnt(14)")
    stamp(a, 2)
    for n in range(28):
        a(f"v_dot2_f32_bf16 v{40+2*(n%2)}, v{8+n}, s70, v{40+2*(n%2)}")
        a(f"v_dot2_f32_bf16 v{41+2*(n%2)}, v{8+n}, v{8+n}, v{41+2*(n%2)}")
    a("v_add_f32 v40, v40, v42")
    a("v_add_f32 v41, v41, v43")
    for m in ("quad_perm:[1,0,3,2]", "quad_perm:[2,3,0,1]", "row_half_mirror"):
        a(f"v_add_f32_dpp v40, v40, v40 {m} row_mask:0xf bank_mask:0xf")
        a(f"v_add_f32_dpp v41, v41, v41 {m} row_mask:0xf bank_mask:0xf")
    a(f"v_mul_f32 v40, {fh(1.0/448)}, v40")
    a(f"v_mul_f32 v41, {fh(1.0/448)}, v41")
    a("v_fma_f32 v41, -v40, v40, v41")
    a("v_max_f32 v41, 0, v41")
    round_bf16(a, 40)
    round_bf16(a, 41)
    a(f"v_add_f32 v41, {fh(1e-5)}, v41")
    round_bf16(a, 41)
    a("v_sqrt_f32 v41, v41")
    round_bf16(a, 41)
    a("v_rcp_f32 v41, v41")
    a("v_lshlrev_b32 v4, 3, v2")
    a(f"s_lshl_b32 s61, s60, 9")
    a(f"s_add_u32 s61, s61, {WS_STATS}")
    a("v_cmp_eq_u32 vcc, 0, v3")
    a("s_and_saveexec_b64 s[72:73], vcc")
    a(f"buffer_store_dwordx2 v[40:41], v4, {srd(sWS)}, s61 offen sc1")
    a("s_mov_b64 exec, s[72:73]")
    stamp(a, 3)
    for n in range(14):
        a(f"s_waitcnt vmcnt({14-n})")
        c = "0" if n == 0 else "v[52:55]"
        a(f"v_mfma_f32_16x16x32_bf16 v[52:55], v[48:51], v[{64+4*n}:{67+4*n}], {c}")
    stamp(a, 4)
    a("v_lshlrev_b32 v4, 5, v5")
    a("v_lshl_add_u32 v4, v6, 4, v4")
    a(f"s_lshl_b32 s61, s{sWV}, 9")
    a("v_add_u32 v4, s61, v4")
    a("v_cmp_gt_u32 vcc, 2, v6")
    a("s_and_saveexec_b64 s[72:73], vcc")
    a("ds_write_b128 v4, v[52:55]")
    a("s_mov_b64 exec, s[72:73]")
    a("s_waitcnt vmcnt(0) lgkmcnt(0)")
    a("s_barrier")
    stamp(a, 5)
    a(f"s_cmp_lg_u32 s{sWV}, 0")
    a("s_cbranch_scc1 L_sp_pf0")
    a("v_lshlrev_b32 v4, 3, v0")
    for p in range(8): a(f"ds_read_b64 v[{64+2*p}:{65+2*p}], v4 offset:{512*p}")
    a("s_waitcnt lgkmcnt(0)")
    for st in (4, 2, 1):
        for p in range(st):
            a(f"v_add_f32 v{64+2*p}, v{64+2*p}, v{64+2*(p+st)}")
            a(f"v_add_f32 v{65+2*p}, v{65+2*p}, v{65+2*(p+st)}")
    a(f"s_lshl_b32 s61, s63, 9")
    a(f"s_add_u32 s61, s61, s68")
    a(f"s_add_u32 s61, s61, {WS_CS}")
    a(f"buffer_store_dwordx2 v[64:65], v4, {srd(sWS)}, s61 offen sc1")
    a(f"s_lshl_b32 s61, s60, 2")
    a(f"s_add_u32 s61, s61, {WS_F2}")
    a("s_waitcnt vmcnt(0)")
    stamp(a, 6)
    flag(a, 61, 'f2')
    a.label("L_sp_pf0")
    a("s_barrier")
    a(f"s_cmp_lg_u32 s{sWV}, 0")
    a("s_cbranch_scc1 L_sp_pf")
    a(f"s_cmp_lg_u32 s60, 0")
    a(f"s_cbranch_scc1 L_sp_pf")
    a(f"v_and_b32 v4, 31, v0")
    a(f"v_lshlrev_b32 v4, 2, v4")
    a(f"s_mov_b32 s61, {WS_F2}")
    poll(a, 4, 5, 61)
    for gg in range(7):
        a(f"s_mov_b32 s61, {WS_F1 + 1024*gg}")
        poll(a, 4, 5, 61)
    a(f"s_mov_b32 s61, 0")
    flag(a, 61, 'ep')
    a("s_branch L_fin")
    a.label("L_sp_pf")
    a(f"v_and_b32 v4, 63, v0")
    a(f"v_lshlrev_b32 v4, 7, v4")
    a(f"s_lshl_b32 s61, s{sSLOT}, 3")
    a(f"s_add_u32 s61, s61, s{sWV}")
    a(f"s_mul_i32 s62, s61, {7*8192}")
    for n in range(7):
        a(f"buffer_load_dword v{8+n}, v4, {srd(sW2)}, s62 offen")
        a(f"s_add_u32 s62, s62, 8192")
    a(f"s_mul_i32 s62, s{sX}, {56*4096}")
    a(f"s_min_u32 s61, s61, 27")
    a(f"s_lshl_b32 s61, s61, 13")
    a(f"s_add_u32 s62, s62, s61")
    a(f"buffer_load_dword v16, v4, {srd(sSK)}, s62 offen")
    a("s_waitcnt vmcnt(0)")

XR, W1R, W3R = 0, 49152, 98304
PREP_L = 147456
W2L = 0
CVL = 114688
CB = 18176
HA, HB, U0, U1 = 256, 4736, 8960, 13536
LDS_BYTES = 156672

def wflag(a, soff, v0, v1):
    a(f"v_mov_b32 v{v0}, 0")
    a(f"v_mov_b32 v{v1}, s{sE}")
    a(f"s_mov_b64 exec, 1")
    a(f"buffer_store_dword v{v1}, v{v0}, {srd(sWS)}, s{soff} offen sc1")
    a(f"s_mov_b64 exec, -1")

def poll_issue(a, vaddr, vtmp, soff):
    a(f"buffer_load_dword v{vtmp}, v{vaddr}, {srd(sWS)}, s{soff} offen sc1")
def poll_check(a, vaddr, vtmp, soff):
    n = POLLN[0]
    a(f"v_cmp_ne_u32 vcc, s{sE}, v{vtmp}")
    a(f"s_cbranch_vccz L_polled{n}")
    poll(a, vaddr, vtmp, soff)

class Rec:
    def __init__(self): self.l = []
    def __call__(self, t): self.l += [x for x in t.split('\n') if x.strip()]

def main(a):
    sI, sJ, sXo, sWo, sM, sTH, sCQ, sTT = 60, 61, 62, 63, 64, 66, 67, 69
    vL, vX0, vX1, vW0, vW1 = 1, 2, 3, 4, 5
    a(f"s_lshr_b32 s{sI}, s{sX}, 1")
    a(f"s_lshl_b32 s{sI}, s{sI}, 2")
    a(f"s_add_u32 s{sI}, s{sI}, s{sLQ}")
    a(f"s_and_b32 s{sJ}, s{sX}, 1")
    a(f"s_mul_i32 s{sJ}, s{sJ}, 7")
    a(f"s_add_u32 s{sJ}, s{sJ}, s{sLR}")
    a(f"s_mul_i32 s{sXo}, s{sI}, {128*896}")
    a(f"s_mul_i32 s65, s{sWV}, {16*896}")
    a(f"s_add_u32 s{sXo}, s{sXo}, s65")
    a(f"s_lshl_b32 s{sWo}, s{sJ}, 8")
    a(f"s_mul_i32 s65, s{sWV}, {8*3584}")
    a(f"s_add_u32 s{sWo}, s{sWo}, s65")
    a(f"s_lshl_b32 s{sM}, s{sWV}, 11")
    a(f"v_and_b32 v{vL}, 63, v0")
    a(f"v_lshrrev_b32 v6, 3, v{vL}")
    a(f"v_and_b32 v7, 7, v{vL}")
    a(f"v_lshrrev_b32 v8, 4, v{vL}")
    a(f"v_xor_b32 v9, v7, v8")
    a(f"v_mul_u32_u24 v6, 896, v6")
    a(f"v_lshl_add_u32 v{vX0}, v9, 4, v6")
    a(f"v_xor_b32 v9, 4, v9")
    a(f"v_lshl_add_u32 v{vX1}, v9, 4, v6")
    a(f"v_add_u32 v{vX1}, {8*896-1024}, v{vX1}")
    a(f"v_and_b32 v7, 15, v{vL}")
    a(f"v_lshlrev_b32 v9, 2, v8")
    a(f"v_xor_b32 v9, v7, v9")
    a(f"v_mul_u32_u24 v6, 3584, v8")
    a(f"v_lshl_add_u32 v{vW0}, v9, 4, v6")
    a(f"v_add_u32 v{vW1}, {4*3584-1024}, v{vW0}")
    kernarg_wait(a)
    def dma_parts(slab):
        slot = slab % 3
        return [
          [f"s_add_u32 m0, s{sM}, {XR + slot*16384}",
           f"buffer_load_dwordx4 v{vX0}, {srd(sQ)}, s{sXo} offen lds",
           f"buffer_load_dwordx4 v{vX1}, {srd(sQ)}, s{sXo} offen offset:1024 lds",
           f"s_add_u32 s{sXo}, s{sXo}, 128"],
          [f"s_add_u32 m0, s{sM}, {W1R + slot*16384}",
           f"buffer_load_dwordx4 v{vW0}, {srd(sW1)}, s{sWo} offen lds",
           f"buffer_load_dwordx4 v{vW1}, {srd(sW1)}, s{sWo} offen offset:1024 lds"],
          [f"s_add_u32 m0, s{sM}, {W3R + slot*16384}",
           f"buffer_load_dwordx4 v{vW0}, {srd(sW3)}, s{sWo} offen lds",
           f"buffer_load_dwordx4 v{vW1}, {srd(sW3)}, s{sWo} offen offset:1024 lds",
           f"s_add_u32 s{sWo}, s{sWo}, {64*3584}"]]
    def dma(slab):
        for p in dma_parts(slab):
            for i in p: a(i)
    dma(0)
    dma(1)
    a(f"s_lshl_b32 s{sTT}, s{sX}, 2")
    a(f"s_add_u32 s{sTT}, s{sTT}, s{sLQ}")
    a(f"s_mul_i32 s70, s{sTT}, {64*896}")
    a(f"s_lshl_b32 s71, s{sLR}, 7")
    a(f"s_add_u32 s70, s70, s71")
    P = 128
    a(f"v_and_b32 v{P+2}, 31, v0")
    a(f"v_lshrrev_b32 v{P+3}, 5, v0")
    a(f"v_mul_u32_u24 v{P+4}, {4*896}, v{P+3}")
    a(f"v_lshl_add_u32 v{P+4}, v{P+2}, 2, v{P+4}")
    a(f"v_add_u32 v{P+4}, s70, v{P+4}")
    a(f"v_subrev_u32 v{P+5}, 2688, v{P+4}")
    a(f"v_mov_b32 v{P+6}, 0x40000000")
    a(f"v_cmp_gt_u32 vcc, 2688, v{P+4}")
    a(f"v_cndmask_b32 v{P+5}, v{P+5}, v{P+6}, vcc")
    prep_loads = []
    for j in range(3): prep_loads.append(f"buffer_load_dword v{P+10+j}, v{P+5}, {srd(sK)}, 0 offen offset:{896*j}")
    for j in range(4): prep_loads.append(f"buffer_load_dword v{P+13+j}, v{P+4}, {srd(sK)}, 0 offen offset:{896*j}")
    for j in range(4): prep_loads.append(f"buffer_load_dword v{P+17+j}, v{P+4}, {srd(sV)}, 0 offen offset:{896*j}")
    a(f"s_lshl_b32 s71, s{sLR}, 9")
    a(f"v_lshlrev_b32 v{P+7}, 4, v{P+2}")
    prep_loads.append(f"buffer_load_dwordx4 v[{P+24}:{P+27}], v{P+7}, {srd(sSH)}, s71 offen")
    a(f"s_and_b32 s{sTH}, s{sWV}, 1")
    a(f"s_lshr_b32 s{sCQ}, s{sWV}, 1")
    vXa = [10, 11, 12, 13]; vWa1, vWa3 = 14, 15
    a(f"v_and_b32 v6, 31, v{vL}")
    a(f"v_lshrrev_b32 v7, 5, v{vL}")
    a(f"v_bfe_u32 v9, v6, 1, 3")
    a(f"v_xor_b32 v9, v9, v7")
    a(f"s_lshl_b32 s65, s{sTH}, 13")
    a(f"v_lshlrev_b32 v6, 7, v6")
    a(f"v_add_u32 v6, s65, v6")
    for ks in range(4):
        a(f"v_xor_b32 v16, {2*ks}, v9")
        a(f"v_lshl_add_u32 v{vXa[ks]}, v16, 4, v6")
    a(f"v_bfe_u32 v6, v{vL}, 2, 2")
    a(f"v_lshl_add_u32 v9, v7, 3, v6")
    a(f"v_lshlrev_b32 v9, 8, v9")
    a(f"v_xor_b32 v6, s{sCQ}, v6")
    a(f"v_lshl_add_u32 v9, v6, 6, v9")
    a(f"v_and_b32 v6, 1, v8")
    a(f"v_lshl_add_u32 v9, v6, 5, v9")
    a(f"v_and_b32 v6, 3, v{vL}")
    a(f"v_lshl_add_u32 v9, v6, 3, v9")
    a(f"v_add_u32 v{vWa1}, {W1R}, v9")
    a(f"v_add_u32 v{vWa3}, {W3R}, v9")
    a(f"v_mul_u32_u24 v{P+8}, 288, v{P+2}")
    a(f"v_lshlrev_b32 v{P+9}, 3, v{P+3}")
    a(f"v_sub_u32 v{P+8}, v{P+8}, v{P+9}")
    a(f"v_add_u32 v{P+8}, {PREP_L + 120}, v{P+8}")
    a(f"v_and_b32 v9, 31, v{vL}")
    a(f"v_lshlrev_b32 v9, 2, v9")
    epoch_hash(a)
    stamp(a, 1)
    r = Rec()
    for h in range(2):
        un = lo if h == 0 else hi
        for j in range(7): un(r, P+30+j, P+10+j)
        for j in range(4): un(r, P+37+j, P+17+j)
        lo(r, P+41, P+24+2*h); hi(r, P+42, P+24+2*h); lo(r, P+43, P+25+2*h); hi(r, P+44, P+25+2*h)
        for t in range(4): r(f"v_mul_f32 v{P+45+t}, v{P+44}, v{P+30+t}")
        for t in range(4): r(f"v_fmac_f32 v{P+45+t}, v{P+43}, v{P+31+t}")
        for t in range(4): r(f"v_fmac_f32 v{P+45+t}, v{P+42}, v{P+32+t}")
        for t in range(4): r(f"v_fmac_f32 v{P+45+t}, v{P+41}, v{P+33+t}")
        for t in range(4): r(f"v_mul_f32 v{P+45+t}, v{P+45+t}, v{P+37+t}")
        r(f"v_cvt_pk_bf16_f32 v{P+50+2*h}, v{P+48}, v{P+47}")
        r(f"v_cvt_pk_bf16_f32 v{P+51+2*h}, v{P+46}, v{P+45}")
        r(f"ds_write_b64 v{P+8}, v[{P+50+2*h}:{P+51+2*h}] offset:{144*h}")
    r(f"v_lshrrev_b32 v{P+2}, 3, v0")
    r(f"v_and_b32 v{P+3}, 7, v0")
    r(f"v_mul_u32_u24 v{P+4}, 144, v{P+2}")
    r(f"v_lshl_add_u32 v{P+4}, v{P+3}, 4, v{P+4}")
    r(f"v_add_u32 v{P+4}, {PREP_L}, v{P+4}")
    r(f"v_mul_u32_u24 v{P+5}, {RP}, v{P+2}")
    r(f"v_lshl_add_u32 v{P+5}, v{P+3}, 4, v{P+5}")
    r(f"s_mul_i32 s70, s{sLR}, {64*RP}")
    r(f"s_lshl_b32 s71, s{sTT}, 7")
    r(f"s_sub_u32 s70, s70, s71")
    r(f"s_add_u32 s70, s70, {WS_R + 1984*2}")
    for i in range(4): r(f"v_mov_b32 v{P+16+i}, 0")
    prep_valu = r.l
    a("s_waitcnt vmcnt(6)")
    a("s_barrier")
    stamp(a, 2)
    stamp(a, 1, 1)
    G = [64, 80]; U = [96, 112]
    FR = [32, 48]
    def reads(kap):
        slab, ks = kap // 4, kap % 4
        slot = slab % 3
        f = FR[kap % 2]
        return [
            f"ds_read_b64_tr_b16 v[{f+8}:{f+9}], v{vWa1} offset:{slot*16384 + ks*4096}",
            f"ds_read_b64_tr_b16 v[{f+10}:{f+11}], v{vWa1} offset:{slot*16384 + ks*4096 + 1024}",
            f"ds_read_b128 v[{f}:{f+3}], v{vXa[ks]} offset:{XR + slot*16384}",
            f"ds_read_b128 v[{f+4}:{f+7}], v{vXa[ks]} offset:{XR + slot*16384 + 4096}",
            f"ds_read_b64_tr_b16 v[{f+12}:{f+13}], v{vWa3} offset:{slot*16384 + ks*4096}",
            f"ds_read_b64_tr_b16 v[{f+14}:{f+15}], v{vWa3} offset:{slot*16384 + ks*4096 + 1024}",
        ]
    def mf(acc, A, B, first):
        c = "0" if first else f"v[{acc}:{acc+15}]"
        return f"v_mfma_f32_32x32x16_bf16 v[{acc}:{acc+15}], v[{A}:{A+3}], v[{B}:{B+3}], {c}"
    for rr in reads(0): a(rr)
    pending = dma_parts(2)
    side = []
    def sd(n):
        for _ in range(n):
            if side: a(side.pop(0))
    sCP, sKQ = 72, 67
    for kap in range(28):
        slab, ks = kap // 4, kap % 4
        f = FR[kap % 2]
        a("s_waitcnt lgkmcnt(0)")
        if ks == 3 and slab < 6:
            n = {0: 18, 1: 6, 2: 6, 3: 4, 4: 6, 5: 0}[slab]
            a(f"s_waitcnt vmcnt({n})")
            a("s_barrier")
            stamp(a, 2 + slab, 1)
            if slab + 3 <= 6: pending = dma_parts(slab + 3)
            if slab == 1: side = list(prep_valu)
            if slab == 2: a(f"ds_read_b128 v[{P+12}:{P+15}], v{P+4}")
        rd = reads(kap+1) if kap < 27 else []
        a(mf(G[0], f+8, f, kap == 0))
        for rr in rd[:3]: a(rr)
        sd(5)
        a(mf(G[1], f+8, f+4, kap == 0))
        for rr in rd[3:]: a(rr)
        sd(5)
        a(mf(U[0], f+12, f, kap == 0))
        if kap == 12:
            a(f"buffer_store_dwordx4 v[{P+12}:{P+15}], v{P+5}, {srd(sWS)}, s70 offen sc1")
            a(f"s_cmp_lg_u32 s{sTT}, 0")
            a("s_cbranch_scc1 L_prep_done")
            a(f"v_cmp_eq_u32 vcc, 7, v{P+3}")
            a("s_and_saveexec_b64 s[58:59], vcc")
            a(f"buffer_store_dwordx4 v[{P+16}:{P+19}], v{P+5}, {srd(sWS)}, s70 offen offset:16 sc1")
            a("s_mov_b64 exec, s[58:59]")
            a.label("L_prep_done")
            a(f"s_lshl_b32 s70, s{sLR}, 10")
            a(f"s_lshl_b32 s71, s{sWV}, 7")
            a(f"s_add_u32 s70, s70, s71")
            a(f"s_lshl_b32 s71, s{sTT}, 2")
            a(f"s_add_u32 s70, s70, s71")
            a(f"s_add_u32 s70, s70, {WS_F1}")
        if kap == 15: wflag(a, 70, P+22, P+23)
        if pending:
            for i in pending.pop(0): a(i)
        if kap == 2:
            for i in prep_loads: a(i)
        sd(7)
        a(mf(U[1], f+12, f+4, kap == 0))
        sd(7)
        if kap == 10: assert not side
        if kap == 20:
            a(f"s_mov_b32 s65, {WS_F2}")
            poll_issue(a, 9, 16, 65)
        if kap == 23:
            poll_check(a, 9, 16, 65)
            a(f"v_lshlrev_b32 v6, 1, v9")
            a(f"s_lshl_b32 s65, s{sI}, 10")
            a(f"s_lshl_b32 s68, s{sTH}, 9")
            a(f"s_add_u32 s65, s65, s68")
            a(f"s_add_u32 s65, s65, {WS_STATS}")
            a(f"buffer_load_dwordx2 v[16:17], v6, {srd(sWS)}, s65 offen sc1")
            a(f"buffer_load_dwordx2 v[18:19], v6, {srd(sWS)}, s65 offen offset:256 sc1")
            a(f"v_lshlrev_b32 v6, 4, v7")
            a(f"s_lshl_b32 s65, s{sJ}, 9")
            a(f"s_lshl_b32 s68, s{sCQ}, 7")
            a(f"s_add_u32 s65, s65, s68")
            a(f"s_add_u32 s65, s65, {WS_CS}")
            a(f"s_add_u32 s68, s65, {F*4}")
            for q in range(4):
                a(f"buffer_load_dwordx4 v[{128+4*q}:{131+4*q}], v6, {srd(sWS)}, s65 offen offset:{32*q} sc1")
            for q in range(4):
                a(f"buffer_load_dwordx4 v[{144+4*q}:{147+4*q}], v6, {srd(sWS)}, s68 offen offset:{32*q} sc1")
            r = Rec()
            r(f"s_mul_i32 s{sCP}, s{sX}, 28")
            r(f"s_add_u32 s{sCP}, s{sCP}, s{sSLOT}")
            r(f"s_sub_u32 s{sCP}, s{sCP}, 4")
            r(f"s_lshr_b32 s70, s{sCP}, 2")
            r(f"s_lshl_b32 s70, s70, 7")
            r(f"s_add_u32 s70, s70, {WS_F1}")
            r(f"buffer_load_dword v20, v9, {srd(sWS)}, s70 offen sc1")
            r(f"s_lshl_b32 s71, s{sCP}, 1")
            r(f"s_add_u32 s71, s71, s{sTH}")
            r(f"s_lshl_b32 s73, s71, 12")
            r(f"s_lshl_b32 s74, s{sKQ}, 2")
            r(f"s_add_u32 s73, s73, s74")
            r(f"s_mul_i32 s74, s71, {RP}")
            r(f"s_add_u32 s74, s74, {WS_R}")
            r(f"s_cmp_eq_u32 s{sKQ}, 2")
            r(f"s_cselect_b32 s75, 2, 0")
            r(f"s_add_u32 s74, s74, s75")
            r(f"s_cmp_lt_u32 s{sKQ}, 2")
            r(f"s_cselect_b32 s76, s{sSK}, s{sWS}")
            r(f"s_cselect_b32 s77, s{sSK+1}, s{sWS+1}")
            r(f"s_cselect_b32 s78, s{sSK+2}, s{sWS+2}")
            r(f"s_mov_b32 s79, 0x20000")
            r(f"s_cselect_b32 s73, s73, s74")
            r(f"s_mov_b32 s74, {CVL + HA}")
            r(f"s_cmp_eq_u32 s{sKQ}, 1\ns_cselect_b32 s74, {CVL + HB}, s74")
            r(f"s_cmp_eq_u32 s{sKQ}, 2\ns_cselect_b32 s74, {CVL + U0}, s74")
            r(f"s_cmp_eq_u32 s{sKQ}, 3\ns_cselect_b32 s74, {CVL + U1}, s74")
            r(f"s_mul_i32 s75, s{sTH}, {CB}")
            r(f"s_add_u32 s74, s74, s75")
            r(f"v_lshlrev_b32 v2, 4, v{vL}")
            r(f"v_lshrrev_b32 v4, 3, v{vL}")
            r(f"v_and_b32 v5, 7, v{vL}")
            r(f"v_bfe_u32 v6, v{vL}, 4, 1")
            r(f"v_lshlrev_b32 v6, 2, v6")
            r(f"v_xor_b32 v5, v5, v6")
            r(f"v_mul_u32_u24 v4, 896, v4")
            r(f"v_lshl_add_u32 v3, v5, 4, v4")
            r(f"s_mul_i32 s{sWo}, s{sKQ}, {448*896}")
            r(f"s_mul_i32 s65, s{sTH}, {112*896}")
            r(f"s_add_u32 s{sWo}, s{sWo}, s65")
            r(f"s_lshl_b32 s65, s{sLR}, 7")
            r(f"s_add_u32 s{sWo}, s{sWo}, s65")
            r(f"s_mul_i32 s{sM}, s{sKQ}, 28672")
            r(f"s_mul_i32 s65, s{sTH}, 14336")
            r(f"s_add_u32 s{sM}, s{sM}, s65")
            for i in range(4): r(f"v_mov_b32 v{24+i}, 0")
            r(f"s_cmp_lt_u32 s{sKQ}, 2")
            r(f"s_cselect_b32 s65, 0, 4352")
            r(f"s_cselect_b32 s68, 16, 28")
            r(f"s_add_u32 s65, s65, s74")
            r(f"s_sub_u32 s65, s65, 256")
            r(f"v_add_u32 v6, s65, v2")
            r(f"v_mov_b32 v8, 0")
            side = r.l
    assert not side
    vH, vW = 2, 3
    stamp(a, 3)
    stamp(a, 8, 1)
    a("s_waitcnt vmcnt(0)")
    a(f"s_cmp_lt_u32 s{sWV}, 4")
    a(f"s_cbranch_scc1 L_polled{POLLN[0]}")
    poll_check(a, 9, 20, 70)
    a("s_barrier")
    stamp(a, 9, 1)
    a(f"s_mov_b32 m0, s74")
    for n in range(4): a(f"buffer_load_dwordx4 v{vH}, s[76:79], s73 offen offset:{1024*n} sc1 lds")
    a(f"s_lshl_b32 s65, s71, 1")
    a(f"buffer_load_ushort v20, v8, {srd(sD)}, s65 offen")
    a(f"s_lshl_b32 s65, s71, 12")
    a(f"buffer_load_dword v21, v8, {srd(sSK)}, s65 offen")
    a(f"v_cmp_gt_u32 vcc, s68, v{vL}")
    a(f"s_and_saveexec_b64 s[58:59], vcc")
    a(f"ds_write_b128 v6, v[24:27]")
    a(f"s_mov_b64 exec, s[58:59]")
    def w2dma(hf):
        out = []
        for n in range(14):
            out.append([f"s_add_u32 m0, s{sM}, {W2L + n*1024}",
                        f"s_add_u32 s65, s{sWo}, {(224*hf + 8*n)*896}",
                        f"buffer_load_dwordx4 v{vW}, {srd(sW2)}, s65 offen lds"])
        return out
    pending = w2dma(0)
    a(f"v_mul_f32 v17, {fh(-1.4426950408889634)}, v17")
    a(f"v_mul_f32 v19, {fh(-1.4426950408889634)}, v19")
    a(f"s_lshl_b32 s70, s{sI}, 2")
    a(f"s_lshl_b32 s75, s{sTH}, 1")
    a(f"s_add_u32 s70, s70, s75")
    a(f"s_mul_i32 s70, s70, 112")
    a(f"s_lshl_b32 s75, s{sJ}, 3")
    a(f"s_add_u32 s70, s70, s75")
    a(f"s_lshl_b32 s75, s{sCQ}, 1")
    a(f"s_add_u32 s70, s70, s75")
    a(f"s_lshl_b32 s70, s70, 10")
    a(f"s_add_u32 s70, s70, {WS_H}")
    a(f"s_add_u32 s75, s70, {112*1024}")
    def pend(n=1):
        for _ in range(n):
            if pending:
                for i in pending.pop(0): a(i)
    for tt in range(2):
        m, nrs = 16 + 2*tt, 17 + 2*tt
        for kp in range(2):
            T = 32 + 16*((2*tt + kp) % 2)
            for e8 in range(8):
                e = 8*kp + e8
                g, u = G[tt] + e, U[tt] + e
                a(f"v_fma_f32 v{g}, -v{m}, v{128+e}, v{g}")
                a(f"v_fma_f32 v{u}, -v{m}, v{144+e}, v{u}")
                a(f"v_mul_f32 v{T+e8}, v{nrs}, v{g}")
                if e8 % 4 == 3: pend()
            for e8 in range(8):
                a(f"v_exp_f32 v{T+e8}, v{T+e8}")
                if e8 % 4 == 3: pend()
            for e8 in range(8):
                e = 8*kp + e8
                a(f"v_add_f32 v{T+e8}, 1.0, v{T+e8}")
                a(f"v_mul_f32 v{G[tt]+e}, v{G[tt]+e}, v{U[tt]+e}")
            pend()
            for e8 in range(8):
                a(f"v_rcp_f32 v{T+e8}, v{T+e8}")
                if e8 % 4 == 3: pend()
            for e8 in range(8):
                e = 8*kp + e8
                a(f"v_mul_f32 v{G[tt]+e}, v{G[tt]+e}, v{T+e8}")
            for p in range(4):
                e = 8*kp + 2*p
                a(f"v_cvt_pk_bf16_f32 v{T+8+p}, v{G[tt]+e}, v{G[tt]+e+1}")
            a(f"buffer_store_dwordx4 v[{T+8}:{T+11}], v{vH}, {srd(sWS)}, s{70 if tt == 0 else 75} offen offset:{1024*kp} {HST}")
        if tt == 0: assert not pending
    a(f"s_cmp_ge_u32 s{sKQ}, 2")
    a(f"s_cbranch_scc1 L_cv_nofix")
    a(f"s_lshl_b32 s65, s{sKQ}, 2")
    a(f"s_sub_u32 s65, s74, s65")
    a(f"s_sub_u32 s65, s65, 192")
    a(f"v_mov_b32 v6, s65")
    a(f"s_waitcnt vmcnt(18)")
    a(f"ds_write_b32 v6, v20")
    a(f"s_cmp_eq_u32 s{sKQ}, 0")
    a(f"s_cbranch_scc1 L_cv_nofix")
    a(f"ds_write_b32 v6, v21 offset:192")
    a.label("L_cv_nofix")
    vT = [4, 5]
    a(f"v_bfe_u32 v6, v{vL}, 2, 2")
    a(f"v_lshl_add_u32 v8, v7, 2, v6")
    a(f"v_lshlrev_b32 v8, 7, v8")
    a(f"v_bfe_u32 v9, v{vL}, 4, 1")
    a(f"v_lshl_add_u32 v8, v9, 5, v8")
    a(f"v_and_b32 v9, 3, v{vL}")
    a(f"v_lshl_add_u32 v8, v9, 3, v8")
    a(f"s_mul_i32 s65, s{sKQ}, 28672")
    a(f"v_add_u32 v8, s65, v8")
    a(f"v_lshrrev_b32 v6, 1, v6")
    a(f"v_lshl_add_u32 v{vT[0]}, v6, 6, v8")
    a(f"v_xor_b32 v6, 1, v6")
    a(f"v_lshl_add_u32 v{vT[1]}, v6, 6, v8")
    a(f"s_lshl_b32 s65, s{sI}, 1")
    a(f"s_add_u32 s65, s65, s{sTH}")
    a(f"s_lshl_b32 s65, s65, 8")
    a(f"s_lshl_b32 s68, s{sJ}, 4")
    a(f"s_add_u32 s68, s68, s65")
    a(f"s_lshl_b32 s65, s{sCQ}, 2")
    a(f"s_add_u32 s68, s68, s65")
    a(f"s_add_u32 s68, s68, {WS_F3}")
    stamp(a, 4)
    a("s_waitcnt vmcnt(3) lgkmcnt(0)")
    a("s_barrier")
    stamp(a, 5)
    WR = 144
    def w2reads(k, f):
        o = W2L + k*2048
        return [f"ds_read_b64_tr_b16 v[{f+4*ct+2*z}:{f+4*ct+2*z+1}], v{vT[ct]} offset:{o + 1024*z}" for ct in range(2) for z in range(2)]
    for k in range(14):
        for rr in w2reads(k, WR + 8*k): a(rr)
    sHo = 62
    a(f"s_lshl_b32 s{sHo}, s{sTT}, 1")
    a(f"s_add_u32 s{sHo}, s{sHo}, s{sTH}")
    a(f"s_mul_i32 s{sHo}, s{sHo}, 112")
    a(f"s_mul_i32 s65, s{sKQ}, 28")
    a(f"s_add_u32 s{sHo}, s{sHo}, s65")
    a(f"s_lshl_b32 s{sHo}, s{sHo}, 10")
    a(f"s_add_u32 s{sHo}, s{sHo}, {WS_H}")
    a("s_waitcnt vmcnt(0)")
    wflag(a, 68, 8, 9)
    a(f"s_lshl_b32 s68, s{sTT}, 8")
    a(f"s_mul_i32 s65, s{sKQ}, 56")
    a(f"s_add_u32 s68, s68, s65")
    a(f"s_add_u32 s68, s68, {WS_F3}")
    a(f"v_min_u32 v10, 13, v{vL}")
    a(f"v_lshlrev_b32 v10, 2, v10")
    a("s_waitcnt lgkmcnt(0)")
    a("s_barrier")
    for p in w2dma(1):
        for i in p: a(i)
    HRN = 24; HR = 48; ACC2 = [16, 32]
    def hload(ks):
        rg = HR + 4*(ks % HRN)
        out = []
        if ks % 4 == 0 and ks > 0: out.append(f"s_add_u32 s{sHo}, s{sHo}, 4096")
        out.append(f"buffer_load_dwordx4 v[{rg}:{rg+3}], v{vH}, {srd(sWS)}, s{sHo} offen offset:{1024*(ks%4)} {HLD}")
        return out
    a(f"s_cmp_lt_u32 s{sWV}, 4")
    a(f"s_cbranch_scc1 L_conv")
    poll(a, 10, 11, 68)
    stamp(a, 6)
    for ks in range(HRN):
        for i in hload(ks): a(i)
    a("s_barrier")
    a("s_barrier")
    stamp(a, 7)
    a("s_branch L_gemm2")
    a.label("L_conv")
    vA, vB, vDl = 8, 9, 11
    a(f"s_mul_i32 s71, s{sTH}, {CB}")
    a(f"s_add_u32 s71, s71, {CVL}")
    a(f"v_and_b32 v12, 15, v{vL}")
    a(f"v_lshrrev_b32 v13, 4, v{vL}")
    a(f"v_and_b32 v14, 1, v12")
    a(f"v_mov_b32 v15, {HB - 4 - 60 - 192}")
    a(f"v_mov_b32 v16, {HA - 60 - 192}")
    a(f"v_cmp_eq_u32 vcc, 1, v14")
    a(f"v_cndmask_b32 v15, v15, v16, vcc")
    a(f"v_lshl_add_u32 v15, v12, 2, v15")
    a(f"v_lshl_add_u32 v15, v13, 4, v15")
    a(f"v_add_u32 v15, s71, v15")
    a(f"s_lshl_b32 s73, s{sKQ}, 8")
    a(f"v_add_u32 v{vA}, s73, v15")
    a(f"s_add_u32 s74, s71, {U0 + 4096}")
    a(f"v_mov_b32 v16, s74")
    a(f"s_cmp_eq_u32 s{sKQ}, 0")
    a(f"s_cselect_b64 vcc, -1, 0")
    a(f"v_cndmask_b32 v{vDl}, v16, v15, vcc")
    a(f"v_mov_b32 v15, {U0 + 448}")
    a(f"v_mov_b32 v16, {U1 + 448}")
    a(f"v_cmp_eq_u32 vcc, 1, v14")
    a(f"v_cndmask_b32 v15, v15, v16, vcc")
    a(f"v_lshrrev_b32 v16, 1, v12")
    a(f"v_lshlrev_b32 v16, 6, v16")
    a(f"v_sub_u32 v15, v15, v16")
    a(f"v_lshl_add_u32 v15, v13, 4, v15")
    a(f"s_add_u32 s73, s73, s71")
    a(f"v_add_u32 v{vB}, s73, v15")
    ACC = 16; HI = 48; LOW = [80, 112]; DL = 12
    def Areg(p, it): return (LOW[it % 2] + 4*p) if p < 4 else (HI + 4*(p-4))
    def Breg(q, it): return (LOW[it % 2] + 16 + 4*q) if q < 4 else (HI + 16 + 4*(q-4))
    def rdA(p, it):
        rg = Areg(p, it); o = 192 + 512*p + 64*it
        return [f"ds_read_b64 v[{rg}:{rg+1}], v{vA} offset:{o}", f"ds_read_b64 v[{rg+2}:{rg+3}], v{vA} offset:{o+8}"]
    def rdB(q, it):
        rg = Breg(q, it); o = 3584 - 512*q + 64*it
        return [f"ds_read_b128 v[{rg}:{rg+3}], v{vB} offset:{o}"]
    def cmf(T, A, B, first=False):
        c = "0" if first else f"v[{ACC+4*T}:{ACC+4*T+3}]"
        return f"v_mfma_f32_16x16x32_bf16 v[{ACC+4*T}:{ACC+4*T+3}], v[{A}:{A+3}], v[{B}:{B+3}], {c}"
    a(f"ds_read_b64 v[{DL}:{DL+1}], v{vDl}")
    a(f"ds_read_b64 v[{DL+2}:{DL+3}], v{vDl} offset:8")
    for p in range(4):
        for rr in rdA(p, 0) + rdB(p, 0): a(rr)
    for it in range(4):
        a("s_waitcnt lgkmcnt(0)")
        rd = []
        for p in range(4, 8): rd += rdA(p, it) + rdB(p, it)
        ms = []
        if it == 0: ms += [cmf(T, DL, Breg(T, 0), True) for T in range(4)]
        seen = set(range(4)) if it == 0 else set(range(8))
        for p in range(4):
            for q in range(4):
                T = p + q
                ms.append(cmf(T, Areg(p, it), Breg(q, it), T not in seen)); seen.add(T)
        for k, m in enumerate(ms):
            a(m)
            if k < len(rd): a(rd[k])
        a("s_waitcnt lgkmcnt(0)")
        if it == 3: poll_issue(a, 10, 11, 68)
        rd = []
        if it < 3:
            for p in range(4): rd += rdA(p, it+1) + rdB(p, it+1)
        ms = []
        for hp in range(4, 8):
            for l in range(0, 8 - hp):
                T = hp + l
                ms.append(cmf(T, Areg(hp, it), Breg(l, it), T not in seen)); seen.add(T)
                ms.append(cmf(T, Areg(l, it), Breg(hp, it)))
        if it == 0: ms += [cmf(T, DL, Breg(T, 0)) for T in range(4, 8)]
        if it == 3: a("s_barrier")
        for k, m in enumerate(ms):
            a(m)
            if k < len(rd): a(rd[k])
    stamp(a, 6)
    a(f"s_lshl_b32 s73, s{sWV}, 13")
    a(f"s_add_u32 s73, s73, {CVL}")
    a(f"v_add_u32 v8, s73, v{vH}")
    for T in range(8): a(f"ds_write_b128 v8, v[{ACC+4*T}:{ACC+4*T+3}] offset:{1024*T}")
    a(f"s_lshl_b32 s73, s{sWV}, 11")
    a(f"s_add_u32 s73, s73, {CVL}")
    a(f"v_add_u32 v8, s73, v{vH}")
    a(f"v_and_b32 v12, 15, v{vL}")
    a(f"v_lshrrev_b32 v13, 4, v{vL}")
    a(f"v_lshrrev_b32 v9, 1, v12")
    a(f"v_and_b32 v12, 1, v12")
    a(f"v_lshlrev_b32 v9, 7, v9")
    a(f"v_lshl_add_u32 v9, v13, 5, v9")
    a(f"v_lshl_add_u32 v9, v12, 4, v9")
    a(f"s_lshl_b32 s73, s{sCP}, 13")
    a(f"s_lshl_b32 s74, s{sWV}, 11")
    a(f"s_add_u32 s73, s73, s74")
    a(f"s_add_u32 s73, s73, {WS_Y}")
    a("s_waitcnt vmcnt(0) lgkmcnt(0)")
    a("s_barrier")
    for t2 in range(2):
        for w in range(4): a(f"ds_read_b128 v[{16+16*t2+4*w}:{19+16*t2+4*w}], v8 offset:{8192*w + 1024*t2}")
    a(f"s_lshr_b32 s74, s{sCP}, 5")
    a(f"s_lshl_b32 s74, s74, 9")
    a(f"s_lshl_b32 s75, s{sWV}, 7")
    a(f"s_add_u32 s74, s74, s75")
    a(f"s_and_b32 s75, s{sCP}, 31")
    a(f"s_lshl_b32 s75, s75, 2")
    a(f"s_add_u32 s74, s74, s75")
    a(f"s_add_u32 s74, s74, {WS_F4}")
    for t2 in range(2):
        b = 16 + 16*t2
        a(f"s_waitcnt lgkmcnt({4*(1-t2)})")
        for rr in range(4):
            a(f"v_add_f32 v{b+rr}, v{b+rr}, v{b+8+rr}")
            a(f"v_add_f32 v{b+4+rr}, v{b+4+rr}, v{b+12+rr}")
        for rr in range(4): a(f"v_cvt_pk_bf16_f32 v{b+8+rr}, v{b+rr}, v{b+4+rr}")
        a(f"buffer_store_dwordx4 v[{b+8}:{b+11}], v9, {srd(sWS)}, s73 offen offset:{1024*t2} sc1")
    poll_check(a, 10, 11, 68)
    for ks in range(HRN):
        for i in hload(ks): a(i)
    a(f"s_waitcnt vmcnt({HRN})")
    wflag(a, 74, 8, 9)
    stamp(a, 7)
    a.label("L_gemm2")
    issued = [f'h{k}' for k in range(HRN)]
    def wait_for(tag):
        idx = max(i for i, t in enumerate(issued) if t == tag)
        a(f"s_waitcnt vmcnt({len(issued) - 1 - idx})")
    def g2mf(ks, f):
        rg = HR + 4*(ks % HRN)
        for ct in range(2):
            c = "0" if ks == 0 else f"v[{ACC2[ct]}:{ACC2[ct]+15}]"
            a(f"v_mfma_f32_32x32x16_bf16 v[{ACC2[ct]}:{ACC2[ct]+15}], v[{f+4*ct}:{f+4*ct+3}], v[{rg}:{rg+3}], {c}")
    E0 = 64
    for ks in range(14):
        wait_for(f'h{ks}')
        g2mf(ks, WR + 8*ks)
        if ks >= 2:
            for rr in w2reads(ks-2, WR + 8*(ks-2)): a(rr)
        if 1 <= ks <= 4:
            for i in hload(HRN + ks - 1): a(i)
            issued.append(f'h{HRN + ks - 1}')
        if ks == 12:
            a(f"v_and_b32 v6, 31, v{vL}")
            a(f"s_lshl_b32 s65, s{sTT}, 6")
            a(f"s_lshl_b32 s71, s{sTH}, 5")
            a(f"s_add_u32 s65, s65, s71")
            a(f"v_add_u32 v6, s65, v6")
            a(f"v_lshlrev_b32 v8, 3, v6")
            a(f"s_mov_b32 s71, {WS_STATS}")
            a(f"buffer_load_dwordx2 v[{E0}:{E0+1}], v8, {srd(sWS)}, s71 offen sc1")
            a(f"v_mul_u32_u24 v8, 896, v6")
            a(f"v_lshl_add_u32 v8, v7, 4, v8")
            a(f"s_lshl_b32 s71, s{sLR}, 7")
            a(f"s_lshl_b32 s73, s{sKQ}, 5")
            a(f"s_add_u32 s71, s71, s73")
            a(f"buffer_load_dwordx4 v[{E0+4}:{E0+7}], v8, {srd(sQ)}, s71 offen")
            issued += ['e0', 'e1']
            a(f"v_and_b32 v9, 0x7f8, v6")
            a(f"v_and_b32 v10, 1, v6")
            a(f"v_lshl_add_u32 v9, v10, 2, v9")
            a(f"v_bfe_u32 v10, v6, 1, 2")
            a(f"v_add_u32 v9, v9, v10")
            a(f"v_lshlrev_b32 v9, 2, v9")
            a(f"v_lshl_add_u32 v9, v7, 15, v9")
            a(f"s_lshl_b32 s73, s{sLR}, 5")
            a(f"s_lshl_b32 s74, s{sKQ}, 3")
            a(f"s_add_u32 s73, s73, s74")
            a(f"s_lshl_b32 s73, s73, 13")
            a(f"s_add_u32 s73, s73, {WS_Y}")
            a(f"s_lshl_b32 s75, s{sLR}, 9")
            a(f"s_lshr_b32 s76, s{sTT}, 3")
            a(f"s_lshl_b32 s76, s76, 7")
            a(f"s_add_u32 s75, s75, s76")
            a(f"s_lshl_b32 s76, s{sKQ}, 5")
            a(f"s_add_u32 s75, s75, s76")
            a(f"s_add_u32 s75, s75, {WS_F4}")
            a(f"v_and_b32 v11, 7, v{vL}")
            a(f"v_lshlrev_b32 v11, 2, v11")
    for k in (12, 13):
        for rr in w2reads(k, WR + 8*k): a(rr)
    for ks in range(14, 28):
        k = ks - 14
        a(f"s_waitcnt lgkmcnt({min(15, 4*(13 - k))})")
        wait_for(f'h{ks}')
        g2mf(ks, WR + 8*k)
        if ks == 22:
            poll_issue(a, 11, 12, 75); issued.append('p4')
    stamp(a, 8)
    a(f"s_lshl_b32 s76, s{sTH}, 15")
    a(f"s_lshl_b32 s77, s{sKQ}, 11")
    a(f"s_add_u32 s76, s76, s77")
    a(f"v_add_u32 v10, s76, v{vH}")
    a("s_waitcnt vmcnt(0)")
    poll_check(a, 11, 12, 75)
    for p in range(4):
        a(f"buffer_load_dword v{E0+8+p}, v9, {srd(sWS)}, s73 offen sc1")
        a(f"s_add_u32 s73, s73, 8192")
    stamp(a, 9)
    a("s_barrier")
    for dk in range(4):
        base = ACC2[dk >> 1] + 8*(dk & 1)
        a(f"ds_write_b128 v10, v[{base}:{base+3}] offset:{8192*dk}")
        a(f"ds_write_b128 v10, v[{base+4}:{base+7}] offset:{8192*dk + 1024}")
    a(f"s_lshl_b32 s76, s{sTH}, 15")
    a(f"s_lshl_b32 s77, s{sKQ}, 13")
    a(f"s_add_u32 s76, s76, s77")
    a(f"v_add_u32 v10, s76, v{vH}")
    a(f"v_mul_f32 v{E0+2}, v{E0+1}, v{E0+1}")
    for p in range(4):
        lo(a, E0+16+2*p, E0+4+p); hi(a, E0+17+2*p, E0+4+p)
    for e in range(8):
        a(f"v_sub_f32 v{E0+32+e}, v{E0+16+e}, v{E0}")
        a(f"v_mul_f32 v{E0+32+e}, v{E0+32+e}, v{E0+1}")
    a("s_waitcnt lgkmcnt(0)")
    a("s_barrier")
    for sk in range(4):
        a(f"ds_read_b128 v[{16+8*sk}:{19+8*sk}], v10 offset:{2048*sk}")
        a(f"ds_read_b128 v[{20+8*sk}:{23+8*sk}], v10 offset:{2048*sk + 1024}")
    a("s_waitcnt vmcnt(0)")
    for p in range(4):
        lo(a, E0+24+2*p, E0+8+p); hi(a, E0+25+2*p, E0+8+p)
    for e in range(8): a(f"v_fmac_f32 v{E0+16+e}, v{E0+32+e}, v{E0+24+e}")
    a("s_waitcnt lgkmcnt(0)")
    for e in range(8):
        a(f"v_add_f32 v{16+e}, v{16+e}, v{24+e}")
        a(f"v_add_f32 v{32+e}, v{32+e}, v{40+e}")
    for e in range(8): a(f"v_add_f32 v{16+e}, v{16+e}, v{32+e}")
    for rr in range(4): a(f"v_permlane32_swap_b32 v{16+rr}, v{20+rr}")
    for e in range(8): a(f"v_fmac_f32 v{E0+16+e}, v{E0+2}, v{16+e}")
    for p in range(4): a(f"v_cvt_pk_bf16_f32 v{E0+40+p}, v{E0+16+2*p}, v{E0+17+2*p}")
    a(f"buffer_store_dwordx4 v[{E0+40}:{E0+43}], v8, {srd(sO)}, s71 offen")

a = Asm()
stamp(a, 0)
prologue(a)
a(f"s_cmp_lt_u32 s{sSLOT}, 4")
a("s_cbranch_scc1 L_spare")
main(a)
a("s_branch L_fin")
a.label("L_spare")
spare(a)
a.label("L_fin")
stamp_flush(a)
a.label("L_end")
a("s_endpgm")
kn = NAME + "_kernel"
hdr = open("cdna_kernels/%s.s.ref" % NAME).read().split("; Override launch")[0]
out = hdr + f"; @launch grid=(256,1,1) block=(512,1,1) lds={LDS_BYTES}\n"
out += '.amdgcn_target "amdgcn-amd-amdhsa--gfx950"\n.text\n'
out += f".globl {kn}\n.p2align 8\n.type {kn},@function\n{kn}:\n" + a.finalize()
out += f""".section .rodata,"a"
.p2align 6
.amdhsa_kernel {kn}
  .amdhsa_next_free_vgpr 256
  .amdhsa_next_free_sgpr 102
  .amdhsa_accum_offset 256
  .amdhsa_group_segment_fixed_size 0
  .amdhsa_kernarg_size 104
  .amdhsa_user_sgpr_count 2
  .amdhsa_user_sgpr_kernarg_segment_ptr 1
  .amdhsa_system_sgpr_workgroup_id_x 1
  .amdhsa_float_denorm_mode_32 3
.end_amdhsa_kernel
"""
dst = sys.argv[1] if len(sys.argv) > 1 and not sys.argv[1].startswith("--") else "cdna_kernels/%s.s" % NAME
open(dst, "w").write(out)
print("wrote", dst, len(out))
```

```python
import sys, struct
from asmdsl import Asm

NAME = "parallel_sum__ssm_conv_h3__glu_gated_swiglu__prompt"
S, D, F = 2048, 448, 1792
WS_F1, WS_F2, WS_F3, WS_F4 = 0x1000, 0x3000, 0x4000, 0x6000
WS_STATS = 0x10000
WS_CS    = 0x14000
WS_R     = 0x20000
RP       = 4224
WS_Y     = 0x200000
WS_H     = 0x400000
WS_BYTES = 0x1000000
WS_DBG   = 0xF00000
STAMP = "--stamp" in sys.argv
CLK = "s_memtime" if "--cyc" in sys.argv else "s_memrealtime"

sQ, sK, sV, sSH, sSK, sD, sW1, sW3, sW2, sO, sWS, sDBG = 4, 8, 12, 16, 20, 24, 28, 32, 36, 40, 44, 48
def srd(b): return f"s[{b}:{b+3}]"
SRD_INFO = {
    'ws': (sWS, 96, WS_BYTES),
    'k': (sK, 8, S*D*2), 'v': (sV, 16, S*D*2), 'sh': (sSH, 24, D*8), 'q': (sQ, 0, S*D*2),
    'w1': (sW1, 56, D*F*2), 'w3': (sW3, 64, D*F*2),
    'sk': (sSK, 32, D*S*2), 'd': (sD, 40, D*2),
    'w2': (sW2, 72, D*F*2), 'o': (sO, 80, S*D*2),
}
sX, sLQ, sLR, sWV, sSLOT, sE = 52, 53, 54, 55, 56, 57
def fh(f): return "0x%08x" % struct.unpack("<I", struct.pack("<f", f))[0]
def lo(a, d, s): a(f"v_lshlrev_b32 v{d}, 16, v{s}")
def hi(a, d, s): a(f"v_and_b32 v{d}, 0xffff0000, v{s}")
NST = 11
HLD = "sc1"; HST = "sc1"
for x in sys.argv:
    if x.startswith("--hld="): HLD = x[6:].replace("_", " ")
    if x.startswith("--hst="): HST = x[6:].replace("_", " ")
SMODE = 1 if "--g1" in sys.argv else 0
def stamp(a, idx, mode=0):
    if STAMP and (mode == SMODE or idx in (0, NST-1)): a(f"{CLK} s[{80+2*idx}:{81+2*idx}]")
def stamp_flush(a):
    if not STAMP: return
    a("s_waitcnt vmcnt(0) lgkmcnt(0)")
    stamp(a, NST-1)
    a(f"s_and_b32 s60, s{sWV}, 3")
    a(f"s_cmp_lg_u32 s60, 0")
    a(f"s_cbranch_scc1 L_end")
    a("s_waitcnt lgkmcnt(0)")
    a(f"s_lshl_b32 s60, s2, 7")
    a(f"s_lshl_b32 s61, s{sWV}, 13")
    a(f"s_add_u32 s60, s60, s61")
    a(f"s_add_u32 s60, s60, {WS_DBG}")
    a("v_mov_b32 v0, 0")
    if "--dbg" in sys.argv:
        a("s_cmp_lg_u32 s2, 100")
        a("s_cbranch_scc1 L_end")
        a(f"s_cmp_lg_u32 s{sWV}, 0")
        a("s_cbranch_scc1 L_end")
        a("s_load_dwordx2 s[48:49], s[0:1], 88")
        a("s_mov_b32 s50, 256\ns_mov_b32 s51, 0x20000")
        a("s_waitcnt lgkmcnt(0)")
        for i in range(NST):
            a(f"s_sub_u32 s60, s{80+2*i}, s80")
            a(f"v_mov_b32 v2, s60")
            a(f"buffer_store_dword v2, v0, s[48:51], 0 offen offset:{4*i}")
        return
    for i in range(NST):
        a(f"v_mov_b32 v2, s{80+2*i}")
        a(f"v_mov_b32 v3, s{81+2*i}")
        a(f"buffer_store_dwordx2 v[2:3], v0, {srd(sWS)}, s60 offen offset:{8*i}")

POLLN = [0]
def poll(a, vaddr, vtmp, soff):
    n = POLLN[0]; POLLN[0] += 1
    a(f"s_mov_b32 s58, 0")
    a.label(f"L_poll{n}")
    a(f"buffer_load_dword v{vtmp}, v{vaddr}, {srd(sWS)}, s{soff} offen sc1")
    a(f"s_waitcnt vmcnt(0)")
    a(f"v_cmp_ne_u32 vcc, s{sE}, v{vtmp}")
    a(f"s_cbranch_vccz L_polled{n}")
    a(f"s_add_u32 s58, s58, 1")
    a(f"s_cmp_lt_u32 s58, 0x40000")
    a(f"s_cbranch_scc0 L_polled{n}")
    a(f"s_sleep 2")
    a(f"s_branch L_poll{n}")
    a.label(f"L_polled{n}")

def flag(a, soff, tag, v0=2, v1=3):
    a(f"s_cmp_lg_u32 s{sWV}, 0")
    a(f"s_cbranch_scc1 L_flag_{tag}")
    a(f"v_mov_b32 v{v0}, 0")
    a(f"v_mov_b32 v{v1}, s{sE}")
    a(f"s_mov_b64 exec, 1")
    a(f"buffer_store_dword v{v1}, v{v0}, {srd(sWS)}, s{soff} offen sc1")
    a(f"s_mov_b64 exec, -1")
    a.label(f"L_flag_{tag}")

def prologue(a):
    a(f"s_cmp_ge_u32 s2, 256")
    a(f"s_cbranch_scc1 L_end")
    for n, (r, off, sz) in SRD_INFO.items():
        a(f"s_load_dwordx2 s[{r}:{r+1}], s[0:1], {off}")
    for n, (r, off, sz) in SRD_INFO.items():
        a(f"s_mov_b32 s{r+2}, {sz}")
        a(f"s_mov_b32 s{r+3}, 0x20000")
    a(f"s_and_b32 s{sX}, s2, 7")
    a(f"s_lshr_b32 s{sSLOT}, s2, 3")
    a(f"v_lshrrev_b32 v1, 6, v0")
    a(f"v_readfirstlane_b32 s{sWV}, v1")
    a(f"s_sub_u32 s{sLR}, s{sSLOT}, 4")
    a(f"s_mul_i32 s{sLQ}, s{sLR}, 37")
    a(f"s_lshr_b32 s{sLQ}, s{sLQ}, 8")
    a(f"s_mul_i32 s58, s{sLQ}, 7")
    a(f"s_sub_u32 s{sLR}, s{sLR}, s58")
def kernarg_wait(a):
    a(f"s_waitcnt lgkmcnt(0)")
    a(f"s_load_dword s{sE}, s[{sWS}:{sWS+1}], 0")

def epoch_hash(a):
    a(f"s_waitcnt lgkmcnt(0)")
    a(f"s_mul_i32 s{sE}, s{sE}, 0x9E3779B1")
    a(f"s_add_u32 s{sE}, s{sE}, 0x7F4A7C15")

def round_bf16(a, v):
    a(f"v_cvt_pk_bf16_f32 v{v}, v{v}, v{v}")
    a(f"v_lshlrev_b32 v{v}, 16, v{v}")

def spare(a):
    kernarg_wait(a)
    a(f"s_lshl_b32 s60, s{sX}, 2")
    a(f"s_add_u32 s60, s60, s{sSLOT}")
    a("v_lshrrev_b32 v2, 3, v0")
    a("v_and_b32 v3, 7, v0")
    a("v_mul_u32_u24 v4, 896, v2")
    a("v_lshl_add_u32 v4, v3, 4, v4")
    a(f"s_mul_i32 s61, s60, {64*896}")
    for n in range(7): a(f"buffer_load_dwordx4 v[{8+4*n}:{11+4*n}], v4, {srd(sQ)}, s61 offen offset:{128*n}")
    a(f"s_lshr_b32 s62, s{sX}, 1")
    a(f"s_lshl_b32 s62, s62, 2")
    a(f"s_add_u32 s62, s62, s{sSLOT}")
    a(f"s_min_u32 s62, s62, 13")
    a(f"s_cmp_ge_u32 s62, 7")
    a(f"s_cselect_b32 s64, s{sW3}, s{sW1}")
    a(f"s_cselect_b32 s65, s{sW3+1}, s{sW1+1}")
    a(f"s_cselect_b32 s63, 7, 0")
    a(f"s_cselect_b32 s68, {F*4}, 0")
    a(f"s_mov_b32 s66, {D*F*2}")
    a(f"s_mov_b32 s67, 0x20000")
    a(f"s_sub_u32 s63, s62, s63")
    a(f"s_and_b32 s69, s{sX}, 1")
    a(f"s_mul_i32 s69, s69, 7")
    a(f"s_add_u32 s63, s63, s69")
    a("v_and_b32 v5, 63, v0")
    a("v_lshrrev_b32 v6, 4, v5")
    a("v_and_b32 v5, 15, v5")
    a(f"v_mul_u32_u24 v7, 3584, v6")
    a("v_lshl_add_u32 v7, v5, 4, v7")
    a(f"s_mul_i32 s69, s{sWV}, {56*3584}")
    a(f"s_lshl_b32 s70, s63, 8")
    a(f"s_add_u32 s69, s69, s70")
    for n in range(14):
        a(f"buffer_load_dwordx4 v[{64+4*n}:{67+4*n}], v7, s[64:67], s69 offen")
        a(f"s_add_u32 s69, s69, {4*3584}")
    a("v_lshrrev_b32 v44, 1, v5")
    a("v_and_b32 v45, 1, v5")
    a("v_lshlrev_b32 v45, 4, v45")
    a("v_mov_b32 v46, 0x3f80")
    a("v_lshlrev_b32 v46, v45, v46")
    for dw in range(4):
        a(f"v_cmp_eq_u32 vcc, {dw}, v44")
        a(f"v_cndmask_b32 v{48+dw}, 0, v46, vcc")
    epoch_hash(a)
    a("v_mov_b32 v40, 0\nv_mov_b32 v41, 0\nv_mov_b32 v42, 0\nv_mov_b32 v43, 0")
    a("s_mov_b32 s70, 0x3f803f80")
    a("s_waitcnt vmcnt(14)")
    stamp(a, 2)
    for n in range(28):
        a(f"v_dot2_f32_bf16 v{40+2*(n%2)}, v{8+n}, s70, v{40+2*(n%2)}")
        a(f"v_dot2_f32_bf16 v{41+2*(n%2)}, v{8+n}, v{8+n}, v{41+2*(n%2)}")
    a("v_add_f32 v40, v40, v42")
    a("v_add_f32 v41, v41, v43")
    for m in ("quad_perm:[1,0,3,2]", "quad_perm:[2,3,0,1]", "row_half_mirror"):
        a(f"v_add_f32_dpp v40, v40, v40 {m} row_mask:0xf bank_mask:0xf")
        a(f"v_add_f32_dpp v41, v41, v41 {m} row_mask:0xf bank_mask:0xf")
    a(f"v_mul_f32 v40, {fh(1.0/448)}, v40")
    a(f"v_mul_f32 v41, {fh(1.0/448)}, v41")
    a("v_fma_f32 v41, -v40, v40, v41")
    a("v_max_f32 v41, 0, v41")
    round_bf16(a, 40)
    round_bf16(a, 41)
    a(f"v_add_f32 v41, {fh(1e-5)}, v41")
    round_bf16(a, 41)
    a("v_sqrt_f32 v41, v41")
    round_bf16(a, 41)
    a("v_rcp_f32 v41, v41")
    a("v_lshlrev_b32 v4, 3, v2")
    a(f"s_lshl_b32 s61, s60, 9")
    a(f"s_add_u32 s61, s61, {WS_STATS}")
    a("v_cmp_eq_u32 vcc, 0, v3")
    a("s_and_saveexec_b64 s[72:73], vcc")
    a(f"buffer_store_dwordx2 v[40:41], v4, {srd(sWS)}, s61 offen sc1")
    a("s_mov_b64 exec, s[72:73]")
    stamp(a, 3)
    for n in range(14):
        a(f"s_waitcnt vmcnt({14-n})")
        c = "0" if n == 0 else "v[52:55]"
        a(f"v_mfma_f32_16x16x32_bf16 v[52:55], v[48:51], v[{64+4*n}:{67+4*n}], {c}")
    stamp(a, 4)
    a("v_lshlrev_b32 v4, 5, v5")
    a("v_lshl_add_u32 v4, v6, 4, v4")
    a(f"s_lshl_b32 s61, s{sWV}, 9")
    a("v_add_u32 v4, s61, v4")
    a("v_cmp_gt_u32 vcc, 2, v6")
    a("s_and_saveexec_b64 s[72:73], vcc")
    a("ds_write_b128 v4, v[52:55]")
    a("s_mov_b64 exec, s[72:73]")
    a("s_waitcnt vmcnt(0) lgkmcnt(0)")
    a("s_barrier")
    stamp(a, 5)
    a(f"s_cmp_lg_u32 s{sWV}, 0")
    a("s_cbranch_scc1 L_sp_pf0")
    a("v_lshlrev_b32 v4, 3, v0")
    for p in range(8): a(f"ds_read_b64 v[{64+2*p}:{65+2*p}], v4 offset:{512*p}")
    a("s_waitcnt lgkmcnt(0)")
    for st in (4, 2, 1):
        for p in range(st):
            a(f"v_add_f32 v{64+2*p}, v{64+2*p}, v{64+2*(p+st)}")
            a(f"v_add_f32 v{65+2*p}, v{65+2*p}, v{65+2*(p+st)}")
    a(f"s_lshl_b32 s61, s63, 9")
    a(f"s_add_u32 s61, s61, s68")
    a(f"s_add_u32 s61, s61, {WS_CS}")
    a(f"buffer_store_dwordx2 v[64:65], v4, {srd(sWS)}, s61 offen sc1")
    a(f"s_lshl_b32 s61, s60, 2")
    a(f"s_add_u32 s61, s61, {WS_F2}")
    a("s_waitcnt vmcnt(0)")
    stamp(a, 6)
    flag(a, 61, 'f2')
    a.label("L_sp_pf0")
    a("s_barrier")
    a(f"s_cmp_lg_u32 s{sWV}, 0")
    a("s_cbranch_scc1 L_sp_pf")
    a(f"s_cmp_lg_u32 s60, 0")
    a(f"s_cbranch_scc1 L_sp_pf")
    a(f"v_and_b32 v4, 31, v0")
    a(f"v_lshlrev_b32 v4, 2, v4")
    a(f"s_mov_b32 s61, {WS_F2}")
    poll(a, 4, 5, 61)
    for gg in range(7):
        a(f"s_mov_b32 s61, {WS_F1 + 1024*gg}")
        poll(a, 4, 5, 61)
    a(f"s_mov_b32 s61, 0")
    flag(a, 61, 'ep')
    a("s_branch L_fin")
    a.label("L_sp_pf")
    a(f"v_and_b32 v4, 63, v0")
    a(f"v_lshlrev_b32 v4, 7, v4")
    a(f"s_lshl_b32 s61, s{sSLOT}, 3")
    a(f"s_add_u32 s61, s61, s{sWV}")
    a(f"s_mul_i32 s62, s61, {7*8192}")
    for n in range(7):
        a(f"buffer_load_dword v{8+n}, v4, {srd(sW2)}, s62 offen")
        a(f"s_add_u32 s62, s62, 8192")
    a(f"s_mul_i32 s62, s{sX}, {56*4096}")
    a(f"s_min_u32 s61, s61, 27")
    a(f"s_lshl_b32 s61, s61, 13")
    a(f"s_add_u32 s62, s62, s61")
    a(f"buffer_load_dword v16, v4, {srd(sSK)}, s62 offen")
    a("s_waitcnt vmcnt(0)")

XR, W1R, W3R = 0, 49152, 98304
PREP_L = 147456
W2L = 0
CVL = 114688
CB = 18176
HA, HB, U0, U1 = 256, 4736, 8960, 13536
LDS_BYTES = 156672

def wflag(a, soff, v0, v1):
    a(f"v_mov_b32 v{v0}, 0")
    a(f"v_mov_b32 v{v1}, s{sE}")
    a(f"s_mov_b64 exec, 1")
    a(f"buffer_store_dword v{v1}, v{v0}, {srd(sWS)}, s{soff} offen sc1")
    a(f"s_mov_b64 exec, -1")

def poll_issue(a, vaddr, vtmp, soff):
    a(f"buffer_load_dword v{vtmp}, v{vaddr}, {srd(sWS)}, s{soff} offen sc1")
def poll_check(a, vaddr, vtmp, soff):
    n = POLLN[0]
    a(f"v_cmp_ne_u32 vcc, s{sE}, v{vtmp}")
    a(f"s_cbranch_vccz L_polled{n}")
    poll(a, vaddr, vtmp, soff)

class Rec:
    def __init__(self): self.l = []
    def __call__(self, t): self.l += [x for x in t.split('\n') if x.strip()]

def main(a):
    sI, sJ, sXo, sWo, sM, sTH, sCQ, sTT = 60, 61, 62, 63, 64, 66, 67, 69
    vL, vX0, vX1, vW0, vW1 = 1, 2, 3, 4, 5
    a(f"s_lshr_b32 s{sI}, s{sX}, 1")
    a(f"s_lshl_b32 s{sI}, s{sI}, 2")
    a(f"s_add_u32 s{sI}, s{sI}, s{sLQ}")
    a(f"s_and_b32 s{sJ}, s{sX}, 1")
    a(f"s_mul_i32 s{sJ}, s{sJ}, 7")
    a(f"s_add_u32 s{sJ}, s{sJ}, s{sLR}")
    a(f"s_mul_i32 s{sXo}, s{sI}, {128*896}")
    a(f"s_mul_i32 s65, s{sWV}, {16*896}")
    a(f"s_add_u32 s{sXo}, s{sXo}, s65")
    a(f"s_lshl_b32 s{sWo}, s{sJ}, 8")
    a(f"s_mul_i32 s65, s{sWV}, {8*3584}")
    a(f"s_add_u32 s{sWo}, s{sWo}, s65")
    a(f"s_lshl_b32 s{sM}, s{sWV}, 11")
    a(f"v_and_b32 v{vL}, 63, v0")
    a(f"v_lshrrev_b32 v6, 3, v{vL}")
    a(f"v_and_b32 v7, 7, v{vL}")
    a(f"v_lshrrev_b32 v8, 4, v{vL}")
    a(f"v_xor_b32 v9, v7, v8")
    a(f"v_mul_u32_u24 v6, 896, v6")
    a(f"v_lshl_add_u32 v{vX0}, v9, 4, v6")
    a(f"v_xor_b32 v9, 4, v9")
    a(f"v_lshl_add_u32 v{vX1}, v9, 4, v6")
    a(f"v_add_u32 v{vX1}, {8*896-1024}, v{vX1}")
    a(f"v_and_b32 v7, 15, v{vL}")
    a(f"v_lshlrev_b32 v9, 2, v8")
    a(f"v_xor_b32 v9, v7, v9")
    a(f"v_mul_u32_u24 v6, 3584, v8")
    a(f"v_lshl_add_u32 v{vW0}, v9, 4, v6")
    a(f"v_add_u32 v{vW1}, {4*3584-1024}, v{vW0}")
    kernarg_wait(a)
    def dma_parts(slab):
        slot = slab % 3
        return [
          [f"s_add_u32 m0, s{sM}, {XR + slot*16384}",
           f"buffer_load_dwordx4 v{vX0}, {srd(sQ)}, s{sXo} offen lds",
           f"buffer_load_dwordx4 v{vX1}, {srd(sQ)}, s{sXo} offen offset:1024 lds",
           f"s_add_u32 s{sXo}, s{sXo}, 128"],
          [f"s_add_u32 m0, s{sM}, {W1R + slot*16384}",
           f"buffer_load_dwordx4 v{vW0}, {srd(sW1)}, s{sWo} offen lds",
           f"buffer_load_dwordx4 v{vW1}, {srd(sW1)}, s{sWo} offen offset:1024 lds"],
          [f"s_add_u32 m0, s{sM}, {W3R + slot*16384}",
           f"buffer_load_dwordx4 v{vW0}, {srd(sW3)}, s{sWo} offen lds",
           f"buffer_load_dwordx4 v{vW1}, {srd(sW3)}, s{sWo} offen offset:1024 lds",
           f"s_add_u32 s{sWo}, s{sWo}, {64*3584}"]]
    def dma(slab):
        for p in dma_parts(slab):
            for i in p: a(i)
    dma(0)
    dma(1)
    a(f"s_lshl_b32 s{sTT}, s{sX}, 2")
    a(f"s_add_u32 s{sTT}, s{sTT}, s{sLQ}")
    a(f"s_mul_i32 s70, s{sTT}, {64*896}")
    a(f"s_lshl_b32 s71, s{sLR}, 7")
    a(f"s_add_u32 s70, s70, s71")
    P = 128
    a(f"v_and_b32 v{P+2}, 31, v0")
    a(f"v_lshrrev_b32 v{P+3}, 5, v0")
    a(f"v_mul_u32_u24 v{P+4}, {4*896}, v{P+3}")
    a(f"v_lshl_add_u32 v{P+4}, v{P+2}, 2, v{P+4}")
    a(f"v_add_u32 v{P+4}, s70, v{P+4}")
    a(f"v_subrev_u32 v{P+5}, 2688, v{P+4}")
    a(f"v_mov_b32 v{P+6}, 0x40000000")
    a(f"v_cmp_gt_u32 vcc, 2688, v{P+4}")
    a(f"v_cndmask_b32 v{P+5}, v{P+5}, v{P+6}, vcc")
    prep_loads = []
    for j in range(3): prep_loads.append(f"buffer_load_dword v{P+10+j}, v{P+5}, {srd(sK)}, 0 offen offset:{896*j}")
    for j in range(4): prep_loads.append(f"buffer_load_dword v{P+13+j}, v{P+4}, {srd(sK)}, 0 offen offset:{896*j}")
    for j in range(4): prep_loads.append(f"buffer_load_dword v{P+17+j}, v{P+4}, {srd(sV)}, 0 offen offset:{896*j}")
    a(f"s_lshl_b32 s71, s{sLR}, 9")
    a(f"v_lshlrev_b32 v{P+7}, 4, v{P+2}")
    prep_loads.append(f"buffer_load_dwordx4 v[{P+24}:{P+27}], v{P+7}, {srd(sSH)}, s71 offen")
    a(f"s_and_b32 s{sTH}, s{sWV}, 1")
    a(f"s_lshr_b32 s{sCQ}, s{sWV}, 1")
    vXa = [10, 11, 12, 13]; vWa1, vWa3 = 14, 15
    a(f"v_and_b32 v6, 31, v{vL}")
    a(f"v_lshrrev_b32 v7, 5, v{vL}")
    a(f"v_bfe_u32 v9, v6, 1, 3")
    a(f"v_xor_b32 v9, v9, v7")
    a(f"s_lshl_b32 s65, s{sTH}, 13")
    a(f"v_lshlrev_b32 v6, 7, v6")
    a(f"v_add_u32 v6, s65, v6")
    for ks in range(4):
        a(f"v_xor_b32 v16, {2*ks}, v9")
        a(f"v_lshl_add_u32 v{vXa[ks]}, v16, 4, v6")
    a(f"v_bfe_u32 v6, v{vL}, 2, 2")
    a(f"v_lshl_add_u32 v9, v7, 3, v6")
    a(f"v_lshlrev_b32 v9, 8, v9")
    a(f"v_xor_b32 v6, s{sCQ}, v6")
    a(f"v_lshl_add_u32 v9, v6, 6, v9")
    a(f"v_and_b32 v6, 1, v8")
    a(f"v_lshl_add_u32 v9, v6, 5, v9")
    a(f"v_and_b32 v6, 3, v{vL}")
    a(f"v_lshl_add_u32 v9, v6, 3, v9")
    a(f"v_add_u32 v{vWa1}, {W1R}, v9")
    a(f"v_add_u32 v{vWa3}, {W3R}, v9")
    a(f"v_mul_u32_u24 v{P+8}, 288, v{P+2}")
    a(f"v_lshlrev_b32 v{P+9}, 3, v{P+3}")
    a(f"v_sub_u32 v{P+8}, v{P+8}, v{P+9}")
    a(f"v_add_u32 v{P+8}, {PREP_L + 120}, v{P+8}")
    a(f"v_and_b32 v9, 31, v{vL}")
    a(f"v_lshlrev_b32 v9, 2, v9")
    epoch_hash(a)
    stamp(a, 1)
    r = Rec()
    for h in range(2):
        un = lo if h == 0 else hi
        for j in range(7): un(r, P+30+j, P+10+j)
        for j in range(4): un(r, P+37+j, P+17+j)
        lo(r, P+41, P+24+2*h); hi(r, P+42, P+24+2*h); lo(r, P+43, P+25+2*h); hi(r, P+44, P+25+2*h)
        for t in range(4): r(f"v_mul_f32 v{P+45+t}, v{P+44}, v{P+30+t}")
        for t in range(4): r(f"v_fmac_f32 v{P+45+t}, v{P+43}, v{P+31+t}")
        for t in range(4): r(f"v_fmac_f32 v{P+45+t}, v{P+42}, v{P+32+t}")
        for t in range(4): r(f"v_fmac_f32 v{P+45+t}, v{P+41}, v{P+33+t}")
        for t in range(4): r(f"v_mul_f32 v{P+45+t}, v{P+45+t}, v{P+37+t}")
        r(f"v_cvt_pk_bf16_f32 v{P+50+2*h}, v{P+48}, v{P+47}")
        r(f"v_cvt_pk_bf16_f32 v{P+51+2*h}, v{P+46}, v{P+45}")
        r(f"ds_write_b64 v{P+8}, v[{P+50+2*h}:{P+51+2*h}] offset:{144*h}")
    r(f"v_lshrrev_b32 v{P+2}, 3, v0")
    r(f"v_and_b32 v{P+3}, 7, v0")
    r(f"v_mul_u32_u24 v{P+4}, 144, v{P+2}")
    r(f"v_lshl_add_u32 v{P+4}, v{P+3}, 4, v{P+4}")
    r(f"v_add_u32 v{P+4}, {PREP_L}, v{P+4}")
    r(f"v_mul_u32_u24 v{P+5}, {RP}, v{P+2}")
    r(f"v_lshl_add_u32 v{P+5}, v{P+3}, 4, v{P+5}")
    r(f"s_mul_i32 s70, s{sLR}, {64*RP}")
    r(f"s_lshl_b32 s71, s{sTT}, 7")
    r(f"s_sub_u32 s70, s70, s71")
    r(f"s_add_u32 s70, s70, {WS_R + 1984*2}")
    for i in range(4): r(f"v_mov_b32 v{P+16+i}, 0")
    prep_valu = r.l
    a("s_waitcnt vmcnt(6)")
    a("s_barrier")
    stamp(a, 2)
    stamp(a, 1, 1)
    G = [64, 80]; U = [96, 112]
    FR = [32, 48]
    def reads(kap):
        slab, ks = kap // 4, kap % 4
        slot = slab % 3
        f = FR[kap % 2]
        return [
            f"ds_read_b64_tr_b16 v[{f+8}:{f+9}], v{vWa1} offset:{slot*16384 + ks*4096}",
            f"ds_read_b64_tr_b16 v[{f+10}:{f+11}], v{vWa1} offset:{slot*16384 + ks*4096 + 1024}",
            f"ds_read_b128 v[{f}:{f+3}], v{vXa[ks]} offset:{XR + slot*16384}",
            f"ds_read_b128 v[{f+4}:{f+7}], v{vXa[ks]} offset:{XR + slot*16384 + 4096}",
            f"ds_read_b64_tr_b16 v[{f+12}:{f+13}], v{vWa3} offset:{slot*16384 + ks*4096}",
            f"ds_read_b64_tr_b16 v[{f+14}:{f+15}], v{vWa3} offset:{slot*16384 + ks*4096 + 1024}",
        ]
    def mf(acc, A, B, first):
        c = "0" if first else f"v[{acc}:{acc+15}]"
        return f"v_mfma_f32_32x32x16_bf16 v[{acc}:{acc+15}], v[{A}:{A+3}], v[{B}:{B+3}], {c}"
    for rr in reads(0): a(rr)
    pending = dma_parts(2)
    side = []
    def sd(n):
        for _ in range(n):
            if side: a(side.pop(0))
    sCP, sKQ = 72, 67
    for kap in range(28):
        slab, ks = kap // 4, kap % 4
        f = FR[kap % 2]
        a("s_waitcnt lgkmcnt(0)")
        if ks == 3 and slab < 6:
            n = {0: 18, 1: 6, 2: 6, 3: 4, 4: 6, 5: 0}[slab]
            a(f"s_waitcnt vmcnt({n})")
            a("s_barrier")
            stamp(a, 2 + slab, 1)
            if slab + 3 <= 6: pending = dma_parts(slab + 3)
            if slab == 1: side = list(prep_valu)
            if slab == 2: a(f"ds_read_b128 v[{P+12}:{P+15}], v{P+4}")
        rd = reads(kap+1) if kap < 27 else []
        a(mf(G[0], f+8, f, kap == 0))
        for rr in rd[:3]: a(rr)
        sd(5)
        a(mf(G[1], f+8, f+4, kap == 0))
        for rr in rd[3:]: a(rr)
        sd(5)
        a(mf(U[0], f+12, f, kap == 0))
        if kap == 12:
            a(f"buffer_store_dwordx4 v[{P+12}:{P+15}], v{P+5}, {srd(sWS)}, s70 offen sc1")
            a(f"s_cmp_lg_u32 s{sTT}, 0")
            a("s_cbranch_scc1 L_prep_done")
            a(f"v_cmp_eq_u32 vcc, 7, v{P+3}")
            a("s_and_saveexec_b64 s[58:59], vcc")
            a(f"buffer_store_dwordx4 v[{P+16}:{P+19}], v{P+5}, {srd(sWS)}, s70 offen offset:16 sc1")
            a("s_mov_b64 exec, s[58:59]")
            a.label("L_prep_done")
            a(f"s_lshl_b32 s70, s{sLR}, 10")
            a(f"s_lshl_b32 s71, s{sWV}, 7")
            a(f"s_add_u32 s70, s70, s71")
            a(f"s_lshl_b32 s71, s{sTT}, 2")
            a(f"s_add_u32 s70, s70, s71")
            a(f"s_add_u32 s70, s70, {WS_F1}")
        if kap == 15: wflag(a, 70, P+22, P+23)
        if pending:
            for i in pending.pop(0): a(i)
        if kap == 2:
            for i in prep_loads: a(i)
        sd(7)
        a(mf(U[1], f+12, f+4, kap == 0))
        sd(7)
        if kap == 10: assert not side
        if kap == 20:
            a(f"s_mov_b32 s65, {WS_F2}")
            poll_issue(a, 9, 16, 65)
        if kap == 23:
            poll_check(a, 9, 16, 65)
            a(f"v_lshlrev_b32 v6, 1, v9")
            a(f"s_lshl_b32 s65, s{sI}, 10")
            a(f"s_lshl_b32 s68, s{sTH}, 9")
            a(f"s_add_u32 s65, s65, s68")
            a(f"s_add_u32 s65, s65, {WS_STATS}")
            a(f"buffer_load_dwordx2 v[16:17], v6, {srd(sWS)}, s65 offen sc1")
            a(f"buffer_load_dwordx2 v[18:19], v6, {srd(sWS)}, s65 offen offset:256 sc1")
            a(f"v_lshlrev_b32 v6, 4, v7")
            a(f"s_lshl_b32 s65, s{sJ}, 9")
            a(f"s_lshl_b32 s68, s{sCQ}, 7")
            a(f"s_add_u32 s65, s65, s68")
            a(f"s_add_u32 s65, s65, {WS_CS}")
            a(f"s_add_u32 s68, s65, {F*4}")
            for q in range(4):
                a(f"buffer_load_dwordx4 v[{128+4*q}:{131+4*q}], v6, {srd(sWS)}, s65 offen offset:{32*q} sc1")
            for q in range(4):
                a(f"buffer_load_dwordx4 v[{144+4*q}:{147+4*q}], v6, {srd(sWS)}, s68 offen offset:{32*q} sc1")
            r = Rec()
            r(f"s_mul_i32 s{sCP}, s{sX}, 28")
            r(f"s_add_u32 s{sCP}, s{sCP}, s{sSLOT}")
            r(f"s_sub_u32 s{sCP}, s{sCP}, 4")
            r(f"s_lshr_b32 s70, s{sCP}, 2")
            r(f"s_lshl_b32 s70, s70, 7")
            r(f"s_add_u32 s70, s70, {WS_F1}")
            r(f"buffer_load_dword v20, v9, {srd(sWS)}, s70 offen sc1")
            r(f"s_lshl_b32 s71, s{sCP}, 1")
            r(f"s_add_u32 s71, s71, s{sTH}")
            r(f"s_lshl_b32 s73, s71, 12")
            r(f"s_lshl_b32 s74, s{sKQ}, 2")
            r(f"s_add_u32 s73, s73, s74")
            r(f"s_mul_i32 s74, s71, {RP}")
            r(f"s_add_u32 s74, s74, {WS_R}")
            r(f"s_cmp_eq_u32 s{sKQ}, 2")
            r(f"s_cselect_b32 s75, 2, 0")
            r(f"s_add_u32 s74, s74, s75")
            r(f"s_cmp_lt_u32 s{sKQ}, 2")
            r(f"s_cselect_b32 s76, s{sSK}, s{sWS}")
            r(f"s_cselect_b32 s77, s{sSK+1}, s{sWS+1}")
            r(f"s_cselect_b32 s78, s{sSK+2}, s{sWS+2}")
            r(f"s_mov_b32 s79, 0x20000")
            r(f"s_cselect_b32 s73, s73, s74")
            r(f"s_mov_b32 s74, {CVL + HA}")
            r(f"s_cmp_eq_u32 s{sKQ}, 1\ns_cselect_b32 s74, {CVL + HB}, s74")
            r(f"s_cmp_eq_u32 s{sKQ}, 2\ns_cselect_b32 s74, {CVL + U0}, s74")
            r(f"s_cmp_eq_u32 s{sKQ}, 3\ns_cselect_b32 s74, {CVL + U1}, s74")
            r(f"s_mul_i32 s75, s{sTH}, {CB}")
            r(f"s_add_u32 s74, s74, s75")
            r(f"v_lshlrev_b32 v2, 4, v{vL}")
            r(f"v_lshrrev_b32 v4, 3, v{vL}")
            r(f"v_and_b32 v5, 7, v{vL}")
            r(f"v_bfe_u32 v6, v{vL}, 4, 1")
            r(f"v_lshlrev_b32 v6, 2, v6")
            r(f"v_xor_b32 v5, v5, v6")
            r(f"v_mul_u32_u24 v4, 896, v4")
            r(f"v_lshl_add_u32 v3, v5, 4, v4")
            r(f"s_mul_i32 s{sWo}, s{sKQ}, {448*896}")
            r(f"s_mul_i32 s65, s{sTH}, {112*896}")
            r(f"s_add_u32 s{sWo}, s{sWo}, s65")
            r(f"s_lshl_b32 s65, s{sLR}, 7")
            r(f"s_add_u32 s{sWo}, s{sWo}, s65")
            r(f"s_mul_i32 s{sM}, s{sKQ}, 28672")
            r(f"s_mul_i32 s65, s{sTH}, 14336")
            r(f"s_add_u32 s{sM}, s{sM}, s65")
            for i in range(4): r(f"v_mov_b32 v{24+i}, 0")
            r(f"s_cmp_lt_u32 s{sKQ}, 2")
            r(f"s_cselect_b32 s65, 0, 4352")
            r(f"s_cselect_b32 s68, 16, 28")
            r(f"s_add_u32 s65, s65, s74")
            r(f"s_sub_u32 s65, s65, 256")
            r(f"v_add_u32 v6, s65, v2")
            r(f"v_mov_b32 v8, 0")
            side = r.l
    assert not side
    vH, vW = 2, 3
    stamp(a, 3)
    stamp(a, 8, 1)
    a("s_waitcnt vmcnt(0)")
    a(f"s_cmp_lt_u32 s{sWV}, 4")
    a(f"s_cbranch_scc1 L_polled{POLLN[0]}")
    poll_check(a, 9, 20, 70)
    a("s_barrier")
    stamp(a, 9, 1)
    a(f"s_mov_b32 m0, s74")
    for n in range(4): a(f"buffer_load_dwordx4 v{vH}, s[76:79], s73 offen offset:{1024*n} sc1 lds")
    a(f"s_lshl_b32 s65, s71, 1")
    a(f"buffer_load_ushort v20, v8, {srd(sD)}, s65 offen")
    a(f"s_lshl_b32 s65, s71, 12")
    a(f"buffer_load_dword v21, v8, {srd(sSK)}, s65 offen")
    a(f"v_cmp_gt_u32 vcc, s68, v{vL}")
    a(f"s_and_saveexec_b64 s[58:59], vcc")
    a(f"ds_write_b128 v6, v[24:27]")
    a(f"s_mov_b64 exec, s[58:59]")
    def w2dma(hf):
        out = []
        for n in range(14):
            out.append([f"s_add_u32 m0, s{sM}, {W2L + n*1024}",
                        f"s_add_u32 s65, s{sWo}, {(224*hf + 8*n)*896}",
                        f"buffer_load_dwordx4 v{vW}, {srd(sW2)}, s65 offen lds"])
        return out
    pending = w2dma(0)
    a(f"v_mul_f32 v17, {fh(-1.4426950408889634)}, v17")
    a(f"v_mul_f32 v19, {fh(-1.4426950408889634)}, v19")
    a(f"s_lshl_b32 s70, s{sI}, 2")
    a(f"s_lshl_b32 s75, s{sTH}, 1")
    a(f"s_add_u32 s70, s70, s75")
    a(f"s_mul_i32 s70, s70, 112")
    a(f"s_lshl_b32 s75, s{sJ}, 3")
    a(f"s_add_u32 s70, s70, s75")
    a(f"s_lshl_b32 s75, s{sCQ}, 1")
    a(f"s_add_u32 s70, s70, s75")
    a(f"s_lshl_b32 s70, s70, 10")
    a(f"s_add_u32 s70, s70, {WS_H}")
    a(f"s_add_u32 s75, s70, {112*1024}")
    def pend(n=1):
        for _ in range(n):
            if pending:
                for i in pending.pop(0): a(i)
    for tt in range(2):
        m, nrs = 16 + 2*tt, 17 + 2*tt
        for kp in range(2):
            T = 32 + 16*((2*tt + kp) % 2)
            for e8 in range(8):
                e = 8*kp + e8
                g, u = G[tt] + e, U[tt] + e
                a(f"v_fma_f32 v{g}, -v{m}, v{128+e}, v{g}")
                a(f"v_fma_f32 v{u}, -v{m}, v{144+e}, v{u}")
                a(f"v_mul_f32 v{T+e8}, v{nrs}, v{g}")
                if e8 % 4 == 3: pend()
            for e8 in range(8):
                a(f"v_exp_f32 v{T+e8}, v{T+e8}")
                if e8 % 4 == 3: pend()
            for e8 in range(8):
                e = 8*kp + e8
                a(f"v_add_f32 v{T+e8}, 1.0, v{T+e8}")
                a(f"v_mul_f32 v{G[tt]+e}, v{G[tt]+e}, v{U[tt]+e}")
            pend()
            for e8 in range(8):
                a(f"v_rcp_f32 v{T+e8}, v{T+e8}")
                if e8 % 4 == 3: pend()
            for e8 in range(8):
                e = 8*kp + e8
                a(f"v_mul_f32 v{G[tt]+e}, v{G[tt]+e}, v{T+e8}")
            for p in range(4):
                e = 8*kp + 2*p
                a(f"v_cvt_pk_bf16_f32 v{T+8+p}, v{G[tt]+e}, v{G[tt]+e+1}")
            a(f"buffer_store_dwordx4 v[{T+8}:{T+11}], v{vH}, {srd(sWS)}, s{70 if tt == 0 else 75} offen offset:{1024*kp} {HST}")
        if tt == 0: assert not pending
    a(f"s_cmp_ge_u32 s{sKQ}, 2")
    a(f"s_cbranch_scc1 L_cv_nofix")
    a(f"s_lshl_b32 s65, s{sKQ}, 2")
    a(f"s_sub_u32 s65, s74, s65")
    a(f"s_sub_u32 s65, s65, 192")
    a(f"v_mov_b32 v6, s65")
    a(f"s_waitcnt vmcnt(18)")
    a(f"ds_write_b32 v6, v20")
    a(f"s_cmp_eq_u32 s{sKQ}, 0")
    a(f"s_cbranch_scc1 L_cv_nofix")
    a(f"ds_write_b32 v6, v21 offset:192")
    a.label("L_cv_nofix")
    vT = [4, 5]
    a(f"v_bfe_u32 v6, v{vL}, 2, 2")
    a(f"v_lshl_add_u32 v8, v7, 2, v6")
    a(f"v_lshlrev_b32 v8, 7, v8")
    a(f"v_bfe_u32 v9, v{vL}, 4, 1")
    a(f"v_lshl_add_u32 v8, v9, 5, v8")
    a(f"v_and_b32 v9, 3, v{vL}")
    a(f"v_lshl_add_u32 v8, v9, 3, v8")
    a(f"s_mul_i32 s65, s{sKQ}, 28672")
    a(f"v_add_u32 v8, s65, v8")
    a(f"v_lshrrev_b32 v6, 1, v6")
    a(f"v_lshl_add_u32 v{vT[0]}, v6, 6, v8")
    a(f"v_xor_b32 v6, 1, v6")
    a(f"v_lshl_add_u32 v{vT[1]}, v6, 6, v8")
    a(f"s_lshl_b32 s65, s{sI}, 1")
    a(f"s_add_u32 s65, s65, s{sTH}")
    a(f"s_lshl_b32 s65, s65, 8")
    a(f"s_lshl_b32 s68, s{sJ}, 4")
    a(f"s_add_u32 s68, s68, s65")
    a(f"s_lshl_b32 s65, s{sCQ}, 2")
    a(f"s_add_u32 s68, s68, s65")
    a(f"s_add_u32 s68, s68, {WS_F3}")
    stamp(a, 4)
    a("s_waitcnt vmcnt(3) lgkmcnt(0)")
    a("s_barrier")
    stamp(a, 5)
    WR = 144
    def w2reads(k, f):
        o = W2L + k*2048
        return [f"ds_read_b64_tr_b16 v[{f+4*ct+2*z}:{f+4*ct+2*z+1}], v{vT[ct]} offset:{o + 1024*z}" for ct in range(2) for z in range(2)]
    for k in range(14):
        for rr in w2reads(k, WR + 8*k): a(rr)
    sHo = 62
    a(f"s_lshl_b32 s{sHo}, s{sTT}, 1")
    a(f"s_add_u32 s{sHo}, s{sHo}, s{sTH}")
    a(f"s_mul_i32 s{sHo}, s{sHo}, 112")
    a(f"s_mul_i32 s65, s{sKQ}, 28")
    a(f"s_add_u32 s{sHo}, s{sHo}, s65")
    a(f"s_lshl_b32 s{sHo}, s{sHo}, 10")
    a(f"s_add_u32 s{sHo}, s{sHo}, {WS_H}")
    a("s_waitcnt vmcnt(0)")
    wflag(a, 68, 8, 9)
    a(f"s_lshl_b32 s68, s{sTT}, 8")
    a(f"s_mul_i32 s65, s{sKQ}, 56")
    a(f"s_add_u32 s68, s68, s65")
    a(f"s_add_u32 s68, s68, {WS_F3}")
    a(f"v_min_u32 v10, 13, v{vL}")
    a(f"v_lshlrev_b32 v10, 2, v10")
    a("s_waitcnt lgkmcnt(0)")
    a("s_barrier")
    for p in w2dma(1):
        for i in p: a(i)
    HRN = 24; HR = 48; ACC2 = [16, 32]
    def hload(ks):
        rg = HR + 4*(ks % HRN)
        out = []
        if ks % 4 == 0 and ks > 0: out.append(f"s_add_u32 s{sHo}, s{sHo}, 4096")
        out.append(f"buffer_load_dwordx4 v[{rg}:{rg+3}], v{vH}, {srd(sWS)}, s{sHo} offen offset:{1024*(ks%4)} {HLD}")
        return out
    a(f"s_cmp_lt_u32 s{sWV}, 4")
    a(f"s_cbranch_scc1 L_conv")
    poll(a, 10, 11, 68)
    stamp(a, 6)
    for ks in range(HRN):
        for i in hload(ks): a(i)
    a("s_barrier")
    a("s_barrier")
    stamp(a, 7)
    a("s_branch L_gemm2")
    a.label("L_conv")
    vA, vB, vDl = 8, 9, 11
    a(f"s_mul_i32 s71, s{sTH}, {CB}")
    a(f"s_add_u32 s71, s71, {CVL}")
    a(f"v_and_b32 v12, 15, v{vL}")
    a(f"v_lshrrev_b32 v13, 4, v{vL}")
    a(f"v_and_b32 v14, 1, v12")
    a(f"v_mov_b32 v15, {HB - 4 - 60 - 192}")
    a(f"v_mov_b32 v16, {HA - 60 - 192}")
    a(f"v_cmp_eq_u32 vcc, 1, v14")
    a(f"v_cndmask_b32 v15, v15, v16, vcc")
    a(f"v_lshl_add_u32 v15, v12, 2, v15")
    a(f"v_lshl_add_u32 v15, v13, 4, v15")
    a(f"v_add_u32 v15, s71, v15")
    a(f"s_lshl_b32 s73, s{sKQ}, 8")
    a(f"v_add_u32 v{vA}, s73, v15")
    a(f"s_add_u32 s74, s71, {U0 + 4096}")
    a(f"v_mov_b32 v16, s74")
    a(f"s_cmp_eq_u32 s{sKQ}, 0")
    a(f"s_cselect_b64 vcc, -1, 0")
    a(f"v_cndmask_b32 v{vDl}, v16, v15, vcc")
    a(f"v_mov_b32 v15, {U0 + 448}")
    a(f"v_mov_b32 v16, {U1 + 448}")
    a(f"v_cmp_eq_u32 vcc, 1, v14")
    a(f"v_cndmask_b32 v15, v15, v16, vcc")
    a(f"v_lshrrev_b32 v16, 1, v12")
    a(f"v_lshlrev_b32 v16, 6, v16")
    a(f"v_sub_u32 v15, v15, v16")
    a(f"v_lshl_add_u32 v15, v13, 4, v15")
    a(f"s_add_u32 s73, s73, s71")
    a(f"v_add_u32 v{vB}, s73, v15")
    ACC = 16; HI = 48; LOW = [80, 112]; DL = 12
    def Areg(p, it): return (LOW[it % 2] + 4*p) if p < 4 else (HI + 4*(p-4))
    def Breg(q, it): return (LOW[it % 2] + 16 + 4*q) if q < 4 else (HI + 16 + 4*(q-4))
    def rdA(p, it):
        rg = Areg(p, it); o = 192 + 512*p + 64*it
        return [f"ds_read_b64 v[{rg}:{rg+1}], v{vA} offset:{o}", f"ds_read_b64 v[{rg+2}:{rg+3}], v{vA} offset:{o+8}"]
    def rdB(q, it):
        rg = Breg(q, it); o = 3584 - 512*q + 64*it
        return [f"ds_read_b128 v[{rg}:{rg+3}], v{vB} offset:{o}"]
    def cmf(T, A, B, first=False):
        c = "0" if first else f"v[{ACC+4*T}:{ACC+4*T+3}]"
        return f"v_mfma_f32_16x16x32_bf16 v[{ACC+4*T}:{ACC+4*T+3}], v[{A}:{A+3}], v[{B}:{B+3}], {c}"
    a(f"ds_read_b64 v[{DL}:{DL+1}], v{vDl}")
    a(f"ds_read_b64 v[{DL+2}:{DL+3}], v{vDl} offset:8")
    for p in range(4):
        for rr in rdA(p, 0) + rdB(p, 0): a(rr)
    for it in range(4):
        a("s_waitcnt lgkmcnt(0)")
        rd = []
        for p in range(4, 8): rd += rdA(p, it) + rdB(p, it)
        ms = []
        if it == 0: ms += [cmf(T, DL, Breg(T, 0), True) for T in range(4)]
        seen = set(range(4)) if it == 0 else set(range(8))
        for p in range(4):
            for q in range(4):
                T = p + q
                ms.append(cmf(T, Areg(p, it), Breg(q, it), T not in seen)); seen.add(T)
        for k, m in enumerate(ms):
            a(m)
            if k < len(rd): a(rd[k])
        a("s_waitcnt lgkmcnt(0)")
        if it == 3: poll_issue(a, 10, 11, 68)
        rd = []
        if it < 3:
            for p in range(4): rd += rdA(p, it+1) + rdB(p, it+1)
        ms = []
        for hp in range(4, 8):
            for l in range(0, 8 - hp):
                T = hp + l
                ms.append(cmf(T, Areg(hp, it), Breg(l, it), T not in seen)); seen.add(T)
                ms.append(cmf(T, Areg(l, it), Breg(hp, it)))
        if it == 0: ms += [cmf(T, DL, Breg(T, 0)) for T in range(4, 8)]
        if it == 3: a("s_barrier")
        for k, m in enumerate(ms):
            a(m)
            if k < len(rd): a(rd[k])
    stamp(a, 6)
    a(f"s_lshl_b32 s73, s{sWV}, 13")
    a(f"s_add_u32 s73, s73, {CVL}")
    a(f"v_add_u32 v8, s73, v{vH}")
    for T in range(8): a(f"ds_write_b128 v8, v[{ACC+4*T}:{ACC+4*T+3}] offset:{1024*T}")
    a(f"s_lshl_b32 s73, s{sWV}, 11")
    a(f"s_add_u32 s73, s73, {CVL}")
    a(f"v_add_u32 v8, s73, v{vH}")
    a(f"v_and_b32 v12, 15, v{vL}")
    a(f"v_lshrrev_b32 v13, 4, v{vL}")
    a(f"v_lshrrev_b32 v9, 1, v12")
    a(f"v_and_b32 v12, 1, v12")
    a(f"v_lshlrev_b32 v9, 7, v9")
    a(f"v_lshl_add_u32 v9, v13, 5, v9")
    a(f"v_lshl_add_u32 v9, v12, 4, v9")
    a(f"s_lshl_b32 s73, s{sCP}, 13")
    a(f"s_lshl_b32 s74, s{sWV}, 11")
    a(f"s_add_u32 s73, s73, s74")
    a(f"s_add_u32 s73, s73, {WS_Y}")
    a("s_waitcnt vmcnt(0) lgkmcnt(0)")
    a("s_barrier")
    for t2 in range(2):
        for w in range(4): a(f"ds_read_b128 v[{16+16*t2+4*w}:{19+16*t2+4*w}], v8 offset:{8192*w + 1024*t2}")
    a(f"s_lshr_b32 s74, s{sCP}, 5")
    a(f"s_lshl_b32 s74, s74, 9")
    a(f"s_lshl_b32 s75, s{sWV}, 7")
    a(f"s_add_u32 s74, s74, s75")
    a(f"s_and_b32 s75, s{sCP}, 31")
    a(f"s_lshl_b32 s75, s75, 2")
    a(f"s_add_u32 s74, s74, s75")
    a(f"s_add_u32 s74, s74, {WS_F4}")
    for t2 in range(2):
        b = 16 + 16*t2
        a(f"s_waitcnt lgkmcnt({4*(1-t2)})")
        for rr in range(4):
            a(f"v_add_f32 v{b+rr}, v{b+rr}, v{b+8+rr}")
            a(f"v_add_f32 v{b+4+rr}, v{b+4+rr}, v{b+12+rr}")
        for rr in range(4): a(f"v_cvt_pk_bf16_f32 v{b+8+rr}, v{b+rr}, v{b+4+rr}")
        a(f"buffer_store_dwordx4 v[{b+8}:{b+11}], v9, {srd(sWS)}, s73 offen offset:{1024*t2} sc1")
    poll_check(a, 10, 11, 68)
    for ks in range(HRN):
        for i in hload(ks): a(i)
    a(f"s_waitcnt vmcnt({HRN})")
    wflag(a, 74, 8, 9)
    stamp(a, 7)
    a.label("L_gemm2")
    issued = [f'h{k}' for k in range(HRN)]
    def wait_for(tag):
        idx = max(i for i, t in enumerate(issued) if t == tag)
        a(f"s_waitcnt vmcnt({len(issued) - 1 - idx})")
    def g2mf(ks, f):
        rg = HR + 4*(ks % HRN)
        for ct in range(2):
            c = "0" if ks == 0 else f"v[{ACC2[ct]}:{ACC2[ct]+15}]"
            a(f"v_mfma_f32_32x32x16_bf16 v[{ACC2[ct]}:{ACC2[ct]+15}], v[{f+4*ct}:{f+4*ct+3}], v[{rg}:{rg+3}], {c}")
    E0 = 64
    for ks in range(14):
        wait_for(f'h{ks}')
        g2mf(ks, WR + 8*ks)
        if ks >= 2:
            for rr in w2reads(ks-2, WR + 8*(ks-2)): a(rr)
        if 1 <= ks <= 4:
            for i in hload(HRN + ks - 1): a(i)
            issued.append(f'h{HRN + ks - 1}')
        if ks == 12:
            a(f"v_and_b32 v6, 31, v{vL}")
            a(f"s_lshl_b32 s65, s{sTT}, 6")
            a(f"s_lshl_b32 s71, s{sTH}, 5")
            a(f"s_add_u32 s65, s65, s71")
            a(f"v_add_u32 v6, s65, v6")
            a(f"v_lshlrev_b32 v8, 3, v6")
            a(f"s_mov_b32 s71, {WS_STATS}")
            a(f"buffer_load_dwordx2 v[{E0}:{E0+1}], v8, {srd(sWS)}, s71 offen sc1")
            a(f"v_mul_u32_u24 v8, 896, v6")
            a(f"v_lshl_add_u32 v8, v7, 4, v8")
            a(f"s_lshl_b32 s71, s{sLR}, 7")
            a(f"s_lshl_b32 s73, s{sKQ}, 5")
            a(f"s_add_u32 s71, s71, s73")
            a(f"buffer_load_dwordx4 v[{E0+4}:{E0+7}], v8, {srd(sQ)}, s71 offen")
            issued += ['e0', 'e1']
            a(f"v_and_b32 v9, 0x7f8, v6")
            a(f"v_and_b32 v10, 1, v6")
            a(f"v_lshl_add_u32 v9, v10, 2, v9")
            a(f"v_bfe_u32 v10, v6, 1, 2")
            a(f"v_add_u32 v9, v9, v10")
            a(f"v_lshlrev_b32 v9, 2, v9")
            a(f"v_lshl_add_u32 v9, v7, 15, v9")
            a(f"s_lshl_b32 s73, s{sLR}, 5")
            a(f"s_lshl_b32 s74, s{sKQ}, 3")
            a(f"s_add_u32 s73, s73, s74")
            a(f"s_lshl_b32 s73, s73, 13")
            a(f"s_add_u32 s73, s73, {WS_Y}")
            a(f"s_lshl_b32 s75, s{sLR}, 9")
            a(f"s_lshr_b32 s76, s{sTT}, 3")
            a(f"s_lshl_b32 s76, s76, 7")
            a(f"s_add_u32 s75, s75, s76")
            a(f"s_lshl_b32 s76, s{sKQ}, 5")
            a(f"s_add_u32 s75, s75, s76")
            a(f"s_add_u32 s75, s75, {WS_F4}")
            a(f"v_and_b32 v11, 7, v{vL}")
            a(f"v_lshlrev_b32 v11, 2, v11")
    for k in (12, 13):
        for rr in w2reads(k, WR + 8*k): a(rr)
    for ks in range(14, 28):
        k = ks - 14
        a(f"s_waitcnt lgkmcnt({min(15, 4*(13 - k))})")
        wait_for(f'h{ks}')
        g2mf(ks, WR + 8*k)
        if ks == 22:
            poll_issue(a, 11, 12, 75); issued.append('p4')
    stamp(a, 8)
    a(f"s_lshl_b32 s76, s{sTH}, 15")
    a(f"s_lshl_b32 s77, s{sKQ}, 11")
    a(f"s_add_u32 s76, s76, s77")
    a(f"v_add_u32 v10, s76, v{vH}")
    a("s_waitcnt vmcnt(0)")
    poll_check(a, 11, 12, 75)
    for p in range(4):
        a(f"buffer_load_dword v{E0+8+p}, v9, {srd(sWS)}, s73 offen sc1")
        a(f"s_add_u32 s73, s73, 8192")
    stamp(a, 9)
    a("s_barrier")
    for dk in range(4):
        base = ACC2[dk >> 1] + 8*(dk & 1)
        a(f"ds_write_b128 v10, v[{base}:{base+3}] offset:{8192*dk}")
        a(f"ds_write_b128 v10, v[{base+4}:{base+7}] offset:{8192*dk + 1024}")
    a(f"s_lshl_b32 s76, s{sTH}, 15")
    a(f"s_lshl_b32 s77, s{sKQ}, 13")
    a(f"s_add_u32 s76, s76, s77")
    a(f"v_add_u32 v10, s76, v{vH}")
    a(f"v_mul_f32 v{E0+2}, v{E0+1}, v{E0+1}")
    for p in range(4):
        lo(a, E0+16+2*p, E0+4+p); hi(a, E0+17+2*p, E0+4+p)
    for e in range(8):
        a(f"v_sub_f32 v{E0+32+e}, v{E0+16+e}, v{E0}")
        a(f"v_mul_f32 v{E0+32+e}, v{E0+32+e}, v{E0+1}")
    a("s_waitcnt lgkmcnt(0)")
    a("s_barrier")
    for sk in range(4):
        a(f"ds_read_b128 v[{16+8*sk}:{19+8*sk}], v10 offset:{2048*sk}")
        a(f"ds_read_b128 v[{20+8*sk}:{23+8*sk}], v10 offset:{2048*sk + 1024}")
    a("s_waitcnt vmcnt(0)")
    for p in range(4):
        lo(a, E0+24+2*p, E0+8+p); hi(a, E0+25+2*p, E0+8+p)
    for e in range(8): a(f"v_fmac_f32 v{E0+16+e}, v{E0+32+e}, v{E0+24+e}")
    a("s_waitcnt lgkmcnt(0)")
    for e in range(8):
        a(f"v_add_f32 v{16+e}, v{16+e}, v{24+e}")
        a(f"v_add_f32 v{32+e}, v{32+e}, v{40+e}")
    for e in range(8): a(f"v_add_f32 v{16+e}, v{16+e}, v{32+e}")
    for rr in range(4): a(f"v_permlane32_swap_b32 v{16+rr}, v{20+rr}")
    for e in range(8): a(f"v_fmac_f32 v{E0+16+e}, v{E0+2}, v{16+e}")
    for p in range(4): a(f"v_cvt_pk_bf16_f32 v{E0+40+p}, v{E0+16+2*p}, v{E0+17+2*p}")
    a(f"buffer_store_dwordx4 v[{E0+40}:{E0+43}], v8, {srd(sO)}, s71 offen")

a = Asm()
stamp(a, 0)
prologue(a)
a(f"s_cmp_lt_u32 s{sSLOT}, 4")
a("s_cbranch_scc1 L_spare")
main(a)
a("s_branch L_fin")
a.label("L_spare")
spare(a)
a.label("L_fin")
stamp_flush(a)
a.label("L_end")
a("s_endpgm")
kn = NAME + "_kernel"
hdr = open("cdna_kernels/%s.s.ref" % NAME).read().split("; Override launch")[0]
out = hdr + f"; @launch grid=(256,1,1) block=(512,1,1) lds={LDS_BYTES}\n"
out += '.amdgcn_target "amdgcn-amd-amdhsa--gfx950"\n.text\n'
out += f".globl {kn}\n.p2align 8\n.type {kn},@function\n{kn}:\n" + a.finalize()
out += f""".section .rodata,"a"
.p2align 6
.amdhsa_kernel {kn}
  .amdhsa_next_free_vgpr 256
  .amdhsa_next_free_sgpr 102
  .amdhsa_accum_offset 256
  .amdhsa_group_segment_fixed_size 0
  .amdhsa_kernarg_size 104
  .amdhsa_user_sgpr_count 2
  .amdhsa_user_sgpr_kernarg_segment_ptr 1
  .amdhsa_system_sgpr_workgroup_id_x 1
  .amdhsa_float_denorm_mode_32 3
.end_amdhsa_kernel
"""
dst = sys.argv[1] if len(sys.argv) > 1 and not sys.argv[1].startswith("--") else "cdna_kernels/%s.s" % NAME
open(dst, "w").write(out)
print("wrote", dst, len(out))
```

```python
import sys, struct
from asmdsl import Asm

NAME = "parallel_sum__ssm_conv_h3__glu_gated_swiglu__prompt"
S, D, F = 2048, 448, 1792
WS_F1, WS_F2, WS_F3, WS_F4 = 0x1000, 0x3000, 0x4000, 0x6000
WS_STATS = 0x10000
WS_CS    = 0x14000
WS_R     = 0x20000
RP       = 4224
WS_Y     = 0x200000
WS_H     = 0x400000
WS_BYTES = 0x1000000
WS_DBG   = 0xF00000
STAMP = "--stamp" in sys.argv
CLK = "s_memtime" if "--cyc" in sys.argv else "s_memrealtime"

sQ, sK, sV, sSH, sSK, sD, sW1, sW3, sW2, sO, sWS, sDBG = 4, 8, 12, 16, 20, 24, 28, 32, 36, 40, 44, 48
def srd(b): return f"s[{b}:{b+3}]"
SRD_INFO = {
    'ws': (sWS, 96, WS_BYTES),
    'k': (sK, 8, S*D*2), 'v': (sV, 16, S*D*2), 'sh': (sSH, 24, D*8), 'q': (sQ, 0, S*D*2),
    'w1': (sW1, 56, D*F*2), 'w3': (sW3, 64, D*F*2),
    'sk': (sSK, 32, D*S*2), 'd': (sD, 40, D*2),
    'w2': (sW2, 72, D*F*2), 'o': (sO, 80, S*D*2),
}
sX, sLQ, sLR, sWV, sSLOT, sE = 52, 53, 54, 55, 56, 57
def fh(f): return "0x%08x" % struct.unpack("<I", struct.pack("<f", f))[0]
def lo(a, d, s): a(f"v_lshlrev_b32 v{d}, 16, v{s}")
def hi(a, d, s): a(f"v_and_b32 v{d}, 0xffff0000, v{s}")
NST = 11
HLD = "sc1"; HST = "sc1"
for x in sys.argv:
    if x.startswith("--hld="): HLD = x[6:].replace("_", " ")
    if x.startswith("--hst="): HST = x[6:].replace("_", " ")
SMODE = 1 if "--g1" in sys.argv else 0
def stamp(a, idx, mode=0):
    if STAMP and (mode == SMODE or idx in (0, NST-1)): a(f"{CLK} s[{80+2*idx}:{81+2*idx}]")
def stamp_flush(a):
    if not STAMP: return
    a("s_waitcnt vmcnt(0) lgkmcnt(0)")
    stamp(a, NST-1)
    a(f"s_and_b32 s60, s{sWV}, 3")
    a(f"s_cmp_lg_u32 s60, 0")
    a(f"s_cbranch_scc1 L_end")
    a("s_waitcnt lgkmcnt(0)")
    a(f"s_lshl_b32 s60, s2, 7")
    a(f"s_lshl_b32 s61, s{sWV}, 13")
    a(f"s_add_u32 s60, s60, s61")
    a(f"s_add_u32 s60, s60, {WS_DBG}")
    a("v_mov_b32 v0, 0")
    if "--dbg" in sys.argv:
        a("s_cmp_lg_u32 s2, 100")
        a("s_cbranch_scc1 L_end")
        a(f"s_cmp_lg_u32 s{sWV}, 0")
        a("s_cbranch_scc1 L_end")
        for x in sys.argv:
            if x.startswith("--thr="):
                idx, thr = x[6:].split(":")
                a(f"s_sub_u32 s60, s{80+2*int(idx)}, s80")
                a(f"s_cmp_lt_u32 s60, {thr}")
                a("s_cbranch_scc1 L_end")
                a("v_mov_b32 v2, 0x7f7f7f7f")
                a(f"buffer_store_dword v2, v8, {srd(sO)}, s71 offen")
                a("s_branch L_end")
        a("s_load_dwordx2 s[48:49], s[0:1], 88")
        a("s_mov_b32 s50, 256\ns_mov_b32 s51, 0x20000")
        a("s_waitcnt lgkmcnt(0)")
        for i in range(NST):
            a(f"s_sub_u32 s60, s{80+2*i}, s80")
            a(f"v_mov_b32 v2, s60")
            a(f"buffer_store_dword v2, v0, s[48:51], 0 offen offset:{4*i}")
        return
    for i in range(NST):
        a(f"v_mov_b32 v2, s{80+2*i}")
        a(f"v_mov_b32 v3, s{81+2*i}")
        a(f"buffer_store_dwordx2 v[2:3], v0, {srd(sWS)}, s60 offen offset:{8*i}")

POLLN = [0]
def poll(a, vaddr, vtmp, soff):
    n = POLLN[0]; POLLN[0] += 1
    a(f"s_mov_b32 s58, 0")
    a.label(f"L_poll{n}")
    a(f"buffer_load_dword v{vtmp}, v{vaddr}, {srd(sWS)}, s{soff} offen sc1")
    a(f"s_waitcnt vmcnt(0)")
    a(f"v_cmp_ne_u32 vcc, s{sE}, v{vtmp}")
    a(f"s_cbranch_vccz L_polled{n}")
    a(f"s_add_u32 s58, s58, 1")
    a(f"s_cmp_lt_u32 s58, 0x40000")
    a(f"s_cbranch_scc0 L_polled{n}")
    a(f"s_sleep 2")
    a(f"s_branch L_poll{n}")
    a.label(f"L_polled{n}")

def flag(a, soff, tag, v0=2, v1=3):
    a(f"s_cmp_lg_u32 s{sWV}, 0")
    a(f"s_cbranch_scc1 L_flag_{tag}")
    a(f"v_mov_b32 v{v0}, 0")
    a(f"v_mov_b32 v{v1}, s{sE}")
    a(f"s_mov_b64 exec, 1")
    a(f"buffer_store_dword v{v1}, v{v0}, {srd(sWS)}, s{soff} offen sc1")
    a(f"s_mov_b64 exec, -1")
    a.label(f"L_flag_{tag}")

def prologue(a):
    a(f"s_cmp_ge_u32 s2, 256")
    a(f"s_cbranch_scc1 L_end")
    for n, (r, off, sz) in SRD_INFO.items():
        a(f"s_load_dwordx2 s[{r}:{r+1}], s[0:1], {off}")
    for n, (r, off, sz) in SRD_INFO.items():
        a(f"s_mov_b32 s{r+2}, {sz}")
        a(f"s_mov_b32 s{r+3}, 0x20000")
    a(f"s_and_b32 s{sX}, s2, 7")
    a(f"s_lshr_b32 s{sSLOT}, s2, 3")
    a(f"v_lshrrev_b32 v1, 6, v0")
    a(f"v_readfirstlane_b32 s{sWV}, v1")
    a(f"s_sub_u32 s{sLR}, s{sSLOT}, 4")
    a(f"s_mul_i32 s{sLQ}, s{sLR}, 37")
    a(f"s_lshr_b32 s{sLQ}, s{sLQ}, 8")
    a(f"s_mul_i32 s58, s{sLQ}, 7")
    a(f"s_sub_u32 s{sLR}, s{sLR}, s58")
def kernarg_wait(a):
    a(f"s_waitcnt lgkmcnt(0)")
    a(f"s_load_dword s{sE}, s[{sWS}:{sWS+1}], 0")

def epoch_hash(a):
    a(f"s_waitcnt lgkmcnt(0)")
    a(f"s_mul_i32 s{sE}, s{sE}, 0x9E3779B1")
    a(f"s_add_u32 s{sE}, s{sE}, 0x7F4A7C15")

def round_bf16(a, v):
    a(f"v_cvt_pk_bf16_f32 v{v}, v{v}, v{v}")
    a(f"v_lshlrev_b32 v{v}, 16, v{v}")

def spare(a):
    kernarg_wait(a)
    a(f"s_lshl_b32 s60, s{sX}, 2")
    a(f"s_add_u32 s60, s60, s{sSLOT}")
    a("v_lshrrev_b32 v2, 3, v0")
    a("v_and_b32 v3, 7, v0")
    a("v_mul_u32_u24 v4, 896, v2")
    a("v_lshl_add_u32 v4, v3, 4, v4")
    a(f"s_mul_i32 s61, s60, {64*896}")
    for n in range(7): a(f"buffer_load_dwordx4 v[{8+4*n}:{11+4*n}], v4, {srd(sQ)}, s61 offen offset:{128*n}")
    a(f"s_lshr_b32 s62, s{sX}, 1")
    a(f"s_lshl_b32 s62, s62, 2")
    a(f"s_add_u32 s62, s62, s{sSLOT}")
    a(f"s_min_u32 s62, s62, 13")
    a(f"s_cmp_ge_u32 s62, 7")
    a(f"s_cselect_b32 s64, s{sW3}, s{sW1}")
    a(f"s_cselect_b32 s65, s{sW3+1}, s{sW1+1}")
    a(f"s_cselect_b32 s63, 7, 0")
    a(f"s_cselect_b32 s68, {F*4}, 0")
    a(f"s_mov_b32 s66, {D*F*2}")
    a(f"s_mov_b32 s67, 0x20000")
    a(f"s_sub_u32 s63, s62, s63")
    a(f"s_and_b32 s69, s{sX}, 1")
    a(f"s_mul_i32 s69, s69, 7")
    a(f"s_add_u32 s63, s63, s69")
    a("v_and_b32 v5, 63, v0")
    a("v_lshrrev_b32 v6, 4, v5")
    a("v_and_b32 v5, 15, v5")
    a(f"v_mul_u32_u24 v7, 3584, v6")
    a("v_lshl_add_u32 v7, v5, 4, v7")
    a(f"s_mul_i32 s69, s{sWV}, {56*3584}")
    a(f"s_lshl_b32 s70, s63, 8")
    a(f"s_add_u32 s69, s69, s70")
    for n in range(14):
        a(f"buffer_load_dwordx4 v[{64+4*n}:{67+4*n}], v7, s[64:67], s69 offen")
        a(f"s_add_u32 s69, s69, {4*3584}")
    a("v_lshrrev_b32 v44, 1, v5")
    a("v_and_b32 v45, 1, v5")
    a("v_lshlrev_b32 v45, 4, v45")
    a("v_mov_b32 v46, 0x3f80")
    a("v_lshlrev_b32 v46, v45, v46")
    for dw in range(4):
        a(f"v_cmp_eq_u32 vcc, {dw}, v44")
        a(f"v_cndmask_b32 v{48+dw}, 0, v46, vcc")
    epoch_hash(a)
    a("v_mov_b32 v40, 0\nv_mov_b32 v41, 0\nv_mov_b32 v42, 0\nv_mov_b32 v43, 0")
    a("s_mov_b32 s70, 0x3f803f80")
    a("s_waitcnt vmcnt(14)")
    stamp(a, 2)
    for n in range(28):
        a(f"v_dot2_f32_bf16 v{40+2*(n%2)}, v{8+n}, s70, v{40+2*(n%2)}")
        a(f"v_dot2_f32_bf16 v{41+2*(n%2)}, v{8+n}, v{8+n}, v{41+2*(n%2)}")
    a("v_add_f32 v40, v40, v42")
    a("v_add_f32 v41, v41, v43")
    for m in ("quad_perm:[1,0,3,2]", "quad_perm:[2,3,0,1]", "row_half_mirror"):
        a(f"v_add_f32_dpp v40, v40, v40 {m} row_mask:0xf bank_mask:0xf")
        a(f"v_add_f32_dpp v41, v41, v41 {m} row_mask:0xf bank_mask:0xf")
    a(f"v_mul_f32 v40, {fh(1.0/448)}, v40")
    a(f"v_mul_f32 v41, {fh(1.0/448)}, v41")
    a("v_fma_f32 v41, -v40, v40, v41")
    a("v_max_f32 v41, 0, v41")
    round_bf16(a, 40)
    round_bf16(a, 41)
    a(f"v_add_f32 v41, {fh(1e-5)}, v41")
    round_bf16(a, 41)
    a("v_sqrt_f32 v41, v41")
    round_bf16(a, 41)
    a("v_rcp_f32 v41, v41")
    a("v_lshlrev_b32 v4, 3, v2")
    a(f"s_lshl_b32 s61, s60, 9")
    a(f"s_add_u32 s61, s61, {WS_STATS}")
    a("v_cmp_eq_u32 vcc, 0, v3")
    a("s_and_saveexec_b64 s[72:73], vcc")
    a(f"buffer_store_dwordx2 v[40:41], v4, {srd(sWS)}, s61 offen sc1")
    a("s_mov_b64 exec, s[72:73]")
    stamp(a, 3)
    for n in range(14):
        a(f"s_waitcnt vmcnt({14-n})")
        c = "0" if n == 0 else "v[52:55]"
        a(f"v_mfma_f32_16x16x32_bf16 v[52:55], v[48:51], v[{64+4*n}:{67+4*n}], {c}")
    stamp(a, 4)
    a("v_lshlrev_b32 v4, 5, v5")
    a("v_lshl_add_u32 v4, v6, 4, v4")
    a(f"s_lshl_b32 s61, s{sWV}, 9")
    a("v_add_u32 v4, s61, v4")
    a("v_cmp_gt_u32 vcc, 2, v6")
    a("s_and_saveexec_b64 s[72:73], vcc")
    a("ds_write_b128 v4, v[52:55]")
    a("s_mov_b64 exec, s[72:73]")
    a("s_waitcnt vmcnt(0) lgkmcnt(0)")
    a("s_barrier")
    stamp(a, 5)
    a(f"s_cmp_lg_u32 s{sWV}, 0")
    a("s_cbranch_scc1 L_sp_pf0")
    a("v_lshlrev_b32 v4, 3, v0")
    for p in range(8): a(f"ds_read_b64 v[{64+2*p}:{65+2*p}], v4 offset:{512*p}")
    a("s_waitcnt lgkmcnt(0)")
    for st in (4, 2, 1):
        for p in range(st):
            a(f"v_add_f32 v{64+2*p}, v{64+2*p}, v{64+2*(p+st)}")
            a(f"v_add_f32 v{65+2*p}, v{65+2*p}, v{65+2*(p+st)}")
    a(f"s_lshl_b32 s61, s63, 9")
    a(f"s_add_u32 s61, s61, s68")
    a(f"s_add_u32 s61, s61, {WS_CS}")
    a(f"buffer_store_dwordx2 v[64:65], v4, {srd(sWS)}, s61 offen sc1")
    a(f"s_lshl_b32 s61, s60, 2")
    a(f"s_add_u32 s61, s61, {WS_F2}")
    a("s_waitcnt vmcnt(0)")
    stamp(a, 6)
    flag(a, 61, 'f2')
    a.label("L_sp_pf0")
    a("s_barrier")
    a(f"s_cmp_lg_u32 s{sWV}, 0")
    a("s_cbranch_scc1 L_sp_pf")
    a(f"s_cmp_lg_u32 s60, 0")
    a(f"s_cbranch_scc1 L_sp_pf")
    a(f"v_and_b32 v4, 31, v0")
    a(f"v_lshlrev_b32 v4, 2, v4")
    a(f"s_mov_b32 s61, {WS_F2}")
    poll(a, 4, 5, 61)
    for gg in range(7):
        a(f"s_mov_b32 s61, {WS_F1 + 1024*gg}")
        poll(a, 4, 5, 61)
    a(f"s_mov_b32 s61, 0")
    flag(a, 61, 'ep')
    a("s_branch L_fin")
    a.label("L_sp_pf")
    a(f"v_and_b32 v4, 63, v0")
    a(f"v_lshlrev_b32 v4, 7, v4")
    a(f"s_lshl_b32 s61, s{sSLOT}, 3")
    a(f"s_add_u32 s61, s61, s{sWV}")
    a(f"s_mul_i32 s62, s61, {7*8192}")
    for n in range(7):
        a(f"buffer_load_dword v{8+n}, v4, {srd(sW2)}, s62 offen")
        a(f"s_add_u32 s62, s62, 8192")
    a(f"s_mul_i32 s62, s{sX}, {56*4096}")
    a(f"s_min_u32 s61, s61, 27")
    a(f"s_lshl_b32 s61, s61, 13")
    a(f"s_add_u32 s62, s62, s61")
    a(f"buffer_load_dword v16, v4, {srd(sSK)}, s62 offen")
    a("s_waitcnt vmcnt(0)")

XR, W1R, W3R = 0, 49152, 98304
PREP_L = 147456
W2L = 0
CVL = 114688
CB = 18176
HA, HB, U0, U1 = 256, 4736, 8960, 13536
LDS_BYTES = 156672

def wflag(a, soff, v0, v1):
    a(f"v_mov_b32 v{v0}, 0")
    a(f"v_mov_b32 v{v1}, s{sE}")
    a(f"s_mov_b64 exec, 1")
    a(f"buffer_store_dword v{v1}, v{v0}, {srd(sWS)}, s{soff} offen sc1")
    a(f"s_mov_b64 exec, -1")

def poll_issue(a, vaddr, vtmp, soff):
    a(f"buffer_load_dword v{vtmp}, v{vaddr}, {srd(sWS)}, s{soff} offen sc1")
def poll_check(a, vaddr, vtmp, soff):
    n = POLLN[0]
    a(f"v_cmp_ne_u32 vcc, s{sE}, v{vtmp}")
    a(f"s_cbranch_vccz L_polled{n}")
    poll(a, vaddr, vtmp, soff)

class Rec:
    def __init__(self): self.l = []
    def __call__(self, t): self.l += [x for x in t.split('\n') if x.strip()]

def main(a):
    sI, sJ, sXo, sWo, sM, sTH, sCQ, sTT = 60, 61, 62, 63, 64, 66, 67, 69
    vL, vX0, vX1, vW0, vW1 = 1, 2, 3, 4, 5
    a(f"s_lshr_b32 s{sI}, s{sX}, 1")
    a(f"s_lshl_b32 s{sI}, s{sI}, 2")
    a(f"s_add_u32 s{sI}, s{sI}, s{sLQ}")
    a(f"s_and_b32 s{sJ}, s{sX}, 1")
    a(f"s_mul_i32 s{sJ}, s{sJ}, 7")
    a(f"s_add_u32 s{sJ}, s{sJ}, s{sLR}")
    a(f"s_mul_i32 s{sXo}, s{sI}, {128*896}")
    a(f"s_mul_i32 s65, s{sWV}, {16*896}")
    a(f"s_add_u32 s{sXo}, s{sXo}, s65")
    a(f"s_lshl_b32 s{sWo}, s{sJ}, 8")
    a(f"s_mul_i32 s65, s{sWV}, {8*3584}")
    a(f"s_add_u32 s{sWo}, s{sWo}, s65")
    a(f"s_lshl_b32 s{sM}, s{sWV}, 11")
    a(f"v_and_b32 v{vL}, 63, v0")
    a(f"v_lshrrev_b32 v6, 3, v{vL}")
    a(f"v_and_b32 v7, 7, v{vL}")
    a(f"v_lshrrev_b32 v8, 4, v{vL}")
    a(f"v_xor_b32 v9, v7, v8")
    a(f"v_mul_u32_u24 v6, 896, v6")
    a(f"v_lshl_add_u32 v{vX0}, v9, 4, v6")
    a(f"v_xor_b32 v9, 4, v9")
    a(f"v_lshl_add_u32 v{vX1}, v9, 4, v6")
    a(f"v_add_u32 v{vX1}, {8*896-1024}, v{vX1}")
    a(f"v_and_b32 v7, 15, v{vL}")
    a(f"v_lshlrev_b32 v9, 2, v8")
    a(f"v_xor_b32 v9, v7, v9")
    a(f"v_mul_u32_u24 v6, 3584, v8")
    a(f"v_lshl_add_u32 v{vW0}, v9, 4, v6")
    a(f"v_add_u32 v{vW1}, {4*3584-1024}, v{vW0}")
    kernarg_wait(a)
    def dma_parts(slab):
        slot = slab % 3
        return [
          [f"s_add_u32 m0, s{sM}, {XR + slot*16384}",
           f"buffer_load_dwordx4 v{vX0}, {srd(sQ)}, s{sXo} offen lds",
           f"buffer_load_dwordx4 v{vX1}, {srd(sQ)}, s{sXo} offen offset:1024 lds",
           f"s_add_u32 s{sXo}, s{sXo}, 128"],
          [f"s_add_u32 m0, s{sM}, {W1R + slot*16384}",
           f"buffer_load_dwordx4 v{vW0}, {srd(sW1)}, s{sWo} offen lds",
           f"buffer_load_dwordx4 v{vW1}, {srd(sW1)}, s{sWo} offen offset:1024 lds"],
          [f"s_add_u32 m0, s{sM}, {W3R + slot*16384}",
           f"buffer_load_dwordx4 v{vW0}, {srd(sW3)}, s{sWo} offen lds",
           f"buffer_load_dwordx4 v{vW1}, {srd(sW3)}, s{sWo} offen offset:1024 lds",
           f"s_add_u32 s{sWo}, s{sWo}, {64*3584}"]]
    def dma(slab):
        for p in dma_parts(slab):
            for i in p: a(i)
    dma(0)
    dma(1)
    a(f"s_lshl_b32 s{sTT}, s{sX}, 2")
    a(f"s_add_u32 s{sTT}, s{sTT}, s{sLQ}")
    a(f"s_mul_i32 s70, s{sTT}, {64*896}")
    a(f"s_lshl_b32 s71, s{sLR}, 7")
    a(f"s_add_u32 s70, s70, s71")
    P = 128
    a(f"v_and_b32 v{P+2}, 31, v0")
    a(f"v_lshrrev_b32 v{P+3}, 5, v0")
    a(f"v_mul_u32_u24 v{P+4}, {4*896}, v{P+3}")
    a(f"v_lshl_add_u32 v{P+4}, v{P+2}, 2, v{P+4}")
    a(f"v_add_u32 v{P+4}, s70, v{P+4}")
    a(f"v_subrev_u32 v{P+5}, 2688, v{P+4}")
    a(f"v_mov_b32 v{P+6}, 0x40000000")
    a(f"v_cmp_gt_u32 vcc, 2688, v{P+4}")
    a(f"v_cndmask_b32 v{P+5}, v{P+5}, v{P+6}, vcc")
    prep_loads = []
    for j in range(3): prep_loads.append(f"buffer_load_dword v{P+10+j}, v{P+5}, {srd(sK)}, 0 offen offset:{896*j}")
    for j in range(4): prep_loads.append(f"buffer_load_dword v{P+13+j}, v{P+4}, {srd(sK)}, 0 offen offset:{896*j}")
    for j in range(4): prep_loads.append(f"buffer_load_dword v{P+17+j}, v{P+4}, {srd(sV)}, 0 offen offset:{896*j}")
    a(f"s_lshl_b32 s71, s{sLR}, 9")
    a(f"v_lshlrev_b32 v{P+7}, 4, v{P+2}")
    prep_loads.append(f"buffer_load_dwordx4 v[{P+24}:{P+27}], v{P+7}, {srd(sSH)}, s71 offen")
    a(f"s_and_b32 s{sTH}, s{sWV}, 1")
    a(f"s_lshr_b32 s{sCQ}, s{sWV}, 1")
    vXa = [10, 11, 12, 13]; vWa1, vWa3 = 14, 15
    a(f"v_and_b32 v6, 31, v{vL}")
    a(f"v_lshrrev_b32 v7, 5, v{vL}")
    a(f"v_bfe_u32 v9, v6, 1, 3")
    a(f"v_xor_b32 v9, v9, v7")
    a(f"s_lshl_b32 s65, s{sTH}, 13")
    a(f"v_lshlrev_b32 v6, 7, v6")
    a(f"v_add_u32 v6, s65, v6")
    for ks in range(4):
        a(f"v_xor_b32 v16, {2*ks}, v9")
        a(f"v_lshl_add_u32 v{vXa[ks]}, v16, 4, v6")
    a(f"v_bfe_u32 v6, v{vL}, 2, 2")
    a(f"v_lshl_add_u32 v9, v7, 3, v6")
    a(f"v_lshlrev_b32 v9, 8, v9")
    a(f"v_xor_b32 v6, s{sCQ}, v6")
    a(f"v_lshl_add_u32 v9, v6, 6, v9")
    a(f"v_and_b32 v6, 1, v8")
    a(f"v_lshl_add_u32 v9, v6, 5, v9")
    a(f"v_and_b32 v6, 3, v{vL}")
    a(f"v_lshl_add_u32 v9, v6, 3, v9")
    a(f"v_add_u32 v{vWa1}, {W1R}, v9")
    a(f"v_add_u32 v{vWa3}, {W3R}, v9")
    a(f"v_mul_u32_u24 v{P+8}, 288, v{P+2}")
    a(f"v_lshlrev_b32 v{P+9}, 3, v{P+3}")
    a(f"v_sub_u32 v{P+8}, v{P+8}, v{P+9}")
    a(f"v_add_u32 v{P+8}, {PREP_L + 120}, v{P+8}")
    a(f"v_and_b32 v9, 31, v{vL}")
    a(f"v_lshlrev_b32 v9, 2, v9")
    epoch_hash(a)
    stamp(a, 1)
    r = Rec()
    for h in range(2):
        un = lo if h == 0 else hi
        for j in range(7): un(r, P+30+j, P+10+j)
        for j in range(4): un(r, P+37+j, P+17+j)
        lo(r, P+41, P+24+2*h); hi(r, P+42, P+24+2*h); lo(r, P+43, P+25+2*h); hi(r, P+44, P+25+2*h)
        for t in range(4): r(f"v_mul_f32 v{P+45+t}, v{P+44}, v{P+30+t}")
        for t in range(4): r(f"v_fmac_f32 v{P+45+t}, v{P+43}, v{P+31+t}")
        for t in range(4): r(f"v_fmac_f32 v{P+45+t}, v{P+42}, v{P+32+t}")
        for t in range(4): r(f"v_fmac_f32 v{P+45+t}, v{P+41}, v{P+33+t}")
        for t in range(4): r(f"v_mul_f32 v{P+45+t}, v{P+45+t}, v{P+37+t}")
        r(f"v_cvt_pk_bf16_f32 v{P+50+2*h}, v{P+48}, v{P+47}")
        r(f"v_cvt_pk_bf16_f32 v{P+51+2*h}, v{P+46}, v{P+45}")
        r(f"ds_write_b64 v{P+8}, v[{P+50+2*h}:{P+51+2*h}] offset:{144*h}")
    r(f"v_lshrrev_b32 v{P+2}, 3, v0")
    r(f"v_and_b32 v{P+3}, 7, v0")
    r(f"v_mul_u32_u24 v{P+4}, 144, v{P+2}")
    r(f"v_lshl_add_u32 v{P+4}, v{P+3}, 4, v{P+4}")
    r(f"v_add_u32 v{P+4}, {PREP_L}, v{P+4}")
    r(f"v_mul_u32_u24 v{P+5}, {RP}, v{P+2}")
    r(f"v_lshl_add_u32 v{P+5}, v{P+3}, 4, v{P+5}")
    r(f"s_mul_i32 s70, s{sLR}, {64*RP}")
    r(f"s_lshl_b32 s71, s{sTT}, 7")
    r(f"s_sub_u32 s70, s70, s71")
    r(f"s_add_u32 s70, s70, {WS_R + 1984*2}")
    for i in range(4): r(f"v_mov_b32 v{P+16+i}, 0")
    prep_valu = r.l
    a("s_waitcnt vmcnt(6)")
    a("s_barrier")
    stamp(a, 2)
    stamp(a, 1, 1)
    G = [64, 80]; U = [96, 112]
    FR = [32, 48]
    def reads(kap):
        slab, ks = kap // 4, kap % 4
        slot = slab % 3
        f = FR[kap % 2]
        return [
            f"ds_read_b64_tr_b16 v[{f+8}:{f+9}], v{vWa1} offset:{slot*16384 + ks*4096}",
            f"ds_read_b64_tr_b16 v[{f+10}:{f+11}], v{vWa1} offset:{slot*16384 + ks*4096 + 1024}",
            f"ds_read_b128 v[{f}:{f+3}], v{vXa[ks]} offset:{XR + slot*16384}",
            f"ds_read_b128 v[{f+4}:{f+7}], v{vXa[ks]} offset:{XR + slot*16384 + 4096}",
            f"ds_read_b64_tr_b16 v[{f+12}:{f+13}], v{vWa3} offset:{slot*16384 + ks*4096}",
            f"ds_read_b64_tr_b16 v[{f+14}:{f+15}], v{vWa3} offset:{slot*16384 + ks*4096 + 1024}",
        ]
    def mf(acc, A, B, first):
        c = "0" if first else f"v[{acc}:{acc+15}]"
        return f"v_mfma_f32_32x32x16_bf16 v[{acc}:{acc+15}], v[{A}:{A+3}], v[{B}:{B+3}], {c}"
    for rr in reads(0): a(rr)
    pending = dma_parts(2)
    side = []
    def sd(n):
        for _ in range(n):
            if side: a(side.pop(0))
    sCP, sKQ = 72, 67
    for kap in range(28):
        slab, ks = kap // 4, kap % 4
        f = FR[kap % 2]
        a("s_waitcnt lgkmcnt(0)")
        if ks == 3 and slab < 6:
            n = {0: 18, 1: 6, 2: 6, 3: 4, 4: 6, 5: 0}[slab]
            a(f"s_waitcnt vmcnt({n})")
            a("s_barrier")
            stamp(a, 2 + slab, 1)
            if slab + 3 <= 6: pending = dma_parts(slab + 3)
            if slab == 1: side = list(prep_valu)
            if slab == 2: a(f"ds_read_b128 v[{P+12}:{P+15}], v{P+4}")
        rd = reads(kap+1) if kap < 27 else []
        a(mf(G[0], f+8, f, kap == 0))
        for rr in rd[:3]: a(rr)
        sd(5)
        a(mf(G[1], f+8, f+4, kap == 0))
        for rr in rd[3:]: a(rr)
        sd(5)
        a(mf(U[0], f+12, f, kap == 0))
        if kap == 12:
            a(f"buffer_store_dwordx4 v[{P+12}:{P+15}], v{P+5}, {srd(sWS)}, s70 offen sc1")
            a(f"s_cmp_lg_u32 s{sTT}, 0")
            a("s_cbranch_scc1 L_prep_done")
            a(f"v_cmp_eq_u32 vcc, 7, v{P+3}")
            a("s_and_saveexec_b64 s[58:59], vcc")
            a(f"buffer_store_dwordx4 v[{P+16}:{P+19}], v{P+5}, {srd(sWS)}, s70 offen offset:16 sc1")
            a("s_mov_b64 exec, s[58:59]")
            a.label("L_prep_done")
            a(f"s_lshl_b32 s70, s{sLR}, 10")
            a(f"s_lshl_b32 s71, s{sWV}, 7")
            a(f"s_add_u32 s70, s70, s71")
            a(f"s_lshl_b32 s71, s{sTT}, 2")
            a(f"s_add_u32 s70, s70, s71")
            a(f"s_add_u32 s70, s70, {WS_F1}")
        if kap == 15: wflag(a, 70, P+22, P+23)
        if pending:
            for i in pending.pop(0): a(i)
        if kap == 2:
            for i in prep_loads: a(i)
        sd(7)
        a(mf(U[1], f+12, f+4, kap == 0))
        sd(7)
        if kap == 10: assert not side
        if kap == 20:
            a(f"s_mov_b32 s65, {WS_F2}")
            poll_issue(a, 9, 16, 65)
        if kap == 23:
            poll_check(a, 9, 16, 65)
            a(f"v_lshlrev_b32 v6, 1, v9")
            a(f"s_lshl_b32 s65, s{sI}, 10")
            a(f"s_lshl_b32 s68, s{sTH}, 9")
            a(f"s_add_u32 s65, s65, s68")
            a(f"s_add_u32 s65, s65, {WS_STATS}")
            a(f"buffer_load_dwordx2 v[16:17], v6, {srd(sWS)}, s65 offen sc1")
            a(f"buffer_load_dwordx2 v[18:19], v6, {srd(sWS)}, s65 offen offset:256 sc1")
            a(f"v_lshlrev_b32 v6, 4, v7")
            a(f"s_lshl_b32 s65, s{sJ}, 9")
            a(f"s_lshl_b32 s68, s{sCQ}, 7")
            a(f"s_add_u32 s65, s65, s68")
            a(f"s_add_u32 s65, s65, {WS_CS}")
            a(f"s_add_u32 s68, s65, {F*4}")
            for q in range(4):
                a(f"buffer_load_dwordx4 v[{128+4*q}:{131+4*q}], v6, {srd(sWS)}, s65 offen offset:{32*q} sc1")
            for q in range(4):
                a(f"buffer_load_dwordx4 v[{144+4*q}:{147+4*q}], v6, {srd(sWS)}, s68 offen offset:{32*q} sc1")
            r = Rec()
            r(f"s_mul_i32 s{sCP}, s{sX}, 28")
            r(f"s_add_u32 s{sCP}, s{sCP}, s{sSLOT}")
            r(f"s_sub_u32 s{sCP}, s{sCP}, 4")
            r(f"s_lshr_b32 s70, s{sCP}, 2")
            r(f"s_lshl_b32 s70, s70, 7")
            r(f"s_add_u32 s70, s70, {WS_F1}")
            r(f"buffer_load_dword v20, v9, {srd(sWS)}, s70 offen sc1")
            r(f"s_lshl_b32 s71, s{sCP}, 1")
            r(f"s_add_u32 s71, s71, s{sTH}")
            r(f"s_lshl_b32 s73, s71, 12")
            r(f"s_lshl_b32 s74, s{sKQ}, 2")
            r(f"s_add_u32 s73, s73, s74")
            r(f"s_mul_i32 s74, s71, {RP}")
            r(f"s_add_u32 s74, s74, {WS_R}")
            r(f"s_cmp_eq_u32 s{sKQ}, 2")
            r(f"s_cselect_b32 s75, 2, 0")
            r(f"s_add_u32 s74, s74, s75")
            r(f"s_cmp_lt_u32 s{sKQ}, 2")
            r(f"s_cselect_b32 s76, s{sSK}, s{sWS}")
            r(f"s_cselect_b32 s77, s{sSK+1}, s{sWS+1}")
            r(f"s_cselect_b32 s78, s{sSK+2}, s{sWS+2}")
            r(f"s_mov_b32 s79, 0x20000")
            r(f"s_cselect_b32 s73, s73, s74")
            r(f"s_mov_b32 s74, {CVL + HA}")
            r(f"s_cmp_eq_u32 s{sKQ}, 1\ns_cselect_b32 s74, {CVL + HB}, s74")
            r(f"s_cmp_eq_u32 s{sKQ}, 2\ns_cselect_b32 s74, {CVL + U0}, s74")
            r(f"s_cmp_eq_u32 s{sKQ}, 3\ns_cselect_b32 s74, {CVL + U1}, s74")
            r(f"s_mul_i32 s75, s{sTH}, {CB}")
            r(f"s_add_u32 s74, s74, s75")
            r(f"v_lshlrev_b32 v2, 4, v{vL}")
            r(f"v_lshrrev_b32 v4, 3, v{vL}")
            r(f"v_and_b32 v5, 7, v{vL}")
            r(f"v_bfe_u32 v6, v{vL}, 4, 1")
            r(f"v_lshlrev_b32 v6, 2, v6")
            r(f"v_xor_b32 v5, v5, v6")
            r(f"v_mul_u32_u24 v4, 896, v4")
            r(f"v_lshl_add_u32 v3, v5, 4, v4")
            r(f"s_mul_i32 s{sWo}, s{sKQ}, {448*896}")
            r(f"s_mul_i32 s65, s{sTH}, {112*896}")
            r(f"s_add_u32 s{sWo}, s{sWo}, s65")
            r(f"s_lshl_b32 s65, s{sLR}, 7")
            r(f"s_add_u32 s{sWo}, s{sWo}, s65")
            r(f"s_mul_i32 s{sM}, s{sKQ}, 28672")
            r(f"s_mul_i32 s65, s{sTH}, 14336")
            r(f"s_add_u32 s{sM}, s{sM}, s65")
            for i in range(4): r(f"v_mov_b32 v{24+i}, 0")
            r(f"s_cmp_lt_u32 s{sKQ}, 2")
            r(f"s_cselect_b32 s65, 0, 4352")
            r(f"s_cselect_b32 s68, 16, 28")
            r(f"s_add_u32 s65, s65, s74")
            r(f"s_sub_u32 s65, s65, 256")
            r(f"v_add_u32 v6, s65, v2")
            r(f"v_mov_b32 v8, 0")
            side = r.l
    assert not side
    vH, vW = 2, 3
    stamp(a, 3)
    stamp(a, 8, 1)
    a("s_waitcnt vmcnt(0)")
    a(f"s_cmp_lt_u32 s{sWV}, 4")
    a(f"s_cbranch_scc1 L_polled{POLLN[0]}")
    poll_check(a, 9, 20, 70)
    a("s_barrier")
    stamp(a, 9, 1)
    a(f"s_mov_b32 m0, s74")
    for n in range(4): a(f"buffer_load_dwordx4 v{vH}, s[76:79], s73 offen offset:{1024*n} sc1 lds")
    a(f"s_lshl_b32 s65, s71, 1")
    a(f"buffer_load_ushort v20, v8, {srd(sD)}, s65 offen")
    a(f"s_lshl_b32 s65, s71, 12")
    a(f"buffer_load_dword v21, v8, {srd(sSK)}, s65 offen")
    a(f"v_cmp_gt_u32 vcc, s68, v{vL}")
    a(f"s_and_saveexec_b64 s[58:59], vcc")
    a(f"ds_write_b128 v6, v[24:27]")
    a(f"s_mov_b64 exec, s[58:59]")
    def w2dma(hf):
        out = []
        for n in range(14):
            out.append([f"s_add_u32 m0, s{sM}, {W2L + n*1024}",
                        f"s_add_u32 s65, s{sWo}, {(224*hf + 8*n)*896}",
                        f"buffer_load_dwordx4 v{vW}, {srd(sW2)}, s65 offen lds"])
        return out
    pending = w2dma(0)
    a(f"v_mul_f32 v17, {fh(-1.4426950408889634)}, v17")
    a(f"v_mul_f32 v19, {fh(-1.4426950408889634)}, v19")
    a(f"s_lshl_b32 s70, s{sI}, 2")
    a(f"s_lshl_b32 s75, s{sTH}, 1")
    a(f"s_add_u32 s70, s70, s75")
    a(f"s_mul_i32 s70, s70, 112")
    a(f"s_lshl_b32 s75, s{sJ}, 3")
    a(f"s_add_u32 s70, s70, s75")
    a(f"s_lshl_b32 s75, s{sCQ}, 1")
    a(f"s_add_u32 s70, s70, s75")
    a(f"s_lshl_b32 s70, s70, 10")
    a(f"s_add_u32 s70, s70, {WS_H}")
    a(f"s_add_u32 s75, s70, {112*1024}")
    def pend(n=1):
        for _ in range(n):
            if pending:
                for i in pending.pop(0): a(i)
    for tt in range(2):
        m, nrs = 16 + 2*tt, 17 + 2*tt
        for kp in range(2):
            T = 32 + 16*((2*tt + kp) % 2)
            for e8 in range(8):
                e = 8*kp + e8
                g, u = G[tt] + e, U[tt] + e
                a(f"v_fma_f32 v{g}, -v{m}, v{128+e}, v{g}")
                a(f"v_fma_f32 v{u}, -v{m}, v{144+e}, v{u}")
                a(f"v_mul_f32 v{T+e8}, v{nrs}, v{g}")
                if e8 % 4 == 3: pend()
            for e8 in range(8):
                a(f"v_exp_f32 v{T+e8}, v{T+e8}")
                if e8 % 4 == 3: pend()
            for e8 in range(8):
                e = 8*kp + e8
                a(f"v_add_f32 v{T+e8}, 1.0, v{T+e8}")
                a(f"v_mul_f32 v{G[tt]+e}, v{G[tt]+e}, v{U[tt]+e}")
            pend()
            for e8 in range(8):
                a(f"v_rcp_f32 v{T+e8}, v{T+e8}")
                if e8 % 4 == 3: pend()
            for e8 in range(8):
                e = 8*kp + e8
                a(f"v_mul_f32 v{G[tt]+e}, v{G[tt]+e}, v{T+e8}")
            for p in range(4):
                e = 8*kp + 2*p
                a(f"v_cvt_pk_bf16_f32 v{T+8+p}, v{G[tt]+e}, v{G[tt]+e+1}")
            a(f"buffer_store_dwordx4 v[{T+8}:{T+11}], v{vH}, {srd(sWS)}, s{70 if tt == 0 else 75} offen offset:{1024*kp} {HST}")
        if tt == 0: assert not pending
    a(f"s_cmp_ge_u32 s{sKQ}, 2")
    a(f"s_cbranch_scc1 L_cv_nofix")
    a(f"s_lshl_b32 s65, s{sKQ}, 2")
    a(f"s_sub_u32 s65, s74, s65")
    a(f"s_sub_u32 s65, s65, 192")
    a(f"v_mov_b32 v6, s65")
    a(f"s_waitcnt vmcnt(18)")
    a(f"ds_write_b32 v6, v20")
    a(f"s_cmp_eq_u32 s{sKQ}, 0")
    a(f"s_cbranch_scc1 L_cv_nofix")
    a(f"ds_write_b32 v6, v21 offset:192")
    a.label("L_cv_nofix")
    vT = [4, 5]
    a(f"v_bfe_u32 v6, v{vL}, 2, 2")
    a(f"v_lshl_add_u32 v8, v7, 2, v6")
    a(f"v_lshlrev_b32 v8, 7, v8")
    a(f"v_bfe_u32 v9, v{vL}, 4, 1")
    a(f"v_lshl_add_u32 v8, v9, 5, v8")
    a(f"v_and_b32 v9, 3, v{vL}")
    a(f"v_lshl_add_u32 v8, v9, 3, v8")
    a(f"s_mul_i32 s65, s{sKQ}, 28672")
    a(f"v_add_u32 v8, s65, v8")
    a(f"v_lshrrev_b32 v6, 1, v6")
    a(f"v_lshl_add_u32 v{vT[0]}, v6, 6, v8")
    a(f"v_xor_b32 v6, 1, v6")
    a(f"v_lshl_add_u32 v{vT[1]}, v6, 6, v8")
    a(f"s_lshl_b32 s65, s{sI}, 1")
    a(f"s_add_u32 s65, s65, s{sTH}")
    a(f"s_lshl_b32 s65, s65, 8")
    a(f"s_lshl_b32 s68, s{sJ}, 4")
    a(f"s_add_u32 s68, s68, s65")
    a(f"s_lshl_b32 s65, s{sCQ}, 2")
    a(f"s_add_u32 s68, s68, s65")
    a(f"s_add_u32 s68, s68, {WS_F3}")
    stamp(a, 4)
    a("s_waitcnt vmcnt(3) lgkmcnt(0)")
    a("s_barrier")
    stamp(a, 5)
    WR = 144
    def w2reads(k, f):
        o = W2L + k*2048
        return [f"ds_read_b64_tr_b16 v[{f+4*ct+2*z}:{f+4*ct+2*z+1}], v{vT[ct]} offset:{o + 1024*z}" for ct in range(2) for z in range(2)]
    for k in range(14):
        for rr in w2reads(k, WR + 8*k): a(rr)
    sHo = 62
    a(f"s_lshl_b32 s{sHo}, s{sTT}, 1")
    a(f"s_add_u32 s{sHo}, s{sHo}, s{sTH}")
    a(f"s_mul_i32 s{sHo}, s{sHo}, 112")
    a(f"s_mul_i32 s65, s{sKQ}, 28")
    a(f"s_add_u32 s{sHo}, s{sHo}, s65")
    a(f"s_lshl_b32 s{sHo}, s{sHo}, 10")
    a(f"s_add_u32 s{sHo}, s{sHo}, {WS_H}")
    a("s_waitcnt vmcnt(0)")
    wflag(a, 68, 8, 9)
    a(f"s_lshl_b32 s68, s{sTT}, 8")
    a(f"s_mul_i32 s65, s{sKQ}, 56")
    a(f"s_add_u32 s68, s68, s65")
    a(f"s_add_u32 s68, s68, {WS_F3}")
    a(f"v_min_u32 v10, 13, v{vL}")
    a(f"v_lshlrev_b32 v10, 2, v10")
    a("s_waitcnt lgkmcnt(0)")
    a("s_barrier")
    for p in w2dma(1):
        for i in p: a(i)
    HRN = 24; HR = 48; ACC2 = [16, 32]
    def hload(ks):
        rg = HR + 4*(ks % HRN)
        out = []
        if ks % 4 == 0 and ks > 0: out.append(f"s_add_u32 s{sHo}, s{sHo}, 4096")
        out.append(f"buffer_load_dwordx4 v[{rg}:{rg+3}], v{vH}, {srd(sWS)}, s{sHo} offen offset:{1024*(ks%4)} {HLD}")
        return out
    a(f"s_cmp_lt_u32 s{sWV}, 4")
    a(f"s_cbranch_scc1 L_conv")
    poll(a, 10, 11, 68)
    stamp(a, 6)
    for ks in range(HRN):
        for i in hload(ks): a(i)
    a("s_barrier")
    a("s_barrier")
    stamp(a, 7)
    a("s_branch L_gemm2")
    a.label("L_conv")
    vA, vB, vDl = 8, 9, 11
    a(f"s_mul_i32 s71, s{sTH}, {CB}")
    a(f"s_add_u32 s71, s71, {CVL}")
    a(f"v_and_b32 v12, 15, v{vL}")
    a(f"v_lshrrev_b32 v13, 4, v{vL}")
    a(f"v_and_b32 v14, 1, v12")
    a(f"v_mov_b32 v15, {HB - 4 - 60 - 192}")
    a(f"v_mov_b32 v16, {HA - 60 - 192}")
    a(f"v_cmp_eq_u32 vcc, 1, v14")
    a(f"v_cndmask_b32 v15, v15, v16, vcc")
    a(f"v_lshl_add_u32 v15, v12, 2, v15")
    a(f"v_lshl_add_u32 v15, v13, 4, v15")
    a(f"v_add_u32 v15, s71, v15")
    a(f"s_lshl_b32 s73, s{sKQ}, 8")
    a(f"v_add_u32 v{vA}, s73, v15")
    a(f"s_add_u32 s74, s71, {U0 + 4096}")
    a(f"v_mov_b32 v16, s74")
    a(f"s_cmp_eq_u32 s{sKQ}, 0")
    a(f"s_cselect_b64 vcc, -1, 0")
    a(f"v_cndmask_b32 v{vDl}, v16, v15, vcc")
    a(f"v_mov_b32 v15, {U0 + 448}")
    a(f"v_mov_b32 v16, {U1 + 448}")
    a(f"v_cmp_eq_u32 vcc, 1, v14")
    a(f"v_cndmask_b32 v15, v15, v16, vcc")
    a(f"v_lshrrev_b32 v16, 1, v12")
    a(f"v_lshlrev_b32 v16, 6, v16")
    a(f"v_sub_u32 v15, v15, v16")
    a(f"v_lshl_add_u32 v15, v13, 4, v15")
    a(f"s_add_u32 s73, s73, s71")
    a(f"v_add_u32 v{vB}, s73, v15")
    ACC = 16; HI = 48; LOW = [80, 112]; DL = 12
    def Areg(p, it): return (LOW[it % 2] + 4*p) if p < 4 else (HI + 4*(p-4))
    def Breg(q, it): return (LOW[it % 2] + 16 + 4*q) if q < 4 else (HI + 16 + 4*(q-4))
    def rdA(p, it):
        rg = Areg(p, it); o = 192 + 512*p + 64*it
        return [f"ds_read_b64 v[{rg}:{rg+1}], v{vA} offset:{o}", f"ds_read_b64 v[{rg+2}:{rg+3}], v{vA} offset:{o+8}"]
    def rdB(q, it):
        rg = Breg(q, it); o = 3584 - 512*q + 64*it
        return [f"ds_read_b128 v[{rg}:{rg+3}], v{vB} offset:{o}"]
    def cmf(T, A, B, first=False):
        c = "0" if first else f"v[{ACC+4*T}:{ACC+4*T+3}]"
        return f"v_mfma_f32_16x16x32_bf16 v[{ACC+4*T}:{ACC+4*T+3}], v[{A}:{A+3}], v[{B}:{B+3}], {c}"
    a(f"ds_read_b64 v[{DL}:{DL+1}], v{vDl}")
    a(f"ds_read_b64 v[{DL+2}:{DL+3}], v{vDl} offset:8")
    for p in range(4):
        for rr in rdA(p, 0) + rdB(p, 0): a(rr)
    for it in range(4):
        a("s_waitcnt lgkmcnt(0)")
        rd = []
        for p in range(4, 8): rd += rdA(p, it) + rdB(p, it)
        ms = []
        if it == 0: ms += [cmf(T, DL, Breg(T, 0), True) for T in range(4)]
        seen = set(range(4)) if it == 0 else set(range(8))
        for p in range(4):
            for q in range(4):
                T = p + q
                ms.append(cmf(T, Areg(p, it), Breg(q, it), T not in seen)); seen.add(T)
        for k, m in enumerate(ms):
            a(m)
            if k < len(rd): a(rd[k])
        a("s_waitcnt lgkmcnt(0)")
        if it == 3: poll_issue(a, 10, 11, 68)
        rd = []
        if it < 3:
            for p in range(4): rd += rdA(p, it+1) + rdB(p, it+1)
        ms = []
        for hp in range(4, 8):
            for l in range(0, 8 - hp):
                T = hp + l
                ms.append(cmf(T, Areg(hp, it), Breg(l, it), T not in seen)); seen.add(T)
                ms.append(cmf(T, Areg(l, it), Breg(hp, it)))
        if it == 0: ms += [cmf(T, DL, Breg(T, 0)) for T in range(4, 8)]
        if it == 3: a("s_barrier")
        for k, m in enumerate(ms):
            a(m)
            if k < len(rd): a(rd[k])
    stamp(a, 6)
    a(f"s_lshl_b32 s73, s{sWV}, 13")
    a(f"s_add_u32 s73, s73, {CVL}")
    a(f"v_add_u32 v8, s73, v{vH}")
    for T in range(8): a(f"ds_write_b128 v8, v[{ACC+4*T}:{ACC+4*T+3}] offset:{1024*T}")
    a(f"s_lshl_b32 s73, s{sWV}, 11")
    a(f"s_add_u32 s73, s73, {CVL}")
    a(f"v_add_u32 v8, s73, v{vH}")
    a(f"v_and_b32 v12, 15, v{vL}")
    a(f"v_lshrrev_b32 v13, 4, v{vL}")
    a(f"v_lshrrev_b32 v9, 1, v12")
    a(f"v_and_b32 v12, 1, v12")
    a(f"v_lshlrev_b32 v9, 7, v9")
    a(f"v_lshl_add_u32 v9, v13, 5, v9")
    a(f"v_lshl_add_u32 v9, v12, 4, v9")
    a(f"s_lshl_b32 s73, s{sCP}, 13")
    a(f"s_lshl_b32 s74, s{sWV}, 11")
    a(f"s_add_u32 s73, s73, s74")
    a(f"s_add_u32 s73, s73, {WS_Y}")
    a("s_waitcnt vmcnt(0) lgkmcnt(0)")
    a("s_barrier")
    for t2 in range(2):
        for w in range(4): a(f"ds_read_b128 v[{16+16*t2+4*w}:{19+16*t2+4*w}], v8 offset:{8192*w + 1024*t2}")
    a(f"s_lshr_b32 s74, s{sCP}, 5")
    a(f"s_lshl_b32 s74, s74, 9")
    a(f"s_lshl_b32 s75, s{sWV}, 7")
    a(f"s_add_u32 s74, s74, s75")
    a(f"s_and_b32 s75, s{sCP}, 31")
    a(f"s_lshl_b32 s75, s75, 2")
    a(f"s_add_u32 s74, s74, s75")
    a(f"s_add_u32 s74, s74, {WS_F4}")
    for t2 in range(2):
        b = 16 + 16*t2
        a(f"s_waitcnt lgkmcnt({4*(1-t2)})")
        for rr in range(4):
            a(f"v_add_f32 v{b+rr}, v{b+rr}, v{b+8+rr}")
            a(f"v_add_f32 v{b+4+rr}, v{b+4+rr}, v{b+12+rr}")
        for rr in range(4): a(f"v_cvt_pk_bf16_f32 v{b+8+rr}, v{b+rr}, v{b+4+rr}")
        a(f"buffer_store_dwordx4 v[{b+8}:{b+11}], v9, {srd(sWS)}, s73 offen offset:{1024*t2} sc1")
    poll_check(a, 10, 11, 68)
    for ks in range(HRN):
        for i in hload(ks): a(i)
    a(f"s_waitcnt vmcnt({HRN})")
    wflag(a, 74, 8, 9)
    stamp(a, 7)
    a.label("L_gemm2")
    issued = [f'h{k}' for k in range(HRN)]
    def wait_for(tag):
        idx = max(i for i, t in enumerate(issued) if t == tag)
        a(f"s_waitcnt vmcnt({len(issued) - 1 - idx})")
    def g2mf(ks, f):
        rg = HR + 4*(ks % HRN)
        for ct in range(2):
            c = "0" if ks == 0 else f"v[{ACC2[ct]}:{ACC2[ct]+15}]"
            a(f"v_mfma_f32_32x32x16_bf16 v[{ACC2[ct]}:{ACC2[ct]+15}], v[{f+4*ct}:{f+4*ct+3}], v[{rg}:{rg+3}], {c}")
    E0 = 64
    for ks in range(14):
        wait_for(f'h{ks}')
        g2mf(ks, WR + 8*ks)
        if ks >= 2:
            for rr in w2reads(ks-2, WR + 8*(ks-2)): a(rr)
        if 1 <= ks <= 4:
            for i in hload(HRN + ks - 1): a(i)
            issued.append(f'h{HRN + ks - 1}')
        if ks == 12:
            a(f"v_and_b32 v6, 31, v{vL}")
            a(f"s_lshl_b32 s65, s{sTT}, 6")
            a(f"s_lshl_b32 s71, s{sTH}, 5")
            a(f"s_add_u32 s65, s65, s71")
            a(f"v_add_u32 v6, s65, v6")
            a(f"v_lshlrev_b32 v8, 3, v6")
            a(f"s_mov_b32 s71, {WS_STATS}")
            a(f"buffer_load_dwordx2 v[{E0}:{E0+1}], v8, {srd(sWS)}, s71 offen sc1")
            a(f"v_mul_u32_u24 v8, 896, v6")
            a(f"v_lshl_add_u32 v8, v7, 4, v8")
            a(f"s_lshl_b32 s71, s{sLR}, 7")
            a(f"s_lshl_b32 s73, s{sKQ}, 5")
            a(f"s_add_u32 s71, s71, s73")
            a(f"buffer_load_dwordx4 v[{E0+4}:{E0+7}], v8, {srd(sQ)}, s71 offen")
            issued += ['e0', 'e1']
            a(f"v_and_b32 v9, 0x7f8, v6")
            a(f"v_and_b32 v10, 1, v6")
            a(f"v_lshl_add_u32 v9, v10, 2, v9")
            a(f"v_bfe_u32 v10, v6, 1, 2")
            a(f"v_add_u32 v9, v9, v10")
            a(f"v_lshlrev_b32 v9, 2, v9")
            a(f"v_lshl_add_u32 v9, v7, 15, v9")
            a(f"s_lshl_b32 s73, s{sLR}, 5")
            a(f"s_lshl_b32 s74, s{sKQ}, 3")
            a(f"s_add_u32 s73, s73, s74")
            a(f"s_lshl_b32 s73, s73, 13")
            a(f"s_add_u32 s73, s73, {WS_Y}")
            a(f"s_lshl_b32 s75, s{sLR}, 9")
            a(f"s_lshr_b32 s76, s{sTT}, 3")
            a(f"s_lshl_b32 s76, s76, 7")
            a(f"s_add_u32 s75, s75, s76")
            a(f"s_lshl_b32 s76, s{sKQ}, 5")
            a(f"s_add_u32 s75, s75, s76")
            a(f"s_add_u32 s75, s75, {WS_F4}")
            a(f"v_and_b32 v11, 7, v{vL}")
            a(f"v_lshlrev_b32 v11, 2, v11")
    for k in (12, 13):
        for rr in w2reads(k, WR + 8*k): a(rr)
    for ks in range(14, 28):
        k = ks - 14
        a(f"s_waitcnt lgkmcnt({min(15, 4*(13 - k))})")
        wait_for(f'h{ks}')
        g2mf(ks, WR + 8*k)
        if ks == 22:
            poll_issue(a, 11, 12, 75); issued.append('p4')
    stamp(a, 8)
    a(f"s_lshl_b32 s76, s{sTH}, 15")
    a(f"s_lshl_b32 s77, s{sKQ}, 11")
    a(f"s_add_u32 s76, s76, s77")
    a(f"v_add_u32 v10, s76, v{vH}")
    a("s_waitcnt vmcnt(0)")
    poll_check(a, 11, 12, 75)
    for p in range(4):
        a(f"buffer_load_dword v{E0+8+p}, v9, {srd(sWS)}, s73 offen sc1")
        a(f"s_add_u32 s73, s73, 8192")
    stamp(a, 9)
    a("s_barrier")
    for dk in range(4):
        base = ACC2[dk >> 1] + 8*(dk & 1)
        a(f"ds_write_b128 v10, v[{base}:{base+3}] offset:{8192*dk}")
        a(f"ds_write_b128 v10, v[{base+4}:{base+7}] offset:{8192*dk + 1024}")
    a(f"s_lshl_b32 s76, s{sTH}, 15")
    a(f"s_lshl_b32 s77, s{sKQ}, 13")
    a(f"s_add_u32 s76, s76, s77")
    a(f"v_add_u32 v10, s76, v{vH}")
    a(f"v_mul_f32 v{E0+2}, v{E0+1}, v{E0+1}")
    for p in range(4):
        lo(a, E0+16+2*p, E0+4+p); hi(a, E0+17+2*p, E0+4+p)
    for e in range(8):
        a(f"v_sub_f32 v{E0+32+e}, v{E0+16+e}, v{E0}")
        a(f"v_mul_f32 v{E0+32+e}, v{E0+32+e}, v{E0+1}")
    a("s_waitcnt lgkmcnt(0)")
    a("s_barrier")
    for sk in range(4):
        a(f"ds_read_b128 v[{16+8*sk}:{19+8*sk}], v10 offset:{2048*sk}")
        a(f"ds_read_b128 v[{20+8*sk}:{23+8*sk}], v10 offset:{2048*sk + 1024}")
    a("s_waitcnt vmcnt(0)")
    for p in range(4):
        lo(a, E0+24+2*p, E0+8+p); hi(a, E0+25+2*p, E0+8+p)
    for e in range(8): a(f"v_fmac_f32 v{E0+16+e}, v{E0+32+e}, v{E0+24+e}")
    a("s_waitcnt lgkmcnt(0)")
    for e in range(8):
        a(f"v_add_f32 v{16+e}, v{16+e}, v{24+e}")
        a(f"v_add_f32 v{32+e}, v{32+e}, v{40+e}")
    for e in range(8): a(f"v_add_f32 v{16+e}, v{16+e}, v{32+e}")
    for rr in range(4): a(f"v_permlane32_swap_b32 v{16+rr}, v{20+rr}")
    for e in range(8): a(f"v_fmac_f32 v{E0+16+e}, v{E0+2}, v{16+e}")
    for p in range(4): a(f"v_cvt_pk_bf16_f32 v{E0+40+p}, v{E0+16+2*p}, v{E0+17+2*p}")
    a(f"buffer_store_dwordx4 v[{E0+40}:{E0+43}], v8, {srd(sO)}, s71 offen")

a = Asm()
stamp(a, 0)
prologue(a)
a(f"s_cmp_lt_u32 s{sSLOT}, 4")
a("s_cbranch_scc1 L_spare")
main(a)
a("s_branch L_fin")
a.label("L_spare")
spare(a)
a.label("L_fin")
stamp_flush(a)
a.label("L_end")
a("s_endpgm")
kn = NAME + "_kernel"
hdr = open("cdna_kernels/%s.s.ref" % NAME).read().split("; Override launch")[0]
out = hdr + f"; @launch grid=(256,1,1) block=(512,1,1) lds={LDS_BYTES}\n"
out += '.amdgcn_target "amdgcn-amd-amdhsa--gfx950"\n.text\n'
out += f".globl {kn}\n.p2align 8\n.type {kn},@function\n{kn}:\n" + a.finalize()
out += f""".section .rodata,"a"
.p2align 6
.amdhsa_kernel {kn}
  .amdhsa_next_free_vgpr 256
  .amdhsa_next_free_sgpr 102
  .amdhsa_accum_offset 256
  .amdhsa_group_segment_fixed_size 0
  .amdhsa_kernarg_size 104
  .amdhsa_user_sgpr_count 2
  .amdhsa_user_sgpr_kernarg_segment_ptr 1
  .amdhsa_system_sgpr_workgroup_id_x 1
  .amdhsa_float_denorm_mode_32 3
.end_amdhsa_kernel
"""
dst = sys.argv[1] if len(sys.argv) > 1 and not sys.argv[1].startswith("--") else "cdna_kernels/%s.s" % NAME
open(dst, "w").write(out)
print("wrote", dst, len(out))
```

```python
import sys, struct
from asmdsl import Asm, TRANS

NAME = "parallel_sum__ssm_conv_h3__glu_gated_swiglu__prompt"
S, D, F = 2048, 448, 1792
WS_F1, WS_F2, WS_F3, WS_F4 = 0x1000, 0x3000, 0x4000, 0x6000
WS_STATS = 0x10000
WS_CS    = 0x18000
WS_R     = 0x30000
RP       = 4224
WS_Y     = 0x200000
WS_H     = 0x400000
HTYPE    = 64*56*1024
WS_BYTES = 0x1000000
WS_DBG   = 0xF00000
STAMP = "--stamp" in sys.argv
CLK = "s_memtime" if "--cyc" in sys.argv else "s_memrealtime"
def opt(name, default):
    for x in sys.argv:
        if x.startswith(f"--{name}="): return int(x.split("=")[1])
    return default

sQ, sK, sV, sSH, sSK, sD, sW1, sW3, sW2, sO, sWS = 4, 8, 12, 16, 20, 24, 28, 32, 36, 40, 44
def srd(b): return f"s[{b}:{b+3}]"
SRD_INFO = {
    'q': (sQ, 0, S*D*2), 'w1': (sW1, 56, D*F*2), 'w3': (sW3, 64, D*F*2), 'ws': (sWS, 96, WS_BYTES),
    'k': (sK, 8, S*D*2), 'v': (sV, 16, S*D*2), 'sh': (sSH, 24, D*8),
    'sk': (sSK, 32, D*S*2), 'd': (sD, 40, D*2),
    'w2': (sW2, 72, D*F*2), 'o': (sO, 80, S*D*2),
}
sROT = 3
sA, sI, sJ, sTT = 48, 49, 50, 51
sX, sLQ, sLR, sWV, sSLOT = 52, 53, 54, 55, 56
sE = 78
sA4K = 57
def fh(f): return "0x%08x" % struct.unpack("<I", struct.pack("<f", f))[0]
def lo(a, d, s): a(f"v_lshlrev_b32 v{d}, 16, v{s}")
def hi(a, d, s): a(f"v_and_b32 v{d}, 0xffff0000, v{s}")
NST = 11
SMODE = opt("smode", 0)
def stamp(a, idx, mode=0):
    if STAMP and (mode == SMODE or idx in (0, NST-1)): a(f"{CLK} s[{80+2*idx}:{81+2*idx}]")
def stamp_flush(a):
    if not STAMP: return
    a("s_waitcnt vmcnt(0) lgkmcnt(0)")
    stamp(a, NST-1)
    a(f"s_and_b32 s60, s{sWV}, 3")
    a(f"s_cmp_lg_u32 s60, 0")
    a(f"s_cbranch_scc1 L_end")
    a("s_waitcnt lgkmcnt(0)")
    a(f"s_lshl_b32 s60, s2, 7")
    a(f"s_lshl_b32 s61, s{sWV}, 13")
    a(f"s_add_u32 s60, s60, s61")
    a(f"s_add_u32 s60, s60, {WS_DBG}")
    a("v_mov_b32 v0, 0")
    for i in range(NST):
        a(f"v_mov_b32 v2, s{80+2*i}")
        a(f"v_mov_b32 v3, s{81+2*i}")
        a(f"buffer_store_dwordx2 v[2:3], v0, {srd(sWS)}, s60 offen offset:{8*i}")

UID = [0]
def uid():
    UID[0] += 1; return UID[0]
def poll(a, vaddr, vtmp, soff, n=None, sleep=4):
    n = n or uid()
    a(f"s_mov_b32 s58, 0")
    a.label(f"L_poll{n}")
    a(f"buffer_load_dword v{vtmp}, v{vaddr}, {srd(sWS)}, s{soff} offen sc1")
    a(f"s_waitcnt vmcnt(0)")
    a(f"v_cmp_ne_u32 vcc, s{sE}, v{vtmp}")
    a(f"s_cbranch_vccz L_polled{n}")
    a(f"s_add_u32 s58, s58, 1")
    a(f"s_cmp_lt_u32 s58, 0x40000")
    a(f"s_cbranch_scc0 L_polled{n}")
    a(f"s_sleep {sleep}")
    a(f"s_branch L_poll{n}")
    a.label(f"L_polled{n}")
def poll_issue(a, vaddr, vtmp, soff):
    a(f"buffer_load_dword v{vtmp}, v{vaddr}, {srd(sWS)}, s{soff} offen sc1")
def poll_check(a, vaddr, vtmp, soff):
    n = uid()
    a(f"v_cmp_ne_u32 vcc, s{sE}, v{vtmp}")
    a(f"s_cbranch_vccz L_polled{n}")
    poll(a, vaddr, vtmp, soff, n)
def spoll(a, soff, nw):
    n = uid()
    a(f"s_mov_b32 s58, 0")
    a.label(f"L_sp{n}")
    a(f"s_load_dwordx8 s[8:15], s[{sWS}:{sWS+1}], s{soff} glc")
    a(f"s_waitcnt lgkmcnt(0)")
    if nw == 7: a(f"s_mov_b32 s15, s{sE}")
    for i in range(4): a(f"s_xor_b64 s[{8+2*i}:{9+2*i}], s[{8+2*i}:{9+2*i}], s[{sE}:{sE+1}]")
    a(f"s_or_b64 s[8:9], s[8:9], s[10:11]")
    a(f"s_or_b64 s[12:13], s[12:13], s[14:15]")
    a(f"s_or_b64 s[8:9], s[8:9], s[12:13]")
    a(f"s_cbranch_scc0 L_spd{n}")
    a(f"s_add_u32 s58, s58, 1")
    a(f"s_cmp_lt_u32 s58, 0x40000")
    a(f"s_cbranch_scc1 L_sp{n}")
    a.label(f"L_spd{n}")
def wflag(a, soff, v0, v1):
    a(f"v_mov_b32 v{v0}, 0")
    a(f"v_mov_b32 v{v1}, s{sE}")
    a(f"s_mov_b64 exec, 1")
    a(f"buffer_store_dword v{v1}, v{v0}, {srd(sWS)}, s{soff} offen sc1")
    a(f"s_mov_b64 exec, -1")

def XS(p): return (3 if p == 6 else p % 3) * 16384
WB0, WA0 = 65536, 114688
def WOFF(half, p): return ((p + 1) % 3 if half == 0 else p % 3) * 16384
def WS_(half, p): return (WA0 if half == 0 else WB0) + WOFF(half, p)
CVL = 114688
CB = 18176
HA, HB, U0, U1 = 256, 4736, 8960, 13536
CNT = CVL + 2*CB
EV = {n: 16*i for i, n in enumerate(['A6','B4','B5','B6','WB5','WB6','W2A','PRE','CV0','CV1','CV2','CV3','MP','XP','W2B','WB56'])}
LDS_BYTES = 163840
W2BLK = [0, 1, 5, 2, 6, 3, 4]
NSTG = opt('nstg', 2)
KVL = 3*16384
PST = 3*16384
vL, vH, vCo, vCa, vE = 1, 2, 3, 0, 15
def sig(a, ev):
    a(f"ds_write_b32 v{vCo}, v{vE} offset:{EV[ev]}")
def lread(a, ev, vtmp, own=False):
    a(f"ds_read_b32 v{vtmp}, v{vCo if own else vCa} offset:{EV[ev]}")
def lwait(a, ev, vtmp, own=False, pre=False):
    n = uid()
    if pre:
        a(f"v_cmp_ne_u32 vcc, s{sE}, v{vtmp}")
        a(f"s_cbranch_vccz L_lwd{n}")
    a(f"s_mov_b32 s58, 0")
    a.label(f"L_lw{n}")
    lread(a, ev, vtmp, own)
    a(f"s_waitcnt lgkmcnt(0)")
    a(f"v_cmp_ne_u32 vcc, s{sE}, v{vtmp}")
    a(f"s_cbranch_vccz L_lwd{n}")
    a(f"s_add_u32 s58, s58, 1")
    a(f"s_cmp_lt_u32 s58, 0x400000")
    a(f"s_cbranch_scc0 L_lwd{n}")
    a(f"s_sleep 1")
    a(f"s_branch L_lw{n}")
    a.label(f"L_lwd{n}")
def flag_setup(a):
    a(f"v_lshlrev_b32 v{vH}, 4, v{vL}")
    a(f"s_lshl_b32 s58, s{sA}, 2")
    a(f"s_add_u32 s58, s58, {CNT}")
    a(f"v_mov_b32 v{vCo}, s58")
    a(f"v_and_b32 v{vCa}, 3, v{vL}")
    a(f"v_lshlrev_b32 v{vCa}, 2, v{vCa}")
    a(f"v_add_u32 v{vCa}, {CNT}, v{vCa}")

class Rec:
    def __init__(self): self.l = []
    def __call__(self, t): self.l += [x for x in t.split('\n') if x.strip()]
class VM:
    def __init__(self, a): self.a = a; self.q = []
    def add(self, tag, n=1): self.q += [tag]*n
    def wait(self, *tags):
        idx = max(i for i, t in enumerate(self.q) if t in tags)
        n = len(self.q) - 1 - idx
        assert n <= 63, n
        self.a(f"s_waitcnt vmcnt({n})")
    def drain(self): self.a("s_waitcnt vmcnt(0)")

def prologue(a):
    a(f"s_cmp_ge_u32 s2, 256")
    a(f"s_cbranch_scc1 L_end")
    for n, (r, off, sz) in SRD_INFO.items():
        a(f"s_load_dwordx2 s[{r}:{r+1}], s[0:1], {off}")
    a(f"v_lshrrev_b32 v1, 6, v0")
    a(f"s_and_b32 s{sX}, s2, 7")
    a(f"v_readfirstlane_b32 s{sWV}, v1")
    a(f"s_lshr_b32 s{sSLOT}, s2, 3")
    for n, (r, off, sz) in SRD_INFO.items():
        a(f"s_mov_b32 s{r+2}, {sz}")
        a(f"s_mov_b32 s{r+3}, 0x20000")
    a(f"s_sub_u32 s{sLR}, s{sSLOT}, 4")
    a(f"s_mul_i32 s{sLQ}, s{sLR}, 37")
    a(f"s_lshr_b32 s{sLQ}, s{sLQ}, 8")
    a(f"s_mul_i32 s58, s{sLQ}, 7")
    a(f"s_sub_u32 s{sLR}, s{sLR}, s58")
    a(f"s_and_b32 s{sA}, s{sWV}, 3")
    a(f"s_lshr_b32 s{sI}, s{sX}, 1")
    a(f"s_lshl_b32 s{sI}, s{sI}, 2")
    a(f"s_add_u32 s{sI}, s{sI}, s{sLQ}")
    a(f"s_and_b32 s{sJ}, s{sX}, 1")
    a(f"s_mul_i32 s{sJ}, s{sJ}, 7")
    a(f"s_add_u32 s{sJ}, s{sJ}, s{sLR}")
    a(f"s_lshl_b32 s{sTT}, s{sX}, 2")
    a(f"s_add_u32 s{sTT}, s{sTT}, s{sLQ}")
    a(f"v_and_b32 v1, 63, v0")
    a(f"s_lshl_b32 s{sA4K}, s{sA}, 12")
def rot_setup(a):
    a(f"s_lshl_b32 s3, s{sLQ}, 1")
    a(f"s_add_u32 s3, s3, s{sLR}")
    a(f"s_cmp_ge_u32 s3, 7")
    a(f"s_cselect_b32 s58, 7, 0")
    a(f"s_sub_u32 s3, s3, s58")
    if opt("rot2", 1) == 0: a("s_mov_b32 s3, 0")
def kernarg_wait(a):
    a(f"s_waitcnt lgkmcnt(0)")
    a(f"s_load_dword s{sE}, s[{sWS}:{sWS+1}], 0")
def epoch_hash(a):
    a(f"s_waitcnt lgkmcnt(0)")
    a(f"s_mul_i32 s77, s{sE}, 0x9E3779B1")
    a(f"s_add_u32 s77, s77, 0x7F4A7C15")
    a(f"s_lshr_b32 s{sE}, s77, 15")
    a(f"s_xor_b32 s{sE}, s{sE}, s77")
    a(f"s_and_b32 s{sE}, s{sE}, 0xBFFFBFFF")
    a(f"s_mov_b32 s{sE+1}, s{sE}")
def round_bf16(a, v):
    a(f"v_cvt_pk_bf16_f32 v{v}, v{v}, v{v}")
    a(f"v_lshlrev_b32 v{v}, 16, v{v}")

def spare(a):
    a(f"s_lshl_b32 s60, s{sX}, 2")
    a(f"s_add_u32 s60, s60, s{sSLOT}")
    a("v_lshrrev_b32 v2, 3, v0")
    a("v_and_b32 v3, 7, v0")
    a("v_mul_u32_u24 v4, 896, v2")
    a("v_lshl_add_u32 v4, v3, 4, v4")
    a(f"s_mul_i32 s61, s60, {64*896}")
    kernarg_wait(a)
    for n in range(7): a(f"buffer_load_dwordx4 v[{8+4*n}:{11+4*n}], v4, {srd(sQ)}, s61 offen offset:{128*n}")
    a(f"s_lshr_b32 s62, s{sX}, 1")
    a(f"s_lshl_b32 s62, s62, 2")
    a(f"s_add_u32 s62, s62, s{sSLOT}")
    a(f"s_min_u32 s62, s62, 13")
    a(f"s_cmp_ge_u32 s62, 7")
    a(f"s_cselect_b32 s64, s{sW3}, s{sW1}")
    a(f"s_cselect_b32 s65, s{sW3+1}, s{sW1+1}")
    a(f"s_cselect_b32 s63, 7, 0")
    a(f"s_cselect_b32 s68, {F*16}, 0")
    a(f"s_mov_b32 s66, {D*F*2}")
    a(f"s_mov_b32 s67, 0x20000")
    a(f"s_sub_u32 s63, s62, s63")
    a(f"s_and_b32 s69, s{sX}, 1")
    a(f"s_mul_i32 s69, s69, 7")
    a(f"s_add_u32 s63, s63, s69")
    a("v_lshrrev_b32 v6, 4, v1")
    a("v_and_b32 v5, 15, v1")
    a(f"v_mul_u32_u24 v7, 3584, v6")
    a("v_lshl_add_u32 v7, v5, 4, v7")
    a(f"s_mul_i32 s69, s{sWV}, {56*3584}")
    a(f"s_lshl_b32 s70, s63, 8")
    a(f"s_add_u32 s69, s69, s70")
    for n in range(14):
        a(f"buffer_load_dwordx4 v[{64+4*n}:{67+4*n}], v7, s[64:67], s69 offen")
        a(f"s_add_u32 s69, s69, {4*3584}")
    a("v_lshrrev_b32 v44, 1, v5")
    a("v_and_b32 v45, 1, v5")
    a("v_lshlrev_b32 v45, 4, v45")
    a("v_mov_b32 v46, 0x3f80")
    a("v_lshlrev_b32 v46, v45, v46")
    for dw in range(4):
        a(f"v_cmp_eq_u32 vcc, {dw}, v44")
        a(f"v_cndmask_b32 v{48+dw}, 0, v46, vcc")
    epoch_hash(a)
    a("v_mov_b32 v40, 0\nv_mov_b32 v41, 0\nv_mov_b32 v42, 0\nv_mov_b32 v43, 0")
    a("s_mov_b32 s70, 0x3f803f80")
    a("s_waitcnt vmcnt(14)")
    stamp(a, 2, SMODE)
    for n in range(28):
        a(f"v_dot2_f32_bf16 v{40+2*(n%2)}, v{8+n}, s70, v{40+2*(n%2)}")
        a(f"v_dot2_f32_bf16 v{41+2*(n%2)}, v{8+n}, v{8+n}, v{41+2*(n%2)}")
    a("v_add_f32 v40, v40, v42")
    a("v_add_f32 v41, v41, v43")
    for m in ("quad_perm:[1,0,3,2]", "quad_perm:[2,3,0,1]", "row_half_mirror"):
        a(f"v_add_f32_dpp v40, v40, v40 {m} row_mask:0xf bank_mask:0xf")
        a(f"v_add_f32_dpp v41, v41, v41 {m} row_mask:0xf bank_mask:0xf")
    a(f"v_mul_f32 v40, {fh(1.0/448)}, v40")
    a(f"v_mul_f32 v41, {fh(1.0/448)}, v41")
    a("v_fma_f32 v41, -v40, v40, v41")
    a("v_max_f32 v41, 0, v41")
    round_bf16(a, 40)
    round_bf16(a, 41)
    a(f"v_add_f32 v41, {fh(1e-5)}, v41")
    round_bf16(a, 41)
    a("v_sqrt_f32 v41, v41")
    round_bf16(a, 41)
    a("v_rcp_f32 v41, v41")
    a(f"v_mov_b32 v42, s{sE}")
    a(f"v_mov_b32 v43, 0")
    a("v_lshlrev_b32 v4, 4, v2")
    a(f"s_lshl_b32 s61, s60, 10")
    a(f"s_add_u32 s61, s61, {WS_STATS}")
    a("v_cmp_eq_u32 vcc, 0, v3")
    a("s_and_saveexec_b64 s[72:73], vcc")
    a(f"buffer_store_dwordx4 v[40:43], v4, {srd(sWS)}, s61 offen sc1")
    a("s_mov_b64 exec, s[72:73]")
    for n in range(14):
        a(f"s_waitcnt vmcnt({14-n})")
        c = "0" if n == 0 else "v[52:55]"
        a(f"v_mfma_f32_16x16x32_bf16 v[52:55], v[48:51], v[{64+4*n}:{67+4*n}], {c}")
    stamp(a, 4, SMODE)
    a("v_lshlrev_b32 v4, 5, v5")
    a("v_lshl_add_u32 v4, v6, 4, v4")
    a(f"s_lshl_b32 s61, s{sWV}, 9")
    a("v_add_u32 v4, s61, v4")
    a("v_cmp_gt_u32 vcc, 2, v6")
    a("s_and_saveexec_b64 s[72:73], vcc")
    a("ds_write_b128 v4, v[52:55]")
    a("s_mov_b64 exec, s[72:73]")
    a("s_waitcnt lgkmcnt(0)")
    a("s_barrier")
    stamp(a, 5, SMODE)
    a(f"s_cmp_ge_u32 s{sWV}, 2")
    a("s_cbranch_scc1 L_fin")
    a("v_lshlrev_b32 v4, 2, v0")
    for p in range(8): a(f"ds_read_b32 v{64+p}, v4 offset:{512*p}")
    a("s_waitcnt lgkmcnt(0)")
    for st in (4, 2, 1):
        for p in range(st): a(f"v_add_f32 v{64+p}, v{64+p}, v{64+p+st}")
    a(f"v_and_b32 v70, 0xffff0000, v64")
    a(f"v_sub_f32 v64, v64, v70")
    a(f"v_and_b32 v72, 0xffff0000, v64")
    a(f"v_sub_f32 v64, v64, v72")
    a(f"v_lshrrev_b32 v70, 16, v70")
    a(f"v_or_b32 v40, v70, v72")
    a(f"v_lshrrev_b32 v41, 16, v64")
    a(f"s_lshl_b32 s61, s63, 11")
    a(f"s_add_u32 s61, s61, s68")
    a(f"s_add_u32 s61, s61, {WS_CS}")
    a(f"v_lshlrev_b32 v4, 4, v0")
    a(f"buffer_store_dwordx4 v[40:43], v4, {srd(sWS)}, s61 offen sc1")
    stamp(a, 6, SMODE)
    a(f"s_cmp_lg_u32 s{sWV}, 0")
    a("s_cbranch_scc1 L_fin")
    a(f"s_lshl_b32 s61, s60, 2")
    a(f"s_add_u32 s61, s61, {WS_F2}")
    wflag(a, 61, 2, 3)
    a(f"s_cmp_lg_u32 s60, 0")
    a(f"s_cbranch_scc1 L_fin")
    a(f"v_and_b32 v4, 31, v0")
    a(f"v_lshlrev_b32 v4, 2, v4")
    a(f"s_mov_b32 s61, {WS_F2}")
    poll(a, 4, 5, 61, sleep=8)
    a(f"s_mov_b32 s61, {WS_F1}")
    a.label("L_sp_ep")
    poll(a, 4, 5, 61, sleep=8)
    a(f"s_add_u32 s61, s61, 512")
    a(f"s_cmp_lt_u32 s61, {WS_F1 + 7*512}")
    a(f"s_cbranch_scc1 L_sp_ep")
    a(f"v_mov_b32 v2, 0")
    a(f"v_mov_b32 v3, s77")
    a(f"s_mov_b64 exec, 1")
    a(f"buffer_store_dword v3, v2, {srd(sWS)}, 0 offen sc1")
    a(f"s_mov_b64 exec, -1")

def w2_setup(a):
    a(f"v_lshrrev_b32 v8, 3, v{vL}")
    a(f"v_and_b32 v9, 7, v{vL}")
    a(f"v_bfe_u32 v10, v{vL}, 4, 1")
    a(f"v_lshlrev_b32 v10, 2, v10")
    a(f"v_xor_b32 v9, v9, v10")
    a(f"v_mul_u32_u24 v8, 896, v8")
    a(f"v_lshl_add_u32 v4, v9, 4, v8")
    for i in range(1, 4): a(f"v_add_u32 v{4+i}, {i*(8*896 - 1024)}, v4")
def rot_pair(a, b):
    a(f"s_add_u32 s58, s{sROT}, {b}")
    a(f"s_cmp_ge_u32 s58, 7")
    a(f"s_cselect_b32 s59, 7, 0")
    a(f"s_sub_u32 s58, s58, s59")
    a(f"s_mul_i32 s59, s{sA}, 7")
    a(f"s_add_u32 s58, s58, s59")
def w2_dma(a, vm, b, typ, blk=None):
    if blk is None: blk = W2BLK[b]
    rot_pair(a, b)
    a(f"s_lshr_b32 s59, s58, 1")
    a(f"s_mul_i32 s59, s59, {128*896}")
    a(f"s_and_b32 s58, s58, 1")
    a(f"s_mul_i32 s58, s58, {32*896}")
    a(f"s_add_u32 s58, s58, s59")
    a(f"s_add_u32 m0, s{sA4K}, {blk*16384}")
    a(f"s_add_u32 s58, s58, s{75+typ}")
    for i in range(4): a(f"buffer_load_dwordx4 v{4+i}, {srd(sW2)}, s58 offen offset:{1024*i} lds")
    vm.add(f'w2_{typ}_{b}', 4)
def tr_setup(a, V):
    a(f"v_bfe_u32 v8, v{vL}, 2, 2")
    a(f"v_lshrrev_b32 v9, 5, v{vL}")
    a(f"v_lshl_add_u32 v10, v9, 2, v8")
    a(f"v_lshlrev_b32 v10, 7, v10")
    a(f"v_bfe_u32 v9, v{vL}, 4, 1")
    a(f"v_lshl_add_u32 v10, v9, 5, v10")
    a(f"v_and_b32 v9, 3, v{vL}")
    a(f"v_lshl_add_u32 v10, v9, 3, v10")
    a(f"v_add_u32 v10, s{sA4K}, v10")
    a(f"v_lshrrev_b32 v8, 1, v8")
    a(f"v_lshl_add_u32 v{V}, v8, 6, v10")
    a(f"v_xor_b32 v8, 1, v8")
    a(f"v_lshl_add_u32 v{V+1}, v8, 6, v10")
    a(f"v_add_u32 v{V+2}, 0x10000, v{V}")
    a(f"v_add_u32 v{V+3}, 0x10000, v{V+1}")
def pair_reads(a, b, blk, V, WR=144):
    for k2 in range(2):
        for ct in range(2):
            for z in range(2):
                base = (V if blk < 4 else V+2) + ct
                o = (blk % 4)*16384 + k2*2048 + z*1024
                f = WR + 8*(2*b + k2) + 4*ct + 2*z
                a(f"ds_read_b64_tr_b16 v[{f}:{f+1}], v{base} offset:{o}")
def stage_read(a, vm, b, blk, V, wait=True):
    vm.wait(f'w2_1_{b}')
    pair_reads(a, b, blk, V)
    if wait: a("s_waitcnt lgkmcnt(0)")

WR, AC, HR, HRN = 144, 80, 16, 16
def g2_setup(a, role):
    a(f"s_mul_i32 s62, s{sTT}, {112*1024}")
    a(f"s_add_u32 s62, s62, {WS_H + role*HTYPE}")
    a(f"s_lshl_b32 s64, s{sTT}, 7")
    a(f"s_lshl_b32 s58, s{sA}, 5")
    a(f"s_add_u32 s64, s64, s58")
    a(f"s_add_u32 s64, s64, {WS_F3 + role*4096}")
def hload(a, vm, j):
    k, tt = j // 2, j % 2
    rg = HR + 4*(j % HRN)
    if j % 4 == 0:
        rot_pair(a, k // 2)
        a(f"s_lshl_b32 s63, s58, 11")
        a(f"s_add_u32 s63, s63, s62")
        a(f"s_add_u32 s61, s63, {56*1024}")
    so = 63 if tt == 0 else 61
    a(f"buffer_load_dwordx4 v[{rg}:{rg+3}], v{vH}, {srd(sWS)}, s{so} offen offset:{1024*(k%2)} sc1")
    vm.add(f'h{j}')
def g2_loop(a, vm, role, hook=None):
    for k in range(14):
        for tt in range(2):
            j = 2*k + tt
            vm.wait(f'h{j}')
            rg = HR + 4*(j % HRN)
            for ct in range(2):
                acc = AC + 32*ct + 16*tt
                c = "0" if k == 0 else f"v[{acc}:{acc+15}]"
                f = WR + 8*k + 4*ct
                a(f"v_mfma_f32_32x32x16_bf16 v[{acc}:{acc+15}], v[{f}:{f+3}], v[{rg}:{rg+3}], {c}")
            if j >= 1 and j - 1 + HRN < 28: hload(a, vm, j - 1 + HRN)
            if hook: hook(j)
def g2_partials(a, role):
    a(f"v_add_u32 v9, s{sA4K}, v{vH}")
    if role == 1: a(f"v_add_u32 v9, 0x10000, v9")
    for th in range(2):
        for kq in range(4):
            base = AC + 32*(kq >> 1) + 16*th + 8*(kq & 1)
            o = kq*16384 + th*2048
            a(f"ds_write_b128 v9, v[{base}:{base+3}] offset:{o}")
            a(f"ds_write_b128 v9, v[{base+4}:{base+7}] offset:{o + 1024}")

def aux(a):
    vm = VM(a)
    sXo, sWo, sMw = 60, 61, 64
    vX = [16, 17, 18, 19]; vW = [20, 21, 22, 23]
    a(f"s_mul_i32 s{sXo}, s{sI}, {128*896}")
    a(f"s_mul_i32 s58, s{sA}, {32*896}")
    a(f"s_add_u32 s{sXo}, s{sXo}, s58")
    a(f"s_lshl_b32 s{sWo}, s{sJ}, 8")
    a(f"s_and_b32 s58, s{sA}, 1")
    a(f"s_mul_i32 s58, s58, {32*3584}")
    a(f"s_add_u32 s{sWo}, s{sWo}, s58")
    a(f"v_lshrrev_b32 v6, 3, v{vL}")
    a(f"v_and_b32 v7, 7, v{vL}")
    a(f"v_lshrrev_b32 v8, 4, v{vL}")
    a(f"v_xor_b32 v9, v7, v8")
    a(f"v_mul_u32_u24 v10, 896, v6")
    a(f"v_lshl_add_u32 v{vX[0]}, v9, 4, v10")
    a(f"v_xor_b32 v9, 4, v9")
    a(f"v_lshl_add_u32 v{vX[1]}, v9, 4, v10")
    a(f"v_add_u32 v{vX[1]}, {8*896-1024}, v{vX[1]}")
    a(f"v_add_u32 v{vX[2]}, {16*896-2048}, v{vX[0]}")
    a(f"v_add_u32 v{vX[3]}, {16*896-2048}, v{vX[1]}")
    a(f"v_and_b32 v9, 1, v8")
    a(f"v_lshlrev_b32 v9, 2, v9")
    a(f"v_xor_b32 v9, v7, v9")
    a(f"v_mul_u32_u24 v11, 3584, v6")
    a(f"v_lshl_add_u32 v{vW[0]}, v9, 4, v11")
    for i in range(1, 4): a(f"v_add_u32 v{vW[i]}, {i*(8*3584-1024)}, v{vW[0]}")
    kernarg_wait(a)
    a(f"s_cmp_ge_u32 s{sA}, 2")
    a(f"s_cselect_b32 s{sW1}, s{sW3}, s{sW1}")
    a(f"s_cselect_b32 s{sW1+1}, s{sW3+1}, s{sW1+1}")
    ROT = opt("rot", 0)
    SL = 66
    def dmaX(p):
        a(f"s_add_u32 m0, s{sA4K}, {XS(p)}")
        if ROT and p:
            a(f"s_lshl_b32 s58, s{SL+p-1}, 7")
            a(f"s_add_u32 s58, s58, s{sXo}")
        else: a(f"s_add_u32 s58, s{sXo}, {128*p}")
        for i in range(4): a(f"buffer_load_dwordx4 v{vX[i]}, {srd(sQ)}, s58 offen offset:{1024*i} lds")
        vm.add(f'X{p}', 4)
    def dmaW(p, half):
        a(f"s_add_u32 m0, s{sA4K}, {WS_(half, p)}")
        if ROT and p:
            a(f"s_mul_i32 s58, s{SL+p-1}, {64*3584}")
            a(f"s_add_u32 s58, s58, s{sWo}")
            if half: a(f"s_add_u32 s58, s58, 128")
        else: a(f"s_add_u32 s58, s{sWo}, {64*3584*p + 128*half}")
        for i in range(4): a(f"buffer_load_dwordx4 v{vW[i]}, {srd(sW1)}, s58 offen offset:{1024*i} lds")
        vm.add(f"W{'AB'[half]}{p}", 4)
    def slab_setup():
        a(f"s_lshl_b32 s58, s{sLQ}, 1")
        a(f"s_cmp_eq_u32 s{sLQ}, 3")
        a(f"s_cselect_b32 s58, 1, s58")
        a(f"s_add_u32 s58, s58, s{sLR}")
        a(f"s_cmp_ge_u32 s58, 6")
        a(f"s_cselect_b32 s59, 6, 0")
        a(f"s_sub_u32 s58, s58, s59")
        a(f"s_add_u32 s{SL}, s58, 1")
        for p in range(2, 7):
            a(f"s_add_u32 s{SL+p-1}, s{SL+p-2}, 1")
            a(f"s_cmp_eq_u32 s{SL+p-1}, 7")
            a(f"s_cselect_b32 s{SL+p-1}, 1, s{SL+p-1}")
    dmaX(0); dmaW(0, 0); dmaW(0, 1)
    if ROT: slab_setup()
    P = 64
    a(f"v_lshl_add_u32 v{P}, v7, 4, v10")
    a(f"v_add_u32 v{P+1}, {8*896-1024}, v{P}")
    a(f"s_mul_i32 s65, s{sTT}, {64*896}")
    a(f"s_lshl_b32 s75, s{sLR}, 7")
    a(f"s_add_u32 s76, s75, {64*896}")
    a(f"s_add_u32 s65, s65, s75")
    a(f"s_mul_i32 s58, s{sA}, {16*896}")
    a(f"s_add_u32 s65, s65, s58")
    a(f"s_lshl_b32 s{sMw}, s{sA}, 11")
    def dmaKV():
        a(f"s_add_u32 m0, s{sMw}, {KVL}")
        for i in range(2): a(f"buffer_load_dwordx4 v{P+i}, {srd(sK)}, s65 offen offset:{1024*i} lds")
        a(f"s_add_u32 m0, s{sMw}, {KVL + 8192}")
        for i in range(2): a(f"buffer_load_dwordx4 v{P+i}, {srd(sV)}, s65 offen offset:{1024*i} lds")
        vm.add('kv', 4)
    dmaKV(); dmaX(1)
    a(f"s_mul_i32 s58, s{sA}, {16*144}")
    a(f"s_add_u32 s58, s58, {PST}")
    a(f"v_mul_u32_u24 v{P+2}, 144, v6")
    a(f"v_lshl_add_u32 v{P+2}, v7, 4, v{P+2}")
    a(f"v_add_u32 v{P+2}, s58, v{P+2}")
    a(f"v_mul_u32_u24 v{P+4}, {RP}, v6")
    a(f"v_lshl_add_u32 v{P+4}, v7, 4, v{P+4}")
    a(f"s_lshl_b32 s72, s{sLR}, 2")
    a(f"s_add_u32 s72, s72, s{sA}")
    a(f"s_mul_i32 s73, s72, {16*RP}")
    a(f"s_lshl_b32 s74, s{sTT}, 7")
    a(f"s_sub_u32 s73, s73, s74")
    a(f"s_add_u32 s73, s73, {WS_R + 1984*2}")
    a(f"s_add_u32 s74, s73, {8*RP}")
    a(f"s_lshl_b32 s72, s72, 7")
    a(f"s_lshl_b32 s58, s{sTT}, 2")
    a(f"s_add_u32 s72, s72, s58")
    a(f"s_add_u32 s72, s72, {WS_F1}")
    rot_setup(a)
    flag_setup(a)
    epoch_hash(a)
    a(f"v_mov_b32 v{vE}, s{sE}")
    stamp(a, 1)
    a(f"v_mov_b32 v{P+5}, v7")
    w2_setup(a)
    tr_setup(a, 40)
    vm.wait('WB0'); a("s_barrier")
    stamp(a, 2)
    dmaW(1, 0); dmaW(1, 1); dmaX(2); dmaW(2, 0)
    vm.wait('WB1'); a("s_barrier")
    dmaW(2, 1); dmaX(3); dmaW(3, 0)
    vm.wait('WB2'); a("s_barrier")
    dmaW(3, 1); dmaX(4); dmaW(4, 0)
    vm.wait('WA3'); a("s_barrier")
    for i in range(2): a(f"ds_read_b128 v[{P+8+4*i}:{P+11+4*i}], v{P+2} offset:{8*144*i}")
    dmaX(5); dmaW(5, 0)
    a("s_waitcnt lgkmcnt(0)")
    for i in range(2): a(f"buffer_store_dwordx4 v[{P+8+4*i}:{P+11+4*i}], v{P+4}, {srd(sWS)}, s{73+i} offen sc1")
    vm.add('R', 2)
    a(f"s_cmp_lg_u32 s{sTT}, 0")
    a("s_cbranch_scc1 L_nopad")
    for i in range(4): a(f"v_mov_b32 v{P+32+i}, 0")
    a(f"v_cmp_eq_u32 vcc, 7, v{P+5}")
    a("s_and_saveexec_b64 s[58:59], vcc")
    a(f"buffer_store_dwordx4 v[{P+32}:{P+35}], v{P+4}, {srd(sWS)}, s73 offen offset:16 sc1")
    a(f"buffer_store_dwordx4 v[{P+32}:{P+35}], v{P+4}, {srd(sWS)}, s74 offen offset:16 sc1")
    a("s_mov_b64 exec, s[58:59]")
    a.label("L_nopad")
    vm.wait('WB3'); a("s_barrier")
    dmaX(6); dmaW(6, 0)
    vm.wait('WA4'); a("s_barrier")
    dmaW(4, 1); dmaW(5, 1)
    vm.wait('R')
    wflag(a, 72, 24, 25); vm.add('f1')
    vm.wait('WA6'); a("s_barrier")
    stamp(a, 3); stamp(a, 1, 2)
    dmaW(6, 1)
    if NSTG: w2_dma(a, vm, 0, 1, 0)
    else: w2_dma(a, vm, 0, 0)
    sCP, sC, sHf, sDch = 74, 65, 66, 67
    a(f"s_mul_i32 s{sCP}, s{sX}, 28")
    a(f"s_add_u32 s{sCP}, s{sCP}, s{sSLOT}")
    a(f"s_sub_u32 s{sCP}, s{sCP}, 4")
    a(f"s_and_b32 s{sC}, s{sA}, 1")
    a(f"s_lshr_b32 s{sHf}, s{sA}, 1")
    a(f"s_lshl_b32 s{sDch}, s{sCP}, 1")
    a(f"s_add_u32 s{sDch}, s{sDch}, s{sC}")
    a(f"v_mov_b32 v24, 0")
    a(f"s_lshl_b32 s58, s{sDch}, 1")
    a(f"buffer_load_ushort v25, v24, {srd(sD)}, s58 offen")
    a(f"s_lshl_b32 s58, s{sDch}, 12")
    a(f"buffer_load_dword v26, v24, {srd(sSK)}, s58 offen")
    vm.add('dh', 2)
    def stage_next(b):
        if b >= NSTG: return
        stage_read(a, vm, b, 0, 40)
        if b + 1 < NSTG: w2_dma(a, vm, b + 1, 1, 0)
        else: w2_dma(a, vm, 0, 0)
    a(f"s_lshr_b32 s68, s{sCP}, 3")
    a(f"s_lshl_b32 s68, s68, 7")
    a(f"s_add_u32 s68, s68, {WS_F1}")
    a(f"v_and_b32 v33, 31, v{vL}")
    a(f"v_lshlrev_b32 v33, 2, v33")
    a(f"s_lshl_b32 s69, s{sDch}, 12")
    a(f"s_lshl_b32 s58, s{sHf}, 2")
    a(f"s_add_u32 s69, s69, s58")
    a(f"s_mul_i32 s70, s{sDch}, {RP}")
    a(f"s_add_u32 s70, s70, {WS_R + 2}")
    a(f"s_lshl_b32 s58, s{sHf}, 1")
    a(f"s_sub_u32 s70, s70, s58")
    a(f"s_mul_i32 s71, s{sC}, {CB}")
    a(f"s_add_u32 s71, s71, {CVL}")
    a(f"s_mul_i32 s72, s{sHf}, {HB - HA}")
    a(f"s_add_u32 s72, s72, s71")
    a(f"s_add_u32 s72, s72, {HA}")
    a(f"s_mul_i32 s73, s{sHf}, {U1 - U0}")
    a(f"s_add_u32 s73, s73, s71")
    a(f"s_add_u32 s73, s73, {U0}")
    for i in range(4): a(f"v_mov_b32 v{28+i}, 0")
    a(f"s_sub_u32 s58, s72, 256")
    a(f"v_add_u32 v27, s58, v{vH}")
    a(f"s_add_u32 s58, s73, {4096 - 256}")
    a(f"v_add_u32 v32, s58, v{vH}")
    a(f"v_cmp_gt_u32 vcc, 16, v{vL}")
    a(f"v_cndmask_b32 v27, v32, v27, vcc")
    vm.wait('WB6'); sig(a, 'WB56')
    stamp(a, 2, 2)
    poll_issue(a, 33, 35, 68); vm.add('p1')
    stage_next(0)
    vm.wait('p1')
    poll_check(a, 33, 35, 68)
    stamp(a, 3, 2)
    lwait(a, 'A6', 34)
    stamp(a, 4, 2)
    a(f"s_mov_b32 m0, s72")
    for n in range(4): a(f"buffer_load_dwordx4 v{vH}, {srd(sSK)}, s69 offen offset:{1024*n} lds")
    a(f"s_mov_b32 m0, s73")
    for n in range(4): a(f"buffer_load_dwordx4 v{vH}, {srd(sWS)}, s70 offen offset:{1024*n} sc1 lds")
    vm.add('cvu', 8)
    a(f"v_cmp_gt_u32 vcc, 44, v{vL}")
    a(f"s_and_saveexec_b64 s[58:59], vcc")
    a(f"ds_write_b128 v27, v[28:31]")
    a(f"s_mov_b64 exec, s[58:59]")
    a(f"s_lshl_b32 s58, s{sHf}, 2")
    a(f"s_sub_u32 s58, s72, s58")
    a(f"s_sub_u32 s58, s58, 192")
    a(f"v_mov_b32 v27, s58")
    a(f"ds_write_b32 v27, v25")
    a(f"s_cmp_eq_u32 s{sHf}, 0")
    a(f"s_cbranch_scc1 L_cv_nofix")
    a(f"ds_write_b32 v27, v26 offset:192")
    a.label("L_cv_nofix")
    stage_next(1)
    stamp(a, 4); stamp(a, 5, 2)
    lwait(a, 'B4', 34); stamp(a, 6, 2)
    w2_dma(a, vm, 1, 0); w2_dma(a, vm, 2, 0)
    stage_next(2)
    assert NSTG <= 3
    vA, vB, vDl = 8, 9, 11
    a(f"v_and_b32 v12, 15, v{vL}")
    a(f"v_lshrrev_b32 v13, 4, v{vL}")
    a(f"v_and_b32 v14, 1, v12")
    a(f"v_mov_b32 v17, {HB - 4 - 60 - 192}")
    a(f"v_mov_b32 v16, {HA - 60 - 192}")
    a(f"v_cmp_eq_u32 vcc, 1, v14")
    a(f"v_cndmask_b32 v17, v17, v16, vcc")
    a(f"v_lshl_add_u32 v17, v12, 2, v17")
    a(f"v_lshl_add_u32 v17, v13, 4, v17")
    a(f"v_add_u32 v17, s71, v17")
    a(f"s_lshl_b32 s72, s{sHf}, 8")
    a(f"v_add_u32 v{vA}, s72, v17")
    a(f"s_add_u32 s58, s71, {U0 + 4096}")
    a(f"v_mov_b32 v16, s58")
    a(f"s_cmp_eq_u32 s{sHf}, 0")
    a(f"s_cselect_b64 vcc, -1, 0")
    a(f"v_cndmask_b32 v{vDl}, v16, v17, vcc")
    a(f"v_mov_b32 v17, {U0 + 448}")
    a(f"v_mov_b32 v16, {U1 + 448}")
    a(f"v_cmp_eq_u32 vcc, 1, v14")
    a(f"v_cndmask_b32 v17, v17, v16, vcc")
    a(f"v_lshrrev_b32 v16, 1, v12")
    a(f"v_lshlrev_b32 v16, 6, v16")
    a(f"v_sub_u32 v17, v17, v16")
    a(f"v_lshl_add_u32 v17, v13, 4, v17")
    a(f"s_add_u32 s72, s72, s71")
    a(f"v_add_u32 v{vB}, s72, v17")
    stamp(a, 7, 2)
    vm.wait('cvu'); sig(a, 'CV0')
    lwait(a, 'CV0', 34)
    stamp(a, 5); stamp(a, 8, 2)
    ACC = 16; HI = 48; LOW = [80, 112]; DL = 252
    def Areg(p, it): return (LOW[it % 2] + 4*p) if p < 4 else (HI + 4*(p-4))
    def Breg(q, it): return (LOW[it % 2] + 16 + 4*q) if q < 4 else (HI + 16 + 4*(q-4))
    def rdA(p, it):
        rg = Areg(p, it); o = 192 + 512*p + 64*it
        return [f"ds_read_b64 v[{rg}:{rg+1}], v{vA} offset:{o}", f"ds_read_b64 v[{rg+2}:{rg+3}], v{vA} offset:{o+8}"]
    def rdB(q, it):
        rg = Breg(q, it); o = 3584 - 512*q + 64*it
        return [f"ds_read_b128 v[{rg}:{rg+3}], v{vB} offset:{o}"]
    def cmf(T, A, B, first=False):
        c = "0" if first else f"v[{ACC+4*T}:{ACC+4*T+3}]"
        return f"v_mfma_f32_16x16x32_bf16 v[{ACC+4*T}:{ACC+4*T+3}], v[{A}:{A+3}], v[{B}:{B+3}], {c}"
    a(f"ds_read_b64 v[{DL}:{DL+1}], v{vDl}")
    a(f"ds_read_b64 v[{DL+2}:{DL+3}], v{vDl} offset:8")
    for p in range(4):
        for rr in rdA(p, 0) + rdB(p, 0): a(rr)
    for it in range(4):
        a("s_waitcnt lgkmcnt(0)")
        if it == opt("i6", 1):
            lwait(a, 'B6', 10)
            w2_dma(a, vm, 5, 0); w2_dma(a, vm, 6, 0)
        if it == opt("i6", 1) + 1:
            vm.drain(); sig(a, 'W2A')
        rd = []
        for p in range(4, 8): rd += rdA(p, it) + rdB(p, it)
        ms = []
        if it == 0: ms += [cmf(T, DL, Breg(T, 0), True) for T in range(4)]
        seen = set(range(4)) if it == 0 else set(range(8))
        for p in range(4):
            for q in range(4):
                T = p + q
                ms.append(cmf(T, Areg(p, it), Breg(q, it), T not in seen)); seen.add(T)
        for k, m in enumerate(ms):
            a(m)
            if k < len(rd): a(rd[k])
        a("s_waitcnt lgkmcnt(0)")
        if it == 0:
            lwait(a, 'B5', 10)
            w2_dma(a, vm, 3, 0); w2_dma(a, vm, 4, 0)
        if it == 3: sig(a, 'CV1')
        rd = []
        if it < 3:
            for p in range(4): rd += rdA(p, it+1) + rdB(p, it+1)
        ms = []
        for hp in range(4, 8):
            for l in range(0, 8 - hp):
                T = hp + l
                ms.append(cmf(T, Areg(hp, it), Breg(l, it), T not in seen)); seen.add(T)
                ms.append(cmf(T, Areg(l, it), Breg(hp, it)))
        if it == 0: ms += [cmf(T, DL, Breg(T, 0)) for T in range(4, 8)]
        if it == 3:
            r = Rec()
            r(f"s_lshl_b32 s73, s{sA}, 13")
            r(f"s_add_u32 s73, s73, {CVL}")
            r(f"v_add_u32 v8, s73, v{vH}")
            r(f"s_lshl_b32 s73, s{sA}, 11")
            r(f"s_add_u32 s73, s73, {CVL}")
            r(f"v_add_u32 v5, s73, v{vH}")
            r(f"v_lshrrev_b32 v9, 1, v12")
            r(f"v_lshlrev_b32 v9, 7, v9")
            r(f"v_lshl_add_u32 v9, v13, 5, v9")
            r(f"v_lshl_add_u32 v9, v14, 4, v9")
            r(f"s_lshl_b32 s73, s{sCP}, 13")
            r(f"s_lshl_b32 s58, s{sA}, 11")
            r(f"s_add_u32 s73, s73, s58")
            r(f"s_add_u32 s73, s73, {WS_Y}")
            r(f"ds_read_b32 v10, v{vCa} offset:{EV['CV1']}")
            rd = r.l
        for k, m in enumerate(ms):
            a(m)
            if k < len(rd): a(rd[k])
    stamp(a, 6)
    vm.q = []
    a("s_waitcnt lgkmcnt(0)")
    a("s_nop 3")
    lwait(a, 'CV1', 10, pre=True)
    for T in range(8): a(f"ds_write_b128 v8, v[{ACC+4*T}:{ACC+4*T+3}] offset:{1024*T}")
    sig(a, 'CV2')
    g2_setup(a, 1)
    a(f"s_lshr_b32 s65, s{sCP}, 5")
    a(f"s_lshl_b32 s65, s65, 9")
    a(f"s_lshl_b32 s58, s{sA}, 7")
    a(f"s_add_u32 s65, s65, s58")
    a(f"s_and_b32 s58, s{sCP}, 31")
    a(f"s_lshl_b32 s58, s58, 2")
    a(f"s_add_u32 s65, s65, s58")
    a(f"s_add_u32 s65, s65, {WS_F4}")
    lwait(a, 'CV2', 10)
    for t2 in range(2):
        for w in range(4): a(f"ds_read_b128 v[{80+16*t2+4*w}:{83+16*t2+4*w}], v5 offset:{8192*w + 1024*t2}")
    sig(a, 'CV3')
    a(f"s_waitcnt lgkmcnt(0)")
    for t2 in range(2):
        b = 80 + 16*t2
        for rr in range(4):
            a(f"v_add_f32 v{b+rr}, v{b+rr}, v{b+8+rr}")
            a(f"v_add_f32 v{b+4+rr}, v{b+4+rr}, v{b+12+rr}")
        for rr in range(4): a(f"v_cvt_pk_bf16_f32 v{b+8+rr}, v{b+rr}, v{b+4+rr}")
        a(f"buffer_store_dwordx4 v[{b+8}:{b+11}], v9, {srd(sWS)}, s73 offen offset:{1024*t2} sc1")
    vm.add('y', 2)
    spoll(a, 64, 7)
    stamp(a, 7)
    for j in range(HRN): hload(a, vm, j)
    tr_setup(a, 4)
    vm.wait('y')
    wflag(a, 65, 8, 9); vm.add('f4')
    lwait(a, 'W2B', 10, own=True)
    for b in range(NSTG, 7): pair_reads(a, b, W2BLK[b], 4)
    sig(a, 'PRE')
    lread(a, 'CV3', 11)
    a("s_waitcnt lgkmcnt(0)")
    g2_loop(a, vm, 1)
    stamp(a, 8)
    a("s_nop 7")
    lwait(a, 'CV3', 11, pre=True)
    g2_partials(a, 1)
    sig(a, 'XP')
    stamp(a, 9)
    a("s_branch L_fin")

def cost(s):
    m = s.split()[0]
    return 8 if m in TRANS else 4
def mwave(a):
    vm = VM(a)
    sTH, sCH = 60, 61
    a(f"s_setprio {opt('prio', 2)}")
    a(f"s_and_b32 s{sTH}, s{sA}, 1")
    a(f"s_lshr_b32 s{sCH}, s{sA}, 1")
    vXa = [4, 5, 6, 7]; vWa = [8, 9]
    a(f"v_and_b32 v10, 31, v{vL}")
    a(f"v_lshrrev_b32 v11, 5, v{vL}")
    P = 16
    KR, VR, SHR, HLO = P+4, P+16, P+24, P+1
    a(f"s_lshl_b32 s74, s{sLR}, 9")
    a(f"v_lshlrev_b32 v13, 4, v10")
    a(f"s_mul_i32 s73, s{sTT}, {64*896}")
    a(f"s_lshl_b32 s58, s{sLR}, 7")
    a(f"s_add_u32 s73, s73, s58")
    a(f"s_sub_u32 s73, s73, 2688")
    a(f"s_cmp_eq_u32 s{sTT}, 0")
    a(f"s_cselect_b32 s73, 0x40000000, s73")
    a(f"v_lshlrev_b32 v12, 2, v10")
    kernarg_wait(a)
    a(f"buffer_load_dwordx4 v[{SHR}:{SHR+3}], v13, {srd(sSH)}, s74 offen")
    a(f"s_cmp_lg_u32 s{sA}, 0")
    a(f"s_cbranch_scc1 L_nohalo")
    for j in range(3): a(f"buffer_load_dword v{HLO+j}, v12, {srd(sK)}, s73 offen offset:{896*j}")
    a.label("L_nohalo")
    if opt("tlb", 1):
        a(f"s_cmp_lg_u32 s{sA}, 1")
        a(f"s_cbranch_scc1 L_notouch")
        a(f"v_mov_b32 v48, 0")
        a(f"s_mov_b64 exec, 1")
        for r_ in (sSK, sD, sW2, sO, sWS):
            a(f"buffer_load_dword v49, v48, {srd(r_)}, 0 offen offset:{512 if r_ == sWS else 0}")
        a(f"s_mov_b64 exec, -1")
        a.label("L_notouch")
    a(f"v_bfe_u32 v14, v10, 1, 3")
    a(f"v_xor_b32 v14, v14, v11")
    a(f"s_lshl_b32 s58, s{sTH}, 13")
    a(f"v_lshlrev_b32 v48, 7, v10")
    a(f"v_add_u32 v48, s58, v48")
    for ks in range(4):
        a(f"v_xor_b32 v49, {2*ks}, v14")
        a(f"v_lshl_add_u32 v{vXa[ks]}, v49, 4, v48")
    a(f"v_bfe_u32 v14, v{vL}, 2, 2")
    a(f"v_lshl_add_u32 v48, v11, 3, v14")
    a(f"v_lshlrev_b32 v48, 7, v48")
    a(f"v_lshrrev_b32 v14, 1, v14")
    a(f"v_xor_b32 v14, s{sCH}, v14")
    a(f"v_lshl_add_u32 v48, v14, 6, v48")
    a(f"v_bfe_u32 v14, v{vL}, 4, 1")
    a(f"v_lshl_add_u32 v48, v14, 5, v48")
    a(f"v_and_b32 v14, 3, v{vL}")
    a(f"v_lshl_add_u32 v48, v14, 3, v48")
    a(f"v_add_u32 v{vWa[0]}, {WA0}, v48")
    a(f"v_add_u32 v{vWa[1]}, {WB0}, v48")
    flag_setup(a)
    rot_setup(a)
    a(f"s_lshl_b32 s67, s{sI}, 1")
    a(f"s_add_u32 s67, s67, s{sTH}")
    a(f"s_lshl_b32 s62, s67, 10")
    a(f"s_add_u32 s62, s62, {WS_STATS}")
    a(f"s_lshl_b32 s63, s{sJ}, 11")
    a(f"s_lshl_b32 s58, s{sCH}, 9")
    a(f"s_add_u32 s63, s63, s58")
    a(f"s_add_u32 s63, s63, {WS_CS}")
    a(f"s_add_u32 s64, s63, {F*16}")
    a(f"s_lshl_b32 s66, s{sJ}, 1")
    a(f"s_add_u32 s66, s66, s{sCH}")
    a(f"s_mul_i32 s68, s67, 56")
    a(f"s_add_u32 s68, s68, s66")
    a(f"s_lshl_b32 s68, s68, 11")
    a(f"s_add_u32 s68, s68, {WS_H}")
    a(f"s_add_u32 s69, s68, {56*1024}")
    a(f"s_add_u32 s70, s68, {HTYPE}")
    a(f"s_add_u32 s71, s69, {HTYPE}")
    a(f"s_mul_i32 s58, s66, 37")
    a(f"s_lshr_b32 s58, s58, 8")
    a(f"s_add_u32 s66, s66, s58")
    a(f"s_lshl_b32 s72, s67, 7")
    a(f"s_lshl_b32 s66, s66, 2")
    a(f"s_add_u32 s72, s72, s66")
    a(f"s_add_u32 s72, s72, {WS_F3}")
    a(f"s_add_u32 s65, s72, 4096")
    a(f"s_lshl_b32 s58, s{sA}, 11")
    a(f"s_add_u32 s58, s58, {KVL - 384}")
    a(f"v_lshl_add_u32 v14, v11, 10, v12")
    a(f"v_add_u32 v14, s58, v14")
    a(f"v_mul_u32_u24 v{P}, 288, v10")
    a(f"v_lshlrev_b32 v48, 4, v11")
    a(f"v_sub_u32 v{P}, v{P}, v48")
    a(f"s_lshl_b32 s58, s{sA}, 5")
    a(f"s_sub_u32 s58, {PST + 112}, s58")
    a(f"v_add_u32 v{P}, s58, v{P}")
    a(f"s_cmp_eq_u32 s{sA}, 0")
    a(f"s_cselect_b32 s74, -1, 0")
    a(f"s_mov_b32 s75, 0")
    r = Rec()
    for j in range(11): r(f"ds_read_b32 v{KR+j}, v14 offset:{128*j}")
    for j in range(8): r(f"ds_read_b32 v{VR+j}, v14 offset:{8192 + 384 + 128*j}")
    r(";GAP"); r(";GAP"); r(";GAP")
    r("s_waitcnt vmcnt(0) lgkmcnt(0)")
    for j in range(3): r(f"v_cndmask_b32 v{KR+j}, v{KR+j}, v{HLO+j}, s[74:75]")
    for h in range(2):
        un = lo if h == 0 else hi
        T = P + 28; O = T + 16; R_ = O + 8
        for j in range(11): un(r, T+j, KR+j)
        lo(r, T+11, SHR+2*h); hi(r, T+12, SHR+2*h); lo(r, T+13, SHR+1+2*h); hi(r, T+14, SHR+1+2*h)
        for t in range(8): r(f"v_mul_f32 v{O+t}, v{T+14}, v{T+t}")
        for t in range(8): r(f"v_fmac_f32 v{O+t}, v{T+13}, v{T+1+t}")
        for t in range(8): r(f"v_fmac_f32 v{O+t}, v{T+12}, v{T+2+t}")
        for t in range(8): r(f"v_fmac_f32 v{O+t}, v{T+11}, v{T+3+t}")
        for j in range(8): un(r, T+j, VR+j)
        for t in range(8): r(f"v_mul_f32 v{O+t}, v{O+t}, v{T+t}")
        for p in range(4): r(f"v_cvt_pk_bf16_f32 v{R_+4*h+p}, v{O+7-2*p}, v{O+6-2*p}")
    r(";AFTER2")
    for h in range(2): r(f"ds_write_b128 v{P}, v[{R_+4*h}:{R_+4*h+3}] offset:{144*h}")
    prep_side = r.l
    epoch_hash(a)
    a(f"v_mov_b32 v{vE}, s{sE}")
    stamp(a, 1)
    ACCB = {(0,0): 128, (0,1): 160, (1,0): 192, (1,1): 224}
    CSF = {(0,0): 48, (0,1): 52, (1,0): 56, (1,1): 60}
    MF = [64, 68]
    ST = [72, 76]
    def epilogue(r, half):
        for tt in range(2):
            nrs = ST[tt] + 1
            G = ACCB[(half, 0)] + 16*tt; U = ACCB[(half, 1)] + 16*tt
            for kp in range(2):
                T = 20 + 8*((2*tt + kp) % 2)
                g = lambda e8: G + 8*kp + e8
                u = lambda e8: U + 8*kp + e8
                for e8 in range(10):
                    if e8 < 8: r(f"v_mul_f32 v{T+e8}, v{nrs}, v{g(e8)}")
                    if 1 <= e8 < 9:
                        r(f"v_exp_f32 v{T+e8-1}, v{T+e8-1}")
                        r(f"v_mul_f32 v{g(e8-1)}, v{g(e8-1)}, v{u(e8-1)}")
                    if 2 <= e8:
                        r(f"v_add_f32 v{T+e8-2}, 1.0, v{T+e8-2}")
                for e8 in range(9):
                    if e8 < 8: r(f"v_rcp_f32 v{T+e8}, v{T+e8}")
                    if e8 >= 1:
                        r(f"v_mul_f32 v{g(e8-1)}, v{g(e8-1)}, v{T+e8-1}")
                        if e8 % 2 == 0: r(f"v_cvt_pk_bf16_f32 v{U+8*kp+(e8-2)//2}, v{g(e8-2)}, v{g(e8-1)}")
                r(f";Q{half}{tt}{kp}")
        for tt in range(2):
            U = ACCB[(half, 1)] + 16*tt
            for kp in range(2):
                r(f"buffer_store_dwordx4 v[{U+8*kp}:{U+8*kp+3}], v{vH}, {srd(sWS)}, s{68 + 2*half + tt} offen offset:{1024*kp} sc1")
                r(f";ST{half}{tt}{kp}")
    def opnd_loads():
        for tt in range(2): a(f"buffer_load_dwordx4 v[{ST[tt]}:{ST[tt]+3}], v13, {srd(sWS)}, s62 offen offset:{512*tt} sc1")
        for h in range(2):
            for m in range(2):
                a(f"buffer_load_dwordx4 v[{CSF[(h,m)]}:{CSF[(h,m)]+3}], v13, {srd(sWS)}, s{63+m} offen offset:{1024*h} sc1")
    def fold(half):
        for m in range(2):
            for tt in range(2):
                acc = ACCB[(half, m)] + 16*tt; f = CSF[(half, m)]
                a(f"v_mfma_f32_32x32x16_bf16 v[{acc}:{acc+15}], v[{f}:{f+3}], v[{MF[tt]}:{MF[tt]+3}], v[{acc}:{acc+15}]")
    units = [('F',0),('F',1),('F',2),('A',3),('B',3),('A',4),('A',5),('A',6),('B',4),('B',5),('B',6)]
    FL = {8: 'WB56'}
    NBAR = 7
    mf = []; frags = {}; order = []; started = set()
    for ui, (ty, p) in enumerate(units):
        halves = (0, 1) if ty == 'F' else (0,) if ty == 'A' else (1,)
        for ks in range(4):
            def fx(tt):
                n = ('X', ui, ks, tt)
                if n not in frags:
                    frags[n] = (ui, [f"ds_read_b128 v[{{r0}}:{{r3}}], v{vXa[ks]} offset:{XS(p) + tt*4096}"]); order.append(n)
                return n
            def fw(h, m):
                n = ('W', ui, ks, h, m)
                if n not in frags:
                    o = WOFF(h, p) + m*8192 + ks*2048
                    frags[n] = (ui, [f"ds_read_b64_tr_b16 v[{{r0}}:{{r1}}], v{vWa[h]} offset:{o}",
                                     f"ds_read_b64_tr_b16 v[{{r2}}:{{r3}}], v{vWa[h]} offset:{o + 512}"]); order.append(n)
                return n
            for h in halves:
                for m in range(2):
                    for tt in range(2):
                        w = fw(h, m); x = fx(tt)
                        mf.append((ui, ACCB[(h, m)] + 16*tt, w, x))
    last_use = {}
    for i, (_, _, w, x) in enumerate(mf): last_use[w] = i; last_use[x] = i
    free = [80 + 4*i for i in range(12)]
    reg = {}; read_end = {}
    st = dict(lds=0, done=0, qi=0, unit=-1, since=99, i=-1, gap=0, flagread=None)
    rtime = []; side = []
    def lds_op(text, late=False):
        a(text); st['lds'] += 1; rtime.append(st['i'] + (100 if late else 0)); st['gap'] += 4
    def issue_reads(maxn):
        n = 0
        while st['qi'] < len(order) and n < maxn and free:
            nme = order[st['qi']]; ui, tmpl = frags[nme]
            if ui > st['unit']:
                if ui == 3 and side: return
                if ui in FL and st['flagread'] != ui:
                    lds_op(f"ds_read_b32 v14, v{vCa} offset:{EV[FL[ui]]}")
                    st['flagread'] = ui; st['since'] = 0
                if ui < NBAR or ui in FL:
                    if st['since'] < 3: return
                    a("s_waitcnt lgkmcnt(0)"); st['done'] = st['lds']
                if ui < NBAR: a("s_barrier")
                if ui >= 8: lds_op(f"ds_write_b32 v{vCo}, v{vE} offset:{EV[['A6','B4','B5'][ui-8]]}", True)
                if ui in FL: lwait(a, FL[ui], 14, pre=True)
                st['unit'] = ui
                stamp(a, min(ui + 1, 9), 1) if ui != 4 else None
                on_unit(ui)
            r0 = free.pop(0); reg[nme] = r0
            for t in tmpl:
                lds_op(t.format(r0=r0, r1=r0+1, r2=r0+2, r3=r0+3)); n += 1
            read_end[nme] = st['lds']; st['qi'] += 1; st['since'] = 0
            if st['qi'] == len(order): lds_op(f"ds_write_b32 v{vCo}, v{vE} offset:{EV['B6']}", True)
    def on_unit(ui):
        if ui == 0: stamp(a, 2)
        if ui == 1: side.extend(prep_side)
        if ui == 4: side.extend(f"v_mov_b32 v{r_}, 0" for r_ in (66, 67, 70, 71))
        if ui == opt("opu", 6): opnd_loads()
    issue_reads(12)
    firstB4 = next(i for i, m in enumerate(mf) if m[0] == 8)
    BUD = opt("bud", 24)
    def run_side(budget):
        while side:
            s_ = side[0]
            if s_.startswith(";ST"):
                side.pop(0); vm.add('hA'); continue
            if s_.startswith(";Q"): side.pop(0); continue
            if s_.startswith("buffer_store"): side.pop(0); a(s_); continue
            if s_ == ";GAP": side.pop(0); return
            if s_ == ";AFTER2":
                if st['unit'] < 2: return
                side.pop(0); continue
            c = cost(s_)
            if st['gap'] + c > budget and st['gap'] > 0: return
            side.pop(0)
            if s_.startswith("ds_"): lds_op(s_, True)
            else:
                a(s_); st['gap'] += c
                if "lgkmcnt(0)" in s_: st['done'] = st['lds']
    for i, (ui, acc, w, x) in enumerate(mf):
        while w not in reg or x not in reg:
            st['since'] = 99; st['gap'] = 0; run_side(1000 if ui == 3 else 0); issue_reads(2)
        need = max(read_end[w], read_end[x])
        if need > st['done']:
            old = [k+1 for k, t in enumerate(rtime) if t <= i - 4]
            need = max([need] + old)
            n = st['lds'] - need
            a(f"s_waitcnt lgkmcnt({min(n, 14)})"); st['done'] = st['lds'] - min(n, 14)
        st['i'] = i; st['gap'] = 0
        c = f"v[{acc}:{acc+15}]" if acc in started else "0"; started.add(acc)
        a(f"v_mfma_f32_32x32x16_bf16 v[{acc}:{acc+15}], v[{reg[w]}:{reg[w]+3}], v[{reg[x]}:{reg[x]+3}], {c}")
        st['since'] += 1
        for f in (w, x):
            if last_use[f] == i: free.append(reg[f])
        issue_reads(2)
        if i == firstB4 - 1:
            assert not side
            a("s_mov_b32 s59, 0")
            a.label("L_opnd")
            a("s_waitcnt vmcnt(0)")
            a(f"v_cmp_ne_u32 vcc, s{sE}, v{ST[0]+2}")
            for rg in (ST[1], 48, 52, 56, 60):
                a(f"v_cmp_ne_u32 s[74:75], s{sE}, v{rg+2}")
                a(f"s_or_b64 vcc, vcc, s[74:75]")
            a("s_cbranch_vccz L_opnd_ok")
            a("s_add_u32 s59, s59, 1")
            a("s_cmp_lt_u32 s59, 0x40000")
            a("s_cbranch_scc0 L_opnd_ok")
            a("s_sleep 4")
            opnd_loads()
            a("s_branch L_opnd")
            a.label("L_opnd_ok")
            a(f"v_cmp_gt_u32 vcc, 32, v{vL}")
            for tt in range(2):
                a(f"v_xor_b32 v{ST[tt]}, 0x80000000, v{ST[tt]}")
                a(f"v_cndmask_b32 v{ST[tt]}, 0, v{ST[tt]}, vcc")
                a(f"v_lshrrev_b32 v{MF[tt]+1}, 16, v{ST[tt]}")
                a(f"v_or_b32 v{MF[tt]}, v{MF[tt]+1}, v{ST[tt]}")
                a(f"v_mul_f32 v{ST[tt]+1}, {fh(-1.4426950408889634)}, v{ST[tt]+1}")
            fold(0); fold(1)
            stamp(a, 3)
            r = Rec(); epilogue(r, 0); side.extend(r.l)
        run_side(BUD)
    st['gap'] = 0; run_side(100000)
    stamp(a, 4)
    r = Rec(); epilogue(r, 1)
    for s_ in r.l:
        if s_.startswith(";ST"):
            vm.add('hB'); continue
        if s_.startswith(";Q"):
            if s_ == ";Q1" + ("00", "01", "10", "11")[opt("fa", 3)]:
                vm.wait('hA'); wflag(a, 72, 44, 45); vm.add('fA')
            continue
        a(s_)
    stamp(a, 5)
    a(f"s_setprio {opt('prio2', 0)}")
    g2_setup(a, 0)
    tr_setup(a, 11)
    w2_setup(a)
    a(f"s_lshl_b32 s75, s{sLR}, 7")
    a(f"s_add_u32 s76, s75, {64*896}")
    lwait(a, 'W2A', 8, own=True)
    for b in range(7): pair_reads(a, b, W2BLK[b], 11)
    a("s_waitcnt lgkmcnt(0)")
    stamp(a, 6)
    NB1 = opt("nb1", 2)
    for b in range(NSTG, NSTG + NB1): w2_dma(a, vm, b, 1)
    vm.wait('hB')
    wflag(a, 65, 8, 9); vm.add('fB')
    spoll(a, 64, 7)
    for j in range(HRN): hload(a, vm, j)
    for b in range(NSTG + NB1, 7): w2_dma(a, vm, b, 1)
    stamp(a, 7)
    E0 = 144
    def hook(j):
        if j == HRN: sig(a, 'W2B')
        if j == 15:
            a(f"v_and_b32 v6, 31, v{vL}")
            a(f"v_lshrrev_b32 v7, 5, v{vL}")
            a(f"s_lshl_b32 s68, s{sTT}, 6")
            a(f"v_add_u32 v6, s68, v6")
            a(f"v_lshlrev_b32 v4, 4, v6")
            a(f"s_mov_b32 s71, {WS_STATS}")
            for th in range(2): a(f"buffer_load_dwordx2 v[{E0+2*th}:{E0+1+2*th}], v4, {srd(sWS)}, s71 offen offset:{512*th} sc1")
            a(f"v_mul_u32_u24 v4, 896, v6")
            a(f"v_lshl_add_u32 v4, v7, 4, v4")
            a(f"s_lshl_b32 s71, s{sLR}, 7")
            a(f"s_lshl_b32 s73, s{sA}, 5")
            a(f"s_add_u32 s71, s71, s73")
            a(f"s_add_u32 s72, s71, {32*896}")
            for th in range(2): a(f"buffer_load_dwordx4 v[{E0+4+4*th}:{E0+7+4*th}], v4, {srd(sQ)}, s{71+th} offen")
            vm.add('e', 4)
            a(f"v_and_b32 v5, 0x7f8, v6")
            a(f"v_and_b32 v9, 1, v6")
            a(f"v_lshl_add_u32 v5, v9, 2, v5")
            a(f"v_bfe_u32 v9, v6, 1, 2")
            a(f"v_add_u32 v5, v5, v9")
            a(f"v_lshlrev_b32 v5, 2, v5")
            a(f"v_lshl_add_u32 v5, v7, 15, v5")
            a(f"s_lshl_b32 s73, s{sLR}, 5")
            a(f"s_lshl_b32 s75, s{sA}, 3")
            a(f"s_add_u32 s73, s73, s75")
            a(f"s_lshl_b32 s73, s73, 13")
            a(f"s_add_u32 s73, s73, {WS_Y}")
            a(f"s_lshl_b32 s75, s{sLR}, 9")
            a(f"s_lshr_b32 s76, s{sTT}, 3")
            a(f"s_lshl_b32 s76, s76, 7")
            a(f"s_add_u32 s75, s75, s76")
            a(f"s_lshl_b32 s76, s{sA}, 5")
            a(f"s_add_u32 s75, s75, s76")
            a(f"s_add_u32 s75, s75, {WS_F4}")
    g2_loop(a, vm, 0, hook)
    stamp(a, 8)
    a("s_nop 7")
    lwait(a, 'PRE', 8, own=True)
    g2_partials(a, 0)
    sig(a, 'MP')
    spoll(a, 75, 8)
    Y0 = E0 + 12
    for p in range(4):
        for th in range(2): a(f"buffer_load_dword v{Y0+4*th+p}, v5, {srd(sWS)}, s73 offen offset:{128*th} sc1")
        a(f"s_add_u32 s73, s73, 8192")
    a(f"s_lshl_b32 s76, s{sA}, 14")
    a(f"v_add_u32 v9, s76, v{vH}")
    a(f"v_add_u32 v10, 0x10000, v9")
    lwait(a, 'MP', 8)
    def rd_part(vb, dst):
        for th in range(2):
            for src in range(4):
                r0 = dst + 32*th + 8*src
                a(f"ds_read_b128 v[{r0}:{r0+3}], v{vb} offset:{4096*src + 2048*th}")
                a(f"ds_read_b128 v[{r0+4}:{r0+7}], v{vb} offset:{4096*src + 2048*th + 1024}")
    rd_part(9, 16)
    XB, XN = 176, 192
    a("s_waitcnt vmcnt(8)")
    for th in range(2):
        for p in range(4):
            lo(a, XB+8*th+2*p, E0+4+4*th+p); hi(a, XB+1+8*th+2*p, E0+4+4*th+p)
        for e in range(8):
            a(f"v_sub_f32 v{XN+8*th+e}, v{XB+8*th+e}, v{E0+2*th}")
            a(f"v_mul_f32 v{XN+8*th+e}, v{XN+8*th+e}, v{E0+1+2*th}")
        a(f"v_mul_f32 v{E0+1+2*th}, v{E0+1+2*th}, v{E0+1+2*th}")
    a("s_waitcnt lgkmcnt(0)")
    SM = 208
    for th in range(2):
        b = 16 + 32*th
        for e in range(8):
            a(f"v_add_f32 v{b+e}, v{b+e}, v{b+8+e}")
            a(f"v_add_f32 v{b+16+e}, v{b+16+e}, v{b+24+e}")
        for e in range(8): a(f"v_add_f32 v{SM+8*th+e}, v{b+e}, v{b+16+e}")
    a("s_waitcnt vmcnt(0)")
    for th in range(2):
        for p in range(4):
            lo(a, 224+2*p, Y0+4*th+p); hi(a, 225+2*p, Y0+4*th+p)
        for e in range(8): a(f"v_fmac_f32 v{XB+8*th+e}, v{XN+8*th+e}, v{224+e}")
    stamp(a, 9)
    lwait(a, 'XP', 8)
    rd_part(10, 16)
    for th in range(2):
        b = 16 + 32*th
        a(f"s_waitcnt lgkmcnt({8*(1-th)})")
        for e in range(8):
            a(f"v_add_f32 v{b+e}, v{b+e}, v{b+8+e}")
            a(f"v_add_f32 v{b+16+e}, v{b+16+e}, v{b+24+e}")
        for e in range(8): a(f"v_add_f32 v{b+e}, v{b+e}, v{SM+8*th+e}")
        for e in range(8): a(f"v_add_f32 v{b+e}, v{b+e}, v{b+16+e}")
        for rr in range(4): a(f"v_permlane32_swap_b32 v{b+rr}, v{b+4+rr}")
        for e in range(8): a(f"v_fmac_f32 v{XB+8*th+e}, v{E0+1+2*th}, v{b+e}")
        for p in range(4): a(f"v_cvt_pk_bf16_f32 v{224+4*th+p}, v{XB+8*th+2*p}, v{XB+8*th+1+2*p}")
        a(f"buffer_store_dwordx4 v[{224+4*th}:{227+4*th}], v4, {srd(sO)}, s{71+th} offen")

a = Asm()
stamp(a, 0)
prologue(a)
a(f"s_cmp_lt_u32 s{sSLOT}, 4")
a("s_cbranch_scc1 L_spare")
a(f"s_cmp_lt_u32 s{sWV}, 4")
a("s_cbranch_scc1 L_mwave")
aux(a)
a.label("L_spare")
spare(a)
a("s_branch L_fin")
a.label("L_mwave")
mwave(a)
a.label("L_fin")
stamp_flush(a)
a.label("L_end")
a("s_endpgm")
kn = NAME + "_kernel"
hdr = open("cdna_kernels/%s.s.ref" % NAME).read().split("; Override launch")[0]
out = hdr + f"; @launch grid=(256,1,1) block=(512,1,1) lds={LDS_BYTES}\n"
out += '.amdgcn_target "amdgcn-amd-amdhsa--gfx950"\n.text\n'
out += f".globl {kn}\n.p2align 8\n.type {kn},@function\n{kn}:\n" + a.finalize()
out += f""".section .rodata,"a"
.p2align 6
.amdhsa_kernel {kn}
  .amdhsa_next_free_vgpr 256
  .amdhsa_next_free_sgpr 102
  .amdhsa_accum_offset 256
  .amdhsa_group_segment_fixed_size 0
  .amdhsa_kernarg_size 104
  .amdhsa_user_sgpr_count 2
  .amdhsa_user_sgpr_kernarg_segment_ptr 1
  .amdhsa_system_sgpr_workgroup_id_x 1
  .amdhsa_float_denorm_mode_32 3
.end_amdhsa_kernel
"""
dst = sys.argv[1] if len(sys.argv) > 1 and not sys.argv[1].startswith("--") else "cdna_kernels/%s.s" % NAME
open(dst, "w").write(out)
print("wrote", dst, len(out), "barriers:", out.count("s_barrier"))
```

```python
import sys, struct
from asmdsl import Asm, TRANS

NAME = "parallel_sum__ssm_conv_h3__glu_gated_swiglu__prompt"
S, D, F = 2048, 448, 1792
WS_F1, WS_F2, WS_F3, WS_F4 = 0x1000, 0x3000, 0x4000, 0x6000
WS_STATS = 0x10000
WS_CS    = 0x18000
WS_R     = 0x30000
RP       = 4224
WS_Y     = 0x200000
WS_H     = 0x400000
HTYPE    = 64*56*1024
WS_BYTES = 0x1000000
WS_DBG   = 0xF00000
STAMP = "--stamp" in sys.argv
CLK = "s_memtime" if "--cyc" in sys.argv else "s_memrealtime"
def NT(name, default=0): return " nt" if opt(name, default) else ""
def opt(name, default):
    for x in sys.argv:
        if x.startswith(f"--{name}="): return int(x.split("=")[1])
    return default

sQ, sK, sV, sSH, sSK, sD, sW1, sW3, sW2, sO, sWS = 4, 8, 12, 16, 20, 24, 28, 32, 36, 40, 44
def srd(b): return f"s[{b}:{b+3}]"
SRD_INFO = {
    'q': (sQ, 0, S*D*2), 'w1': (sW1, 56, D*F*2), 'w3': (sW3, 64, D*F*2), 'ws': (sWS, 96, WS_BYTES),
    'k': (sK, 8, S*D*2), 'v': (sV, 16, S*D*2), 'sh': (sSH, 24, D*8),
    'sk': (sSK, 32, D*S*2), 'd': (sD, 40, D*2),
    'w2': (sW2, 72, D*F*2), 'o': (sO, 80, S*D*2),
}
sROT = 3
sA, sI, sJ, sTT = 48, 49, 50, 51
sX, sLQ, sLR, sWV, sSLOT = 52, 53, 54, 55, 56
sE = 78
sA4K = 57
def fh(f): return "0x%08x" % struct.unpack("<I", struct.pack("<f", f))[0]
def lo(a, d, s): a(f"v_lshlrev_b32 v{d}, 16, v{s}")
def hi(a, d, s): a(f"v_and_b32 v{d}, 0xffff0000, v{s}")
NST = 11
SMODE = opt("smode", 0)
def stamp(a, idx, mode=0):
    if STAMP and (mode == SMODE or idx in (0, NST-1)): a(f"{CLK} s[{80+2*idx}:{81+2*idx}]")
def stamp_flush(a):
    if not STAMP: return
    a("s_waitcnt vmcnt(0) lgkmcnt(0)")
    stamp(a, NST-1)
    a(f"s_and_b32 s60, s{sWV}, 3")
    a(f"s_cmp_lg_u32 s60, 0")
    a(f"s_cbranch_scc1 L_end")
    a("s_waitcnt lgkmcnt(0)")
    a(f"s_lshl_b32 s60, s2, 7")
    a(f"s_lshl_b32 s61, s{sWV}, 13")
    a(f"s_add_u32 s60, s60, s61")
    a(f"s_add_u32 s60, s60, {WS_DBG}")
    a("v_mov_b32 v0, 0")
    for i in range(NST):
        a(f"v_mov_b32 v2, s{80+2*i}")
        a(f"v_mov_b32 v3, s{81+2*i}")
        a(f"buffer_store_dwordx2 v[2:3], v0, {srd(sWS)}, s60 offen offset:{8*i}")

UID = [0]
def uid():
    UID[0] += 1; return UID[0]
def poll(a, vaddr, vtmp, soff, n=None, sleep=4):
    n = n or uid()
    a(f"s_mov_b32 s58, 0")
    a.label(f"L_poll{n}")
    a(f"buffer_load_dword v{vtmp}, v{vaddr}, {srd(sWS)}, s{soff} offen sc1")
    a(f"s_waitcnt vmcnt(0)")
    a(f"v_cmp_ne_u32 vcc, s{sE}, v{vtmp}")
    a(f"s_cbranch_vccz L_polled{n}")
    a(f"s_add_u32 s58, s58, 1")
    a(f"s_cmp_lt_u32 s58, 0x40000")
    a(f"s_cbranch_scc0 L_polled{n}")
    a(f"s_sleep {sleep}")
    a(f"s_branch L_poll{n}")
    a.label(f"L_polled{n}")
def poll_issue(a, vaddr, vtmp, soff):
    a(f"buffer_load_dword v{vtmp}, v{vaddr}, {srd(sWS)}, s{soff} offen sc1")
def poll_check(a, vaddr, vtmp, soff):
    n = uid()
    a(f"v_cmp_ne_u32 vcc, s{sE}, v{vtmp}")
    a(f"s_cbranch_vccz L_polled{n}")
    poll(a, vaddr, vtmp, soff, n)
def spoll(a, soff, nw):
    n = uid()
    a(f"s_mov_b32 s58, 0")
    a.label(f"L_sp{n}")
    a(f"s_load_dwordx8 s[8:15], s[{sWS}:{sWS+1}], s{soff} glc")
    a(f"s_waitcnt lgkmcnt(0)")
    if nw == 7: a(f"s_mov_b32 s15, s{sE}")
    for i in range(4): a(f"s_xor_b64 s[{8+2*i}:{9+2*i}], s[{8+2*i}:{9+2*i}], s[{sE}:{sE+1}]")
    a(f"s_or_b64 s[8:9], s[8:9], s[10:11]")
    a(f"s_or_b64 s[12:13], s[12:13], s[14:15]")
    a(f"s_or_b64 s[8:9], s[8:9], s[12:13]")
    a(f"s_cbranch_scc0 L_spd{n}")
    a(f"s_add_u32 s58, s58, 1")
    a(f"s_cmp_lt_u32 s58, 0x40000")
    a(f"s_cbranch_scc1 L_sp{n}")
    a.label(f"L_spd{n}")
def wflag(a, soff, v0, v1):
    a(f"v_mov_b32 v{v0}, 0")
    a(f"v_mov_b32 v{v1}, s{sE}")
    a(f"s_mov_b64 exec, 1")
    a(f"buffer_store_dword v{v1}, v{v0}, {srd(sWS)}, s{soff} offen sc1")
    a(f"s_mov_b64 exec, -1")

def XS(p): return (3 if p == 6 else p % 3) * 16384
WB0, WA0 = 65536, 114688
def WOFF(half, p): return ((p + 1) % 3 if half == 0 else p % 3) * 16384
def WS_(half, p): return (WA0 if half == 0 else WB0) + WOFF(half, p)
CVL = 114688
CB = 18176
HA, HB, U0, U1 = 256, 4736, 8960, 13536
CNT = CVL + 2*CB
EV = {n: 16*i for i, n in enumerate(['A6','B4','B5','B6','WB5','WB6','W2A','PRE','CV0','CV1','CV2','CV3','MP','XP','W2B','WB56'])}
LDS_BYTES = 163840
W2BLK = [0, 1, 5, 2, 6, 3, 4]
NSTG = opt('nstg', 3)
KVL = 3*16384
PST = 3*16384
vL, vH, vCo, vCa, vE = 1, 2, 3, 0, 15
def sig(a, ev):
    a(f"ds_write_b32 v{vCo}, v{vE} offset:{EV[ev]}")
def lread(a, ev, vtmp, own=False):
    a(f"ds_read_b32 v{vtmp}, v{vCo if own else vCa} offset:{EV[ev]}")
def lwait(a, ev, vtmp, own=False, pre=False):
    n = uid()
    if pre:
        a(f"v_cmp_ne_u32 vcc, s{sE}, v{vtmp}")
        a(f"s_cbranch_vccz L_lwd{n}")
    a(f"s_mov_b32 s58, 0")
    a.label(f"L_lw{n}")
    lread(a, ev, vtmp, own)
    a(f"s_waitcnt lgkmcnt(0)")
    a(f"v_cmp_ne_u32 vcc, s{sE}, v{vtmp}")
    a(f"s_cbranch_vccz L_lwd{n}")
    a(f"s_add_u32 s58, s58, 1")
    a(f"s_cmp_lt_u32 s58, 0x400000")
    a(f"s_cbranch_scc0 L_lwd{n}")
    a(f"s_sleep 1")
    a(f"s_branch L_lw{n}")
    a.label(f"L_lwd{n}")
def flag_setup(a):
    a(f"v_lshlrev_b32 v{vH}, 4, v{vL}")
    a(f"s_lshl_b32 s58, s{sA}, 2")
    a(f"s_add_u32 s58, s58, {CNT}")
    a(f"v_mov_b32 v{vCo}, s58")
    a(f"v_and_b32 v{vCa}, 3, v{vL}")
    a(f"v_lshlrev_b32 v{vCa}, 2, v{vCa}")
    a(f"v_add_u32 v{vCa}, {CNT}, v{vCa}")

class Rec:
    def __init__(self): self.l = []
    def __call__(self, t): self.l += [x for x in t.split('\n') if x.strip()]
class VM:
    def __init__(self, a): self.a = a; self.q = []
    def add(self, tag, n=1): self.q += [tag]*n
    def wait(self, *tags):
        idx = max(i for i, t in enumerate(self.q) if t in tags)
        n = len(self.q) - 1 - idx
        assert n <= 63, n
        self.a(f"s_waitcnt vmcnt({n})")
    def drain(self): self.a("s_waitcnt vmcnt(0)")

def prologue(a):
    a(f"s_cmp_ge_u32 s2, 256")
    a(f"s_cbranch_scc1 L_end")
    for n, (r, off, sz) in SRD_INFO.items():
        a(f"s_load_dwordx2 s[{r}:{r+1}], s[0:1], {off}")
    a(f"v_lshrrev_b32 v1, 6, v0")
    a(f"s_and_b32 s{sX}, s2, 7")
    a(f"v_readfirstlane_b32 s{sWV}, v1")
    a(f"s_lshr_b32 s{sSLOT}, s2, 3")
    for n, (r, off, sz) in SRD_INFO.items():
        a(f"s_mov_b32 s{r+2}, {sz}")
        a(f"s_mov_b32 s{r+3}, 0x20000")
    a(f"s_sub_u32 s{sLR}, s{sSLOT}, 4")
    a(f"s_mul_i32 s{sLQ}, s{sLR}, 37")
    a(f"s_lshr_b32 s{sLQ}, s{sLQ}, 8")
    a(f"s_mul_i32 s58, s{sLQ}, 7")
    a(f"s_sub_u32 s{sLR}, s{sLR}, s58")
    a(f"s_and_b32 s{sA}, s{sWV}, 3")
    a(f"s_lshr_b32 s{sI}, s{sX}, 1")
    a(f"s_lshl_b32 s{sI}, s{sI}, 2")
    a(f"s_add_u32 s{sI}, s{sI}, s{sLQ}")
    a(f"s_and_b32 s{sJ}, s{sX}, 1")
    a(f"s_mul_i32 s{sJ}, s{sJ}, 7")
    a(f"s_add_u32 s{sJ}, s{sJ}, s{sLR}")
    a(f"s_lshl_b32 s{sTT}, s{sX}, 2")
    a(f"s_add_u32 s{sTT}, s{sTT}, s{sLQ}")
    a(f"v_and_b32 v1, 63, v0")
    a(f"s_lshl_b32 s{sA4K}, s{sA}, 12")
def rot_setup(a):
    a(f"s_lshl_b32 s3, s{sLQ}, 1")
    a(f"s_add_u32 s3, s3, s{sLR}")
    a(f"s_cmp_ge_u32 s3, 7")
    a(f"s_cselect_b32 s58, 7, 0")
    a(f"s_sub_u32 s3, s3, s58")
    if opt("rot2", 1) == 0: a("s_mov_b32 s3, 0")
def kernarg_wait(a):
    a(f"s_waitcnt lgkmcnt(0)")
    a(f"s_load_dword s{sE}, s[{sWS}:{sWS+1}], 0")
def epoch_hash(a):
    a(f"s_waitcnt lgkmcnt(0)")
    a(f"s_mul_i32 s77, s{sE}, 0x9E3779B1")
    a(f"s_add_u32 s77, s77, 0x7F4A7C15")
    a(f"s_lshr_b32 s{sE}, s77, 15")
    a(f"s_xor_b32 s{sE}, s{sE}, s77")
    a(f"s_and_b32 s{sE}, s{sE}, 0xBFFFBFFF")
    a(f"s_mov_b32 s{sE+1}, s{sE}")
def round_bf16(a, v):
    a(f"v_cvt_pk_bf16_f32 v{v}, v{v}, v{v}")
    a(f"v_lshlrev_b32 v{v}, 16, v{v}")

def spare(a):
    a(f"s_lshl_b32 s60, s{sX}, 2")
    a(f"s_add_u32 s60, s60, s{sSLOT}")
    a("v_lshrrev_b32 v2, 3, v0")
    a("v_and_b32 v3, 7, v0")
    a("v_mul_u32_u24 v4, 896, v2")
    a("v_lshl_add_u32 v4, v3, 4, v4")
    a(f"s_mul_i32 s61, s60, {64*896}")
    kernarg_wait(a)
    for n in range(7): a(f"buffer_load_dwordx4 v[{8+4*n}:{11+4*n}], v4, {srd(sQ)}, s61 offen offset:{128*n}")
    a(f"s_lshr_b32 s62, s{sX}, 1")
    a(f"s_lshl_b32 s62, s62, 2")
    a(f"s_add_u32 s62, s62, s{sSLOT}")
    a(f"s_min_u32 s62, s62, 13")
    a(f"s_cmp_ge_u32 s62, 7")
    a(f"s_cselect_b32 s64, s{sW3}, s{sW1}")
    a(f"s_cselect_b32 s65, s{sW3+1}, s{sW1+1}")
    a(f"s_cselect_b32 s63, 7, 0")
    a(f"s_cselect_b32 s68, {F*16}, 0")
    a(f"s_mov_b32 s66, {D*F*2}")
    a(f"s_mov_b32 s67, 0x20000")
    a(f"s_sub_u32 s63, s62, s63")
    a(f"s_and_b32 s69, s{sX}, 1")
    a(f"s_mul_i32 s69, s69, 7")
    a(f"s_add_u32 s63, s63, s69")
    a("v_lshrrev_b32 v6, 4, v1")
    a("v_and_b32 v5, 15, v1")
    a(f"v_mul_u32_u24 v7, 3584, v6")
    a("v_lshl_add_u32 v7, v5, 4, v7")
    a(f"s_mul_i32 s69, s{sWV}, {56*3584}")
    a(f"s_lshl_b32 s70, s63, 8")
    a(f"s_add_u32 s69, s69, s70")
    for n in range(14):
        a(f"buffer_load_dwordx4 v[{64+4*n}:{67+4*n}], v7, s[64:67], s69 offen")
        a(f"s_add_u32 s69, s69, {4*3584}")
    a("v_lshrrev_b32 v44, 1, v5")
    a("v_and_b32 v45, 1, v5")
    a("v_lshlrev_b32 v45, 4, v45")
    a("v_mov_b32 v46, 0x3f80")
    a("v_lshlrev_b32 v46, v45, v46")
    for dw in range(4):
        a(f"v_cmp_eq_u32 vcc, {dw}, v44")
        a(f"v_cndmask_b32 v{48+dw}, 0, v46, vcc")
    epoch_hash(a)
    a("v_mov_b32 v40, 0\nv_mov_b32 v41, 0\nv_mov_b32 v42, 0\nv_mov_b32 v43, 0")
    a("s_mov_b32 s70, 0x3f803f80")
    a("s_waitcnt vmcnt(14)")
    stamp(a, 2, SMODE)
    for n in range(28):
        a(f"v_dot2_f32_bf16 v{40+2*(n%2)}, v{8+n}, s70, v{40+2*(n%2)}")
        a(f"v_dot2_f32_bf16 v{41+2*(n%2)}, v{8+n}, v{8+n}, v{41+2*(n%2)}")
    a("v_add_f32 v40, v40, v42")
    a("v_add_f32 v41, v41, v43")
    for m in ("quad_perm:[1,0,3,2]", "quad_perm:[2,3,0,1]", "row_half_mirror"):
        a(f"v_add_f32_dpp v40, v40, v40 {m} row_mask:0xf bank_mask:0xf")
        a(f"v_add_f32_dpp v41, v41, v41 {m} row_mask:0xf bank_mask:0xf")
    a(f"v_mul_f32 v40, {fh(1.0/448)}, v40")
    a(f"v_mul_f32 v41, {fh(1.0/448)}, v41")
    a("v_fma_f32 v41, -v40, v40, v41")
    a("v_max_f32 v41, 0, v41")
    round_bf16(a, 40)
    round_bf16(a, 41)
    a(f"v_add_f32 v41, {fh(1e-5)}, v41")
    round_bf16(a, 41)
    a("v_sqrt_f32 v41, v41")
    round_bf16(a, 41)
    a("v_rcp_f32 v41, v41")
    a(f"v_mov_b32 v42, s{sE}")
    a(f"v_mov_b32 v43, 0")
    a("v_lshlrev_b32 v4, 4, v2")
    a(f"s_lshl_b32 s61, s60, 10")
    a(f"s_add_u32 s61, s61, {WS_STATS}")
    a("v_cmp_eq_u32 vcc, 0, v3")
    a("s_and_saveexec_b64 s[72:73], vcc")
    a(f"buffer_store_dwordx4 v[40:43], v4, {srd(sWS)}, s61 offen sc1")
    a("s_mov_b64 exec, s[72:73]")
    for n in range(14):
        a(f"s_waitcnt vmcnt({14-n})")
        c = "0" if n == 0 else "v[52:55]"
        a(f"v_mfma_f32_16x16x32_bf16 v[52:55], v[48:51], v[{64+4*n}:{67+4*n}], {c}")
    stamp(a, 4, SMODE)
    a("v_lshlrev_b32 v4, 5, v5")
    a("v_lshl_add_u32 v4, v6, 4, v4")
    a(f"s_lshl_b32 s61, s{sWV}, 9")
    a("v_add_u32 v4, s61, v4")
    a("v_cmp_gt_u32 vcc, 2, v6")
    a("s_and_saveexec_b64 s[72:73], vcc")
    a("ds_write_b128 v4, v[52:55]")
    a("s_mov_b64 exec, s[72:73]")
    a("s_waitcnt lgkmcnt(0)")
    a("s_barrier")
    stamp(a, 5, SMODE)
    a(f"s_cmp_ge_u32 s{sWV}, 2")
    a("s_cbranch_scc1 L_fin")
    a("v_lshlrev_b32 v4, 2, v0")
    for p in range(8): a(f"ds_read_b32 v{64+p}, v4 offset:{512*p}")
    a("s_waitcnt lgkmcnt(0)")
    for st in (4, 2, 1):
        for p in range(st): a(f"v_add_f32 v{64+p}, v{64+p}, v{64+p+st}")
    a(f"v_and_b32 v70, 0xffff0000, v64")
    a(f"v_sub_f32 v64, v64, v70")
    a(f"v_and_b32 v72, 0xffff0000, v64")
    a(f"v_sub_f32 v64, v64, v72")
    a(f"v_lshrrev_b32 v70, 16, v70")
    a(f"v_or_b32 v40, v70, v72")
    a(f"v_lshrrev_b32 v41, 16, v64")
    a(f"s_lshl_b32 s61, s63, 11")
    a(f"s_add_u32 s61, s61, s68")
    a(f"s_add_u32 s61, s61, {WS_CS}")
    a(f"v_lshlrev_b32 v4, 4, v0")
    a(f"buffer_store_dwordx4 v[40:43], v4, {srd(sWS)}, s61 offen sc1")
    stamp(a, 6, SMODE)
    a(f"s_cmp_lg_u32 s{sWV}, 0")
    a("s_cbranch_scc1 L_fin")
    a(f"s_lshl_b32 s61, s60, 2")
    a(f"s_add_u32 s61, s61, {WS_F2}")
    wflag(a, 61, 2, 3)
    a(f"s_cmp_lg_u32 s60, 0")
    a(f"s_cbranch_scc1 L_fin")
    a(f"v_and_b32 v4, 31, v0")
    a(f"v_lshlrev_b32 v4, 2, v4")
    a(f"s_mov_b32 s61, {WS_F2}")
    poll(a, 4, 5, 61, sleep=8)
    a(f"s_mov_b32 s61, {WS_F1}")
    a.label("L_sp_ep")
    poll(a, 4, 5, 61, sleep=8)
    a(f"s_add_u32 s61, s61, 512")
    a(f"s_cmp_lt_u32 s61, {WS_F1 + 7*512}")
    a(f"s_cbranch_scc1 L_sp_ep")
    a(f"v_mov_b32 v2, 0")
    a(f"v_mov_b32 v3, s77")
    a(f"s_mov_b64 exec, 1")
    a(f"buffer_store_dword v3, v2, {srd(sWS)}, 0 offen sc1")
    a(f"s_mov_b64 exec, -1")

def w2_setup(a):
    a(f"v_lshrrev_b32 v8, 3, v{vL}")
    a(f"v_and_b32 v9, 7, v{vL}")
    a(f"v_bfe_u32 v10, v{vL}, 4, 1")
    a(f"v_lshlrev_b32 v10, 2, v10")
    a(f"v_xor_b32 v9, v9, v10")
    a(f"v_mul_u32_u24 v8, 896, v8")
    a(f"v_lshl_add_u32 v4, v9, 4, v8")
    for i in range(1, 4): a(f"v_add_u32 v{4+i}, {i*(8*896 - 1024)}, v4")
def rot_pair(a, b):
    a(f"s_add_u32 s58, s{sROT}, {b}")
    a(f"s_cmp_ge_u32 s58, 7")
    a(f"s_cselect_b32 s59, 7, 0")
    a(f"s_sub_u32 s58, s58, s59")
    a(f"s_mul_i32 s59, s{sA}, 7")
    a(f"s_add_u32 s58, s58, s59")
def w2_dma(a, vm, b, typ, blk=None):
    if blk is None: blk = W2BLK[b]
    rot_pair(a, b)
    a(f"s_lshr_b32 s59, s58, 1")
    a(f"s_mul_i32 s59, s59, {128*896}")
    a(f"s_and_b32 s58, s58, 1")
    a(f"s_mul_i32 s58, s58, {32*896}")
    a(f"s_add_u32 s58, s58, s59")
    a(f"s_add_u32 m0, s{sA4K}, {blk*16384}")
    a(f"s_add_u32 s58, s58, s{75+typ}")
    for i in range(4): a(f"buffer_load_dwordx4 v{4+i}, {srd(sW2)}, s58 offen offset:{1024*i} lds")
    vm.add(f'w2_{typ}_{b}', 4)
def tr_setup(a, V):
    a(f"v_bfe_u32 v8, v{vL}, 2, 2")
    a(f"v_lshrrev_b32 v9, 5, v{vL}")
    a(f"v_lshl_add_u32 v10, v9, 2, v8")
    a(f"v_lshlrev_b32 v10, 7, v10")
    a(f"v_bfe_u32 v9, v{vL}, 4, 1")
    a(f"v_lshl_add_u32 v10, v9, 5, v10")
    a(f"v_and_b32 v9, 3, v{vL}")
    a(f"v_lshl_add_u32 v10, v9, 3, v10")
    a(f"v_add_u32 v10, s{sA4K}, v10")
    a(f"v_lshrrev_b32 v8, 1, v8")
    a(f"v_lshl_add_u32 v{V}, v8, 6, v10")
    a(f"v_xor_b32 v8, 1, v8")
    a(f"v_lshl_add_u32 v{V+1}, v8, 6, v10")
    a(f"v_add_u32 v{V+2}, 0x10000, v{V}")
    a(f"v_add_u32 v{V+3}, 0x10000, v{V+1}")
def pair_reads(a, b, blk, V, WR=144):
    for k2 in range(2):
        for ct in range(2):
            for z in range(2):
                base = (V if blk < 4 else V+2) + ct
                o = (blk % 4)*16384 + k2*2048 + z*1024
                f = WR + 8*(2*b + k2) + 4*ct + 2*z
                a(f"ds_read_b64_tr_b16 v[{f}:{f+1}], v{base} offset:{o}")
def stage_read(a, vm, b, blk, V, wait=True):
    vm.wait(f'w2_1_{b}')
    pair_reads(a, b, blk, V)
    if wait: a("s_waitcnt lgkmcnt(0)")

WR, AC, HR, HRN = 144, 80, 16, 16
def g2_setup(a, role):
    a(f"s_mul_i32 s62, s{sTT}, {112*1024}")
    a(f"s_add_u32 s62, s62, {WS_H + role*HTYPE}")
    a(f"s_lshl_b32 s64, s{sTT}, 7")
    a(f"s_lshl_b32 s58, s{sA}, 5")
    a(f"s_add_u32 s64, s64, s58")
    a(f"s_add_u32 s64, s64, {WS_F3 + role*4096}")
def hload(a, vm, j):
    k, tt = j // 2, j % 2
    rg = HR + 4*(j % HRN)
    if j % 4 == 0:
        rot_pair(a, k // 2)
        a(f"s_lshl_b32 s63, s58, 11")
        a(f"s_add_u32 s63, s63, s62")
        a(f"s_add_u32 s61, s63, {56*1024}")
    so = 63 if tt == 0 else 61
    a(f"buffer_load_dwordx4 v[{rg}:{rg+3}], v{vH}, {srd(sWS)}, s{so} offen offset:{1024*(k%2)} sc1")
    vm.add(f'h{j}')
def g2_loop(a, vm, role, hook=None):
    for k in range(14):
        for tt in range(2):
            j = 2*k + tt
            vm.wait(f'h{j}')
            rg = HR + 4*(j % HRN)
            for ct in range(2):
                acc = AC + 32*ct + 16*tt
                c = "0" if k == 0 else f"v[{acc}:{acc+15}]"
                f = WR + 8*k + 4*ct
                a(f"v_mfma_f32_32x32x16_bf16 v[{acc}:{acc+15}], v[{f}:{f+3}], v[{rg}:{rg+3}], {c}")
            if j >= 1 and j - 1 + HRN < 28: hload(a, vm, j - 1 + HRN)
            if hook: hook(j)
def g2_partials(a, role):
    a(f"v_add_u32 v9, s{sA4K}, v{vH}")
    if role == 1: a(f"v_add_u32 v9, 0x10000, v9")
    for th in range(2):
        for kq in range(4):
            base = AC + 32*(kq >> 1) + 16*th + 8*(kq & 1)
            o = kq*16384 + th*2048
            a(f"ds_write_b128 v9, v[{base}:{base+3}] offset:{o}")
            a(f"ds_write_b128 v9, v[{base+4}:{base+7}] offset:{o + 1024}")

def aux(a):
    vm = VM(a)
    sXo, sWo, sMw = 60, 61, 64
    vX = [16, 17, 18, 19]; vW = [20, 21, 22, 23]
    a(f"s_mul_i32 s{sXo}, s{sI}, {128*896}")
    a(f"s_mul_i32 s58, s{sA}, {32*896}")
    a(f"s_add_u32 s{sXo}, s{sXo}, s58")
    a(f"s_lshl_b32 s{sWo}, s{sJ}, 8")
    a(f"s_and_b32 s58, s{sA}, 1")
    a(f"s_mul_i32 s58, s58, {32*3584}")
    a(f"s_add_u32 s{sWo}, s{sWo}, s58")
    a(f"v_lshrrev_b32 v6, 3, v{vL}")
    a(f"v_and_b32 v7, 7, v{vL}")
    a(f"v_lshrrev_b32 v8, 4, v{vL}")
    a(f"v_xor_b32 v9, v7, v8")
    a(f"v_mul_u32_u24 v10, 896, v6")
    a(f"v_lshl_add_u32 v{vX[0]}, v9, 4, v10")
    a(f"v_xor_b32 v9, 4, v9")
    a(f"v_lshl_add_u32 v{vX[1]}, v9, 4, v10")
    a(f"v_add_u32 v{vX[1]}, {8*896-1024}, v{vX[1]}")
    a(f"v_add_u32 v{vX[2]}, {16*896-2048}, v{vX[0]}")
    a(f"v_add_u32 v{vX[3]}, {16*896-2048}, v{vX[1]}")
    a(f"v_and_b32 v9, 1, v8")
    a(f"v_lshlrev_b32 v9, 2, v9")
    a(f"v_xor_b32 v9, v7, v9")
    a(f"v_mul_u32_u24 v11, 3584, v6")
    a(f"v_lshl_add_u32 v{vW[0]}, v9, 4, v11")
    for i in range(1, 4): a(f"v_add_u32 v{vW[i]}, {i*(8*3584-1024)}, v{vW[0]}")
    kernarg_wait(a)
    a(f"s_cmp_ge_u32 s{sA}, 2")
    a(f"s_cselect_b32 s{sW1}, s{sW3}, s{sW1}")
    a(f"s_cselect_b32 s{sW1+1}, s{sW3+1}, s{sW1+1}")
    ROT = opt("rot", 0)
    SL = 66
    def dmaX(p):
        a(f"s_add_u32 m0, s{sA4K}, {XS(p)}")
        if ROT and p:
            a(f"s_lshl_b32 s58, s{SL+p-1}, 7")
            a(f"s_add_u32 s58, s58, s{sXo}")
        else: a(f"s_add_u32 s58, s{sXo}, {128*p}")
        for i in range(4): a(f"buffer_load_dwordx4 v{vX[i]}, {srd(sQ)}, s58 offen offset:{1024*i}{NT('ntx')} lds")
        vm.add(f'X{p}', 4)
    def dmaW(p, half):
        a(f"s_add_u32 m0, s{sA4K}, {WS_(half, p)}")
        if ROT and p:
            a(f"s_mul_i32 s58, s{SL+p-1}, {64*3584}")
            a(f"s_add_u32 s58, s58, s{sWo}")
            if half: a(f"s_add_u32 s58, s58, 128")
        else: a(f"s_add_u32 s58, s{sWo}, {64*3584*p + 128*half}")
        for i in range(4): a(f"buffer_load_dwordx4 v{vW[i]}, {srd(sW1)}, s58 offen offset:{1024*i}{NT('ntw')} lds")
        vm.add(f"W{'AB'[half]}{p}", 4)
    def slab_setup():
        a(f"s_lshl_b32 s58, s{sLQ}, 1")
        a(f"s_cmp_eq_u32 s{sLQ}, 3")
        a(f"s_cselect_b32 s58, 1, s58")
        a(f"s_add_u32 s58, s58, s{sLR}")
        a(f"s_cmp_ge_u32 s58, 6")
        a(f"s_cselect_b32 s59, 6, 0")
        a(f"s_sub_u32 s58, s58, s59")
        a(f"s_add_u32 s{SL}, s58, 1")
        for p in range(2, 7):
            a(f"s_add_u32 s{SL+p-1}, s{SL+p-2}, 1")
            a(f"s_cmp_eq_u32 s{SL+p-1}, 7")
            a(f"s_cselect_b32 s{SL+p-1}, 1, s{SL+p-1}")
    dmaX(0); dmaW(0, 0); dmaW(0, 1)
    if ROT: slab_setup()
    P = 64
    a(f"v_lshl_add_u32 v{P}, v7, 4, v10")
    a(f"v_add_u32 v{P+1}, {8*896-1024}, v{P}")
    a(f"s_mul_i32 s65, s{sTT}, {64*896}")
    a(f"s_lshl_b32 s75, s{sLR}, 7")
    a(f"s_add_u32 s76, s75, {64*896}")
    a(f"s_add_u32 s65, s65, s75")
    a(f"s_mul_i32 s58, s{sA}, {16*896}")
    a(f"s_add_u32 s65, s65, s58")
    a(f"s_lshl_b32 s{sMw}, s{sA}, 11")
    def dmaKV():
        a(f"s_add_u32 m0, s{sMw}, {KVL}")
        for i in range(2): a(f"buffer_load_dwordx4 v{P+i}, {srd(sK)}, s65 offen offset:{1024*i}{NT('ntkv')} lds")
        a(f"s_add_u32 m0, s{sMw}, {KVL + 8192}")
        for i in range(2): a(f"buffer_load_dwordx4 v{P+i}, {srd(sV)}, s65 offen offset:{1024*i}{NT('ntkv')} lds")
        vm.add('kv', 4)
    dmaKV()
    if opt("pfb", 1):
        a(f"s_lshr_b64 exec, -1, 32")
        a(f"s_cmp_ge_u32 s{sA}, 2")
        a(f"s_cbranch_scc1 L_pfb_w")
        a(f"v_lshlrev_b32 v24, 7, v{vL}")
        a(f"s_mul_i32 s58, s{sX}, 28")
        a(f"s_add_u32 s58, s58, s{sSLOT}")
        a(f"s_sub_u32 s58, s58, 4")
        a(f"s_lshl_b32 s58, s58, 1")
        a(f"s_add_u32 s58, s58, s{sA}")
        a(f"s_lshl_b32 s58, s58, 12")
        a(f"buffer_load_dword v25, v24, {srd(sSK)}, s58 offen{NT('ntsk')}")
        a(f"s_branch L_pfb_d")
        a.label("L_pfb_w")
        a(f"v_mul_u32_u24 v24, 896, v{vL}")
        a(f"s_lshl_b32 s58, s{sTT}, 1")
        a(f"s_add_u32 s58, s58, s{sA}")
        a(f"s_sub_u32 s58, s58, 2")
        a(f"s_mul_i32 s58, s58, {28*896}")
        a(f"s_add_u32 s58, s58, s75")
        a(f"buffer_load_dword v25, v24, {srd(sW2)}, s58 offen")
        a.label("L_pfb_d")
        a(f"s_mov_b64 exec, -1")
        vm.add('pfb')
    else: dmaX(1)
    a(f"s_mul_i32 s58, s{sA}, {16*144}")
    a(f"s_add_u32 s58, s58, {PST}")
    a(f"v_mul_u32_u24 v{P+2}, 144, v6")
    a(f"v_lshl_add_u32 v{P+2}, v7, 4, v{P+2}")
    a(f"v_add_u32 v{P+2}, s58, v{P+2}")
    a(f"v_mul_u32_u24 v{P+4}, {RP}, v6")
    a(f"v_lshl_add_u32 v{P+4}, v7, 4, v{P+4}")
    a(f"s_lshl_b32 s72, s{sLR}, 2")
    a(f"s_add_u32 s72, s72, s{sA}")
    a(f"s_mul_i32 s73, s72, {16*RP}")
    a(f"s_lshl_b32 s74, s{sTT}, 7")
    a(f"s_sub_u32 s73, s73, s74")
    a(f"s_add_u32 s73, s73, {WS_R + 1984*2}")
    a(f"s_add_u32 s74, s73, {8*RP}")
    a(f"s_lshl_b32 s72, s72, 7")
    a(f"s_lshl_b32 s58, s{sTT}, 2")
    a(f"s_add_u32 s72, s72, s58")
    a(f"s_add_u32 s72, s72, {WS_F1}")
    rot_setup(a)
    flag_setup(a)
    epoch_hash(a)
    a(f"v_mov_b32 v{vE}, s{sE}")
    stamp(a, 1)
    a(f"v_mov_b32 v{P+5}, v7")
    w2_setup(a)
    tr_setup(a, 40)
    vm.wait('WB0'); a("s_barrier")
    stamp(a, 2)
    if opt("pfb", 1): dmaX(1)
    dmaW(1, 0); dmaW(1, 1); dmaX(2); dmaW(2, 0)
    vm.wait('WB1'); a("s_barrier")
    dmaW(2, 1); dmaX(3); dmaW(3, 0)
    vm.wait('WB2'); a("s_barrier")
    dmaW(3, 1); dmaX(4); dmaW(4, 0)
    vm.wait('WA3'); a("s_barrier")
    for i in range(2): a(f"ds_read_b128 v[{P+8+4*i}:{P+11+4*i}], v{P+2} offset:{8*144*i}")
    dmaX(5); dmaW(5, 0)
    a("s_waitcnt lgkmcnt(0)")
    for i in range(2): a(f"buffer_store_dwordx4 v[{P+8+4*i}:{P+11+4*i}], v{P+4}, {srd(sWS)}, s{73+i} offen sc1")
    vm.add('R', 2)
    a(f"s_cmp_lg_u32 s{sTT}, 0")
    a("s_cbranch_scc1 L_nopad")
    for i in range(4): a(f"v_mov_b32 v{P+32+i}, 0")
    a(f"v_cmp_eq_u32 vcc, 7, v{P+5}")
    a("s_and_saveexec_b64 s[58:59], vcc")
    a(f"buffer_store_dwordx4 v[{P+32}:{P+35}], v{P+4}, {srd(sWS)}, s73 offen offset:16 sc1")
    a(f"buffer_store_dwordx4 v[{P+32}:{P+35}], v{P+4}, {srd(sWS)}, s74 offen offset:16 sc1")
    a("s_mov_b64 exec, s[58:59]")
    a.label("L_nopad")
    vm.wait('WB3'); a("s_barrier")
    dmaX(6); dmaW(6, 0)
    vm.wait('WA4'); a("s_barrier")
    dmaW(4, 1); dmaW(5, 1)
    vm.wait('R')
    wflag(a, 72, 24, 25); vm.add('f1')
    vm.wait('WA6'); a("s_barrier")
    stamp(a, 3); stamp(a, 1, 2)
    dmaW(6, 1)
    if NSTG: w2_dma(a, vm, 0, 1, 0)
    else: w2_dma(a, vm, 0, 0)
    sCP, sC, sHf, sDch = 74, 65, 66, 67
    a(f"s_mul_i32 s{sCP}, s{sX}, 28")
    a(f"s_add_u32 s{sCP}, s{sCP}, s{sSLOT}")
    a(f"s_sub_u32 s{sCP}, s{sCP}, 4")
    a(f"s_and_b32 s{sC}, s{sA}, 1")
    a(f"s_lshr_b32 s{sHf}, s{sA}, 1")
    a(f"s_lshl_b32 s{sDch}, s{sCP}, 1")
    a(f"s_add_u32 s{sDch}, s{sDch}, s{sC}")
    a(f"v_mov_b32 v24, 0")
    a(f"s_lshl_b32 s58, s{sDch}, 1")
    a(f"buffer_load_ushort v25, v24, {srd(sD)}, s58 offen")
    a(f"s_lshl_b32 s58, s{sDch}, 12")
    a(f"buffer_load_dword v26, v24, {srd(sSK)}, s58 offen")
    vm.add('dh', 2)
    def stage_next(b):
        if b >= NSTG: return
        stage_read(a, vm, b, 0, 40)
        if b + 1 < NSTG: w2_dma(a, vm, b + 1, 1, 0)
        else: w2_dma(a, vm, 0, 0)
    a(f"s_lshr_b32 s68, s{sCP}, 3")
    a(f"s_lshl_b32 s68, s68, 7")
    a(f"s_add_u32 s68, s68, {WS_F1}")
    a(f"v_and_b32 v33, 31, v{vL}")
    a(f"v_lshlrev_b32 v33, 2, v33")
    a(f"s_lshl_b32 s69, s{sDch}, 12")
    a(f"s_lshl_b32 s58, s{sHf}, 2")
    a(f"s_add_u32 s69, s69, s58")
    a(f"s_mul_i32 s70, s{sDch}, {RP}")
    a(f"s_add_u32 s70, s70, {WS_R + 2}")
    a(f"s_lshl_b32 s58, s{sHf}, 1")
    a(f"s_sub_u32 s70, s70, s58")
    a(f"s_mul_i32 s71, s{sC}, {CB}")
    a(f"s_add_u32 s71, s71, {CVL}")
    a(f"s_mul_i32 s72, s{sHf}, {HB - HA}")
    a(f"s_add_u32 s72, s72, s71")
    a(f"s_add_u32 s72, s72, {HA}")
    a(f"s_mul_i32 s73, s{sHf}, {U1 - U0}")
    a(f"s_add_u32 s73, s73, s71")
    a(f"s_add_u32 s73, s73, {U0}")
    for i in range(4): a(f"v_mov_b32 v{28+i}, 0")
    a(f"s_sub_u32 s58, s72, 256")
    a(f"v_add_u32 v27, s58, v{vH}")
    a(f"s_add_u32 s58, s73, {4096 - 256}")
    a(f"v_add_u32 v32, s58, v{vH}")
    a(f"v_cmp_gt_u32 vcc, 16, v{vL}")
    a(f"v_cndmask_b32 v27, v32, v27, vcc")
    vm.wait('WB6'); sig(a, 'WB56')
    stamp(a, 2, 2)
    poll_issue(a, 33, 35, 68); vm.add('p1')
    stage_next(0)
    vm.wait('p1')
    poll_check(a, 33, 35, 68)
    stamp(a, 3, 2)
    lwait(a, 'A6', 34)
    stamp(a, 4, 2)
    a(f"s_mov_b32 m0, s72")
    for n in range(4): a(f"buffer_load_dwordx4 v{vH}, {srd(sSK)}, s69 offen offset:{1024*n}{NT('ntsk')} lds")
    a(f"s_mov_b32 m0, s73")
    for n in range(4): a(f"buffer_load_dwordx4 v{vH}, {srd(sWS)}, s70 offen offset:{1024*n} sc1 lds")
    vm.add('cvu', 8)
    a(f"v_cmp_gt_u32 vcc, 44, v{vL}")
    a(f"s_and_saveexec_b64 s[58:59], vcc")
    a(f"ds_write_b128 v27, v[28:31]")
    a(f"s_mov_b64 exec, s[58:59]")
    a(f"s_lshl_b32 s58, s{sHf}, 2")
    a(f"s_sub_u32 s58, s72, s58")
    a(f"s_sub_u32 s58, s58, 192")
    a(f"v_mov_b32 v27, s58")
    a(f"ds_write_b32 v27, v25")
    a(f"s_cmp_eq_u32 s{sHf}, 0")
    a(f"s_cbranch_scc1 L_cv_nofix")
    a(f"ds_write_b32 v27, v26 offset:192")
    a.label("L_cv_nofix")
    stage_next(1)
    stamp(a, 4); stamp(a, 5, 2)
    lwait(a, 'B4', 34); stamp(a, 6, 2)
    w2_dma(a, vm, 1, 0); w2_dma(a, vm, 2, 0)
    stage_next(2)
    assert NSTG <= 3
    vA, vB, vDl = 8, 9, 11
    a(f"v_and_b32 v12, 15, v{vL}")
    a(f"v_lshrrev_b32 v13, 4, v{vL}")
    a(f"v_and_b32 v14, 1, v12")
    a(f"v_mov_b32 v17, {HB - 4 - 60 - 192}")
    a(f"v_mov_b32 v16, {HA - 60 - 192}")
    a(f"v_cmp_eq_u32 vcc, 1, v14")
    a(f"v_cndmask_b32 v17, v17, v16, vcc")
    a(f"v_lshl_add_u32 v17, v12, 2, v17")
    a(f"v_lshl_add_u32 v17, v13, 4, v17")
    a(f"v_add_u32 v17, s71, v17")
    a(f"s_lshl_b32 s72, s{sHf}, 8")
    a(f"v_add_u32 v{vA}, s72, v17")
    a(f"s_add_u32 s58, s71, {U0 + 4096}")
    a(f"v_mov_b32 v16, s58")
    a(f"s_cmp_eq_u32 s{sHf}, 0")
    a(f"s_cselect_b64 vcc, -1, 0")
    a(f"v_cndmask_b32 v{vDl}, v16, v17, vcc")
    a(f"v_mov_b32 v17, {U0 + 448}")
    a(f"v_mov_b32 v16, {U1 + 448}")
    a(f"v_cmp_eq_u32 vcc, 1, v14")
    a(f"v_cndmask_b32 v17, v17, v16, vcc")
    a(f"v_lshrrev_b32 v16, 1, v12")
    a(f"v_lshlrev_b32 v16, 6, v16")
    a(f"v_sub_u32 v17, v17, v16")
    a(f"v_lshl_add_u32 v17, v13, 4, v17")
    a(f"s_add_u32 s72, s72, s71")
    a(f"v_add_u32 v{vB}, s72, v17")
    stamp(a, 7, 2)
    vm.wait('cvu'); sig(a, 'CV0')
    lwait(a, 'CV0', 34)
    stamp(a, 5); stamp(a, 8, 2)
    ACC = 16; HI = 48; LOW = [80, 112]; DL = 252
    def Areg(p, it): return (LOW[it % 2] + 4*p) if p < 4 else (HI + 4*(p-4))
    def Breg(q, it): return (LOW[it % 2] + 16 + 4*q) if q < 4 else (HI + 16 + 4*(q-4))
    def rdA(p, it):
        rg = Areg(p, it); o = 192 + 512*p + 64*it
        return [f"ds_read_b64 v[{rg}:{rg+1}], v{vA} offset:{o}", f"ds_read_b64 v[{rg+2}:{rg+3}], v{vA} offset:{o+8}"]
    def rdB(q, it):
        rg = Breg(q, it); o = 3584 - 512*q + 64*it
        return [f"ds_read_b128 v[{rg}:{rg+3}], v{vB} offset:{o}"]
    def cmf(T, A, B, first=False):
        c = "0" if first else f"v[{ACC+4*T}:{ACC+4*T+3}]"
        return f"v_mfma_f32_16x16x32_bf16 v[{ACC+4*T}:{ACC+4*T+3}], v[{A}:{A+3}], v[{B}:{B+3}], {c}"
    a(f"ds_read_b64 v[{DL}:{DL+1}], v{vDl}")
    a(f"ds_read_b64 v[{DL+2}:{DL+3}], v{vDl} offset:8")
    for p in range(4):
        for rr in rdA(p, 0) + rdB(p, 0): a(rr)
    for it in range(4):
        a("s_waitcnt lgkmcnt(0)")
        if it == opt("i6", 1):
            lwait(a, 'B6', 10)
            w2_dma(a, vm, 5, 0); w2_dma(a, vm, 6, 0)
        if it == opt("i6", 1) + 1:
            vm.drain(); sig(a, 'W2A')
        rd = []
        for p in range(4, 8): rd += rdA(p, it) + rdB(p, it)
        ms = []
        if it == 0: ms += [cmf(T, DL, Breg(T, 0), True) for T in range(4)]
        seen = set(range(4)) if it == 0 else set(range(8))
        for p in range(4):
            for q in range(4):
                T = p + q
                ms.append(cmf(T, Areg(p, it), Breg(q, it), T not in seen)); seen.add(T)
        for k, m in enumerate(ms):
            a(m)
            if k < len(rd): a(rd[k])
        a("s_waitcnt lgkmcnt(0)")
        if it == 0:
            lwait(a, 'B5', 10)
            w2_dma(a, vm, 3, 0); w2_dma(a, vm, 4, 0)
        if it == 3: sig(a, 'CV1')
        rd = []
        if it < 3:
            for p in range(4): rd += rdA(p, it+1) + rdB(p, it+1)
        ms = []
        for hp in range(4, 8):
            for l in range(0, 8 - hp):
                T = hp + l
                ms.append(cmf(T, Areg(hp, it), Breg(l, it), T not in seen)); seen.add(T)
                ms.append(cmf(T, Areg(l, it), Breg(hp, it)))
        if it == 0: ms += [cmf(T, DL, Breg(T, 0)) for T in range(4, 8)]
        if it == 3:
            r = Rec()
            r(f"s_lshl_b32 s73, s{sA}, 13")
            r(f"s_add_u32 s73, s73, {CVL}")
            r(f"v_add_u32 v8, s73, v{vH}")
            r(f"s_lshl_b32 s73, s{sA}, 11")
            r(f"s_add_u32 s73, s73, {CVL}")
            r(f"v_add_u32 v5, s73, v{vH}")
            r(f"v_lshrrev_b32 v9, 1, v12")
            r(f"v_lshlrev_b32 v9, 7, v9")
            r(f"v_lshl_add_u32 v9, v13, 5, v9")
            r(f"v_lshl_add_u32 v9, v14, 4, v9")
            r(f"s_lshl_b32 s73, s{sCP}, 13")
            r(f"s_lshl_b32 s58, s{sA}, 11")
            r(f"s_add_u32 s73, s73, s58")
            r(f"s_add_u32 s73, s73, {WS_Y}")
            r(f"ds_read_b32 v10, v{vCa} offset:{EV['CV1']}")
            rd = r.l
        for k, m in enumerate(ms):
            a(m)
            if k < len(rd): a(rd[k])
    stamp(a, 6)
    vm.q = []
    a("s_waitcnt lgkmcnt(0)")
    a("s_nop 3")
    lwait(a, 'CV1', 10, pre=True)
    for T in range(8): a(f"ds_write_b128 v8, v[{ACC+4*T}:{ACC+4*T+3}] offset:{1024*T}")
    sig(a, 'CV2')
    g2_setup(a, 1)
    a(f"s_lshr_b32 s65, s{sCP}, 5")
    a(f"s_lshl_b32 s65, s65, 9")
    a(f"s_lshl_b32 s58, s{sA}, 7")
    a(f"s_add_u32 s65, s65, s58")
    a(f"s_and_b32 s58, s{sCP}, 31")
    a(f"s_lshl_b32 s58, s58, 2")
    a(f"s_add_u32 s65, s65, s58")
    a(f"s_add_u32 s65, s65, {WS_F4}")
    lwait(a, 'CV2', 10)
    for t2 in range(2):
        for w in range(4): a(f"ds_read_b128 v[{80+16*t2+4*w}:{83+16*t2+4*w}], v5 offset:{8192*w + 1024*t2}")
    sig(a, 'CV3')
    a(f"s_waitcnt lgkmcnt(0)")
    for t2 in range(2):
        b = 80 + 16*t2
        for rr in range(4):
            a(f"v_add_f32 v{b+rr}, v{b+rr}, v{b+8+rr}")
            a(f"v_add_f32 v{b+4+rr}, v{b+4+rr}, v{b+12+rr}")
        for rr in range(4): a(f"v_cvt_pk_bf16_f32 v{b+8+rr}, v{b+rr}, v{b+4+rr}")
        a(f"buffer_store_dwordx4 v[{b+8}:{b+11}], v9, {srd(sWS)}, s73 offen offset:{1024*t2} sc1")
    vm.add('y', 2)
    spoll(a, 64, 7)
    stamp(a, 7)
    for j in range(HRN): hload(a, vm, j)
    tr_setup(a, 4)
    vm.wait('y')
    wflag(a, 65, 8, 9); vm.add('f4')
    lwait(a, 'W2B', 10, own=True)
    for b in range(NSTG, 7): pair_reads(a, b, W2BLK[b], 4)
    sig(a, 'PRE')
    lread(a, 'CV3', 11)
    a("s_waitcnt lgkmcnt(0)")
    g2_loop(a, vm, 1)
    stamp(a, 8)
    a("s_nop 7")
    lwait(a, 'CV3', 11, pre=True)
    g2_partials(a, 1)
    sig(a, 'XP')
    stamp(a, 9)
    a("s_branch L_fin")

def cost(s):
    m = s.split()[0]
    return 8 if m in TRANS else 4
def mwave(a):
    vm = VM(a)
    sTH, sCH = 60, 61
    a(f"s_setprio {opt('prio', 2)}")
    a(f"s_and_b32 s{sTH}, s{sA}, 1")
    a(f"s_lshr_b32 s{sCH}, s{sA}, 1")
    vXa = [4, 5, 6, 7]; vWa = [8, 9]
    a(f"v_and_b32 v10, 31, v{vL}")
    a(f"v_lshrrev_b32 v11, 5, v{vL}")
    P = 16
    KR, VR, SHR, HLO = P+4, P+16, P+24, P+1
    a(f"s_lshl_b32 s74, s{sLR}, 9")
    a(f"v_lshlrev_b32 v13, 4, v10")
    a(f"s_mul_i32 s73, s{sTT}, {64*896}")
    a(f"s_lshl_b32 s58, s{sLR}, 7")
    a(f"s_add_u32 s73, s73, s58")
    a(f"s_sub_u32 s73, s73, 2688")
    a(f"s_cmp_eq_u32 s{sTT}, 0")
    a(f"s_cselect_b32 s73, 0x40000000, s73")
    a(f"v_lshlrev_b32 v12, 2, v10")
    kernarg_wait(a)
    a(f"buffer_load_dwordx4 v[{SHR}:{SHR+3}], v13, {srd(sSH)}, s74 offen")
    a(f"s_cmp_lg_u32 s{sA}, 0")
    a(f"s_cbranch_scc1 L_nohalo")
    for j in range(3): a(f"buffer_load_dword v{HLO+j}, v12, {srd(sK)}, s73 offen offset:{896*j}")
    a.label("L_nohalo")
    if opt("tlb", 1):
        a(f"s_cmp_lg_u32 s{sA}, 1")
        a(f"s_cbranch_scc1 L_notouch")
        a(f"v_mov_b32 v48, 0")
        a(f"s_mov_b64 exec, 1")
        for r_ in (sSK, sD, sW2, sO, sWS):
            a(f"buffer_load_dword v49, v48, {srd(r_)}, 0 offen offset:{512 if r_ == sWS else 0}")
        a(f"s_mov_b64 exec, -1")
        a.label("L_notouch")
    a(f"v_bfe_u32 v14, v10, 1, 3")
    a(f"v_xor_b32 v14, v14, v11")
    a(f"s_lshl_b32 s58, s{sTH}, 13")
    a(f"v_lshlrev_b32 v48, 7, v10")
    a(f"v_add_u32 v48, s58, v48")
    for ks in range(4):
        a(f"v_xor_b32 v49, {2*ks}, v14")
        a(f"v_lshl_add_u32 v{vXa[ks]}, v49, 4, v48")
    a(f"v_bfe_u32 v14, v{vL}, 2, 2")
    a(f"v_lshl_add_u32 v48, v11, 3, v14")
    a(f"v_lshlrev_b32 v48, 7, v48")
    a(f"v_lshrrev_b32 v14, 1, v14")
    a(f"v_xor_b32 v14, s{sCH}, v14")
    a(f"v_lshl_add_u32 v48, v14, 6, v48")
    a(f"v_bfe_u32 v14, v{vL}, 4, 1")
    a(f"v_lshl_add_u32 v48, v14, 5, v48")
    a(f"v_and_b32 v14, 3, v{vL}")
    a(f"v_lshl_add_u32 v48, v14, 3, v48")
    a(f"v_add_u32 v{vWa[0]}, {WA0}, v48")
    a(f"v_add_u32 v{vWa[1]}, {WB0}, v48")
    flag_setup(a)
    rot_setup(a)
    a(f"s_lshl_b32 s67, s{sI}, 1")
    a(f"s_add_u32 s67, s67, s{sTH}")
    a(f"s_lshl_b32 s62, s67, 10")
    a(f"s_add_u32 s62, s62, {WS_STATS}")
    a(f"s_lshl_b32 s63, s{sJ}, 11")
    a(f"s_lshl_b32 s58, s{sCH}, 9")
    a(f"s_add_u32 s63, s63, s58")
    a(f"s_add_u32 s63, s63, {WS_CS}")
    a(f"s_add_u32 s64, s63, {F*16}")
    a(f"s_lshl_b32 s66, s{sJ}, 1")
    a(f"s_add_u32 s66, s66, s{sCH}")
    a(f"s_mul_i32 s68, s67, 56")
    a(f"s_add_u32 s68, s68, s66")
    a(f"s_lshl_b32 s68, s68, 11")
    a(f"s_add_u32 s68, s68, {WS_H}")
    a(f"s_add_u32 s69, s68, {56*1024}")
    a(f"s_add_u32 s70, s68, {HTYPE}")
    a(f"s_add_u32 s71, s69, {HTYPE}")
    a(f"s_mul_i32 s58, s66, 37")
    a(f"s_lshr_b32 s58, s58, 8")
    a(f"s_add_u32 s66, s66, s58")
    a(f"s_lshl_b32 s72, s67, 7")
    a(f"s_lshl_b32 s66, s66, 2")
    a(f"s_add_u32 s72, s72, s66")
    a(f"s_add_u32 s72, s72, {WS_F3}")
    a(f"s_add_u32 s65, s72, 4096")
    a(f"s_lshl_b32 s58, s{sA}, 11")
    a(f"s_add_u32 s58, s58, {KVL - 384}")
    a(f"v_lshl_add_u32 v14, v11, 10, v12")
    a(f"v_add_u32 v14, s58, v14")
    a(f"v_mul_u32_u24 v{P}, 288, v10")
    a(f"v_lshlrev_b32 v48, 4, v11")
    a(f"v_sub_u32 v{P}, v{P}, v48")
    a(f"s_lshl_b32 s58, s{sA}, 5")
    a(f"s_sub_u32 s58, {PST + 112}, s58")
    a(f"v_add_u32 v{P}, s58, v{P}")
    a(f"s_cmp_eq_u32 s{sA}, 0")
    a(f"s_cselect_b32 s74, -1, 0")
    a(f"s_mov_b32 s75, 0")
    r = Rec()
    for j in range(11): r(f"ds_read_b32 v{KR+j}, v14 offset:{128*j}")
    for j in range(8): r(f"ds_read_b32 v{VR+j}, v14 offset:{8192 + 384 + 128*j}")
    r(";GAP"); r(";GAP"); r(";GAP")
    r("s_waitcnt vmcnt(0) lgkmcnt(0)")
    for j in range(3): r(f"v_cndmask_b32 v{KR+j}, v{KR+j}, v{HLO+j}, s[74:75]")
    for h in range(2):
        un = lo if h == 0 else hi
        T = P + 28; O = T + 16; R_ = O + 8
        for j in range(11): un(r, T+j, KR+j)
        lo(r, T+11, SHR+2*h); hi(r, T+12, SHR+2*h); lo(r, T+13, SHR+1+2*h); hi(r, T+14, SHR+1+2*h)
        for t in range(8): r(f"v_mul_f32 v{O+t}, v{T+14}, v{T+t}")
        for t in range(8): r(f"v_fmac_f32 v{O+t}, v{T+13}, v{T+1+t}")
        for t in range(8): r(f"v_fmac_f32 v{O+t}, v{T+12}, v{T+2+t}")
        for t in range(8): r(f"v_fmac_f32 v{O+t}, v{T+11}, v{T+3+t}")
        for j in range(8): un(r, T+j, VR+j)
        for t in range(8): r(f"v_mul_f32 v{O+t}, v{O+t}, v{T+t}")
        for p in range(4): r(f"v_cvt_pk_bf16_f32 v{R_+4*h+p}, v{O+7-2*p}, v{O+6-2*p}")
    r(";AFTER2")
    for h in range(2): r(f"ds_write_b128 v{P}, v[{R_+4*h}:{R_+4*h+3}] offset:{144*h}")
    prep_side = r.l
    epoch_hash(a)
    a(f"v_mov_b32 v{vE}, s{sE}")
    stamp(a, 1)
    ACCB = {(0,0): 128, (0,1): 160, (1,0): 192, (1,1): 224}
    CSF = {(0,0): 48, (0,1): 52, (1,0): 56, (1,1): 60}
    MF = [64, 68]
    ST = [72, 76]
    def epilogue(r, half):
        for tt in range(2):
            nrs = ST[tt] + 1
            G = ACCB[(half, 0)] + 16*tt; U = ACCB[(half, 1)] + 16*tt
            for kp in range(2):
                T = 20 + 8*((2*tt + kp) % 2)
                g = lambda e8: G + 8*kp + e8
                u = lambda e8: U + 8*kp + e8
                for e8 in range(10):
                    if e8 < 8: r(f"v_mul_f32 v{T+e8}, v{nrs}, v{g(e8)}")
                    if 1 <= e8 < 9:
                        r(f"v_exp_f32 v{T+e8-1}, v{T+e8-1}")
                        r(f"v_mul_f32 v{g(e8-1)}, v{g(e8-1)}, v{u(e8-1)}")
                    if 2 <= e8:
                        r(f"v_add_f32 v{T+e8-2}, 1.0, v{T+e8-2}")
                for e8 in range(9):
                    if e8 < 8: r(f"v_rcp_f32 v{T+e8}, v{T+e8}")
                    if e8 >= 1:
                        r(f"v_mul_f32 v{g(e8-1)}, v{g(e8-1)}, v{T+e8-1}")
                        if e8 % 2 == 0: r(f"v_cvt_pk_bf16_f32 v{U+8*kp+(e8-2)//2}, v{g(e8-2)}, v{g(e8-1)}")
                r(f";Q{half}{tt}{kp}")
        for tt in range(2):
            U = ACCB[(half, 1)] + 16*tt
            for kp in range(2):
                r(f"buffer_store_dwordx4 v[{U+8*kp}:{U+8*kp+3}], v{vH}, {srd(sWS)}, s{68 + 2*half + tt} offen offset:{1024*kp} sc1")
                r(f";ST{half}{tt}{kp}")
    def opnd_loads():
        for tt in range(2): a(f"buffer_load_dwordx4 v[{ST[tt]}:{ST[tt]+3}], v13, {srd(sWS)}, s62 offen offset:{512*tt} sc1")
        for h in range(2):
            for m in range(2):
                a(f"buffer_load_dwordx4 v[{CSF[(h,m)]}:{CSF[(h,m)]+3}], v13, {srd(sWS)}, s{63+m} offen offset:{1024*h} sc1")
    def fold(half):
        for m in range(2):
            for tt in range(2):
                acc = ACCB[(half, m)] + 16*tt; f = CSF[(half, m)]
                a(f"v_mfma_f32_32x32x16_bf16 v[{acc}:{acc+15}], v[{f}:{f+3}], v[{MF[tt]}:{MF[tt]+3}], v[{acc}:{acc+15}]")
    units = [('F',0),('F',1),('F',2),('A',3),('B',3),('A',4),('A',5),('A',6),('B',4),('B',5),('B',6)]
    FL = {8: 'WB56'}
    NBAR = 7
    mf = []; frags = {}; order = []; started = set()
    for ui, (ty, p) in enumerate(units):
        halves = (0, 1) if ty == 'F' else (0,) if ty == 'A' else (1,)
        for ks in range(4):
            def fx(tt):
                n = ('X', ui, ks, tt)
                if n not in frags:
                    frags[n] = (ui, [f"ds_read_b128 v[{{r0}}:{{r3}}], v{vXa[ks]} offset:{XS(p) + tt*4096}"]); order.append(n)
                return n
            def fw(h, m):
                n = ('W', ui, ks, h, m)
                if n not in frags:
                    o = WOFF(h, p) + m*8192 + ks*2048
                    frags[n] = (ui, [f"ds_read_b64_tr_b16 v[{{r0}}:{{r1}}], v{vWa[h]} offset:{o}",
                                     f"ds_read_b64_tr_b16 v[{{r2}}:{{r3}}], v{vWa[h]} offset:{o + 512}"]); order.append(n)
                return n
            for h in halves:
                for m in range(2):
                    for tt in range(2):
                        w = fw(h, m); x = fx(tt)
                        mf.append((ui, ACCB[(h, m)] + 16*tt, w, x))
    last_use = {}
    for i, (_, _, w, x) in enumerate(mf): last_use[w] = i; last_use[x] = i
    free = [80 + 4*i for i in range(12)]
    reg = {}; read_end = {}
    st = dict(lds=0, done=0, qi=0, unit=-1, since=99, i=-1, gap=0, flagread=None)
    rtime = []; side = []
    def lds_op(text, late=False):
        a(text); st['lds'] += 1; rtime.append(st['i'] + (100 if late else 0)); st['gap'] += 4
    def issue_reads(maxn):
        n = 0
        while st['qi'] < len(order) and n < maxn and free:
            nme = order[st['qi']]; ui, tmpl = frags[nme]
            if ui > st['unit']:
                if ui == 3 and side: return
                if ui in FL and st['flagread'] != ui:
                    lds_op(f"ds_read_b32 v14, v{vCa} offset:{EV[FL[ui]]}")
                    st['flagread'] = ui; st['since'] = 0
                if ui < NBAR or ui in FL:
                    if st['since'] < 3: return
                    a("s_waitcnt lgkmcnt(0)"); st['done'] = st['lds']
                if ui < NBAR: a("s_barrier")
                if ui >= 8: lds_op(f"ds_write_b32 v{vCo}, v{vE} offset:{EV[['A6','B4','B5'][ui-8]]}", True)
                if ui in FL: lwait(a, FL[ui], 14, pre=True)
                st['unit'] = ui
                stamp(a, min(ui + 1, 9), 1) if ui != 4 else None
                on_unit(ui)
            r0 = free.pop(0); reg[nme] = r0
            for t in tmpl:
                lds_op(t.format(r0=r0, r1=r0+1, r2=r0+2, r3=r0+3)); n += 1
            read_end[nme] = st['lds']; st['qi'] += 1; st['since'] = 0
            if st['qi'] == len(order): lds_op(f"ds_write_b32 v{vCo}, v{vE} offset:{EV['B6']}", True)
    def on_unit(ui):
        if ui == 0: stamp(a, 2)
        if ui == 1: side.extend(prep_side)
        if ui == 4: side.extend(f"v_mov_b32 v{r_}, 0" for r_ in (66, 67, 70, 71))
        if ui == opt("opu", 6): opnd_loads()
    issue_reads(12)
    firstB4 = next(i for i, m in enumerate(mf) if m[0] == 8)
    BUD = opt("bud", 24)
    def run_side(budget):
        while side:
            s_ = side[0]
            if s_.startswith(";ST"):
                side.pop(0); vm.add('hA'); continue
            if s_.startswith(";Q"): side.pop(0); continue
            if s_.startswith("buffer_store"): side.pop(0); a(s_); continue
            if s_ == ";GAP": side.pop(0); return
            if s_ == ";AFTER2":
                if st['unit'] < 2: return
                side.pop(0); continue
            c = cost(s_)
            if st['gap'] + c > budget and st['gap'] > 0: return
            side.pop(0)
            if s_.startswith("ds_"): lds_op(s_, True)
            else:
                a(s_); st['gap'] += c
                if "lgkmcnt(0)" in s_: st['done'] = st['lds']
    for i, (ui, acc, w, x) in enumerate(mf):
        while w not in reg or x not in reg:
            st['since'] = 99; st['gap'] = 0; run_side(1000 if ui == 3 else 0); issue_reads(2)
        need = max(read_end[w], read_end[x])
        if need > st['done']:
            old = [k+1 for k, t in enumerate(rtime) if t <= i - 4]
            need = max([need] + old)
            n = st['lds'] - need
            a(f"s_waitcnt lgkmcnt({min(n, 14)})"); st['done'] = st['lds'] - min(n, 14)
        st['i'] = i; st['gap'] = 0
        c = f"v[{acc}:{acc+15}]" if acc in started else "0"; started.add(acc)
        a(f"v_mfma_f32_32x32x16_bf16 v[{acc}:{acc+15}], v[{reg[w]}:{reg[w]+3}], v[{reg[x]}:{reg[x]+3}], {c}")
        st['since'] += 1
        for f in (w, x):
            if last_use[f] == i: free.append(reg[f])
        issue_reads(2)
        if i == firstB4 - 1:
            assert not side
            a("s_mov_b32 s59, 0")
            a.label("L_opnd")
            a("s_waitcnt vmcnt(0)")
            a(f"v_cmp_ne_u32 vcc, s{sE}, v{ST[0]+2}")
            for rg in (ST[1], 48, 52, 56, 60):
                a(f"v_cmp_ne_u32 s[74:75], s{sE}, v{rg+2}")
                a(f"s_or_b64 vcc, vcc, s[74:75]")
            a("s_cbranch_vccz L_opnd_ok")
            a("s_add_u32 s59, s59, 1")
            a("s_cmp_lt_u32 s59, 0x40000")
            a("s_cbranch_scc0 L_opnd_ok")
            a("s_sleep 4")
            opnd_loads()
            a("s_branch L_opnd")
            a.label("L_opnd_ok")
            a(f"v_cmp_gt_u32 vcc, 32, v{vL}")
            for tt in range(2):
                a(f"v_xor_b32 v{ST[tt]}, 0x80000000, v{ST[tt]}")
                a(f"v_cndmask_b32 v{ST[tt]}, 0, v{ST[tt]}, vcc")
                a(f"v_lshrrev_b32 v{MF[tt]+1}, 16, v{ST[tt]}")
                a(f"v_or_b32 v{MF[tt]}, v{MF[tt]+1}, v{ST[tt]}")
                a(f"v_mul_f32 v{ST[tt]+1}, {fh(-1.4426950408889634)}, v{ST[tt]+1}")
            fold(0); fold(1)
            stamp(a, 3)
            r = Rec(); epilogue(r, 0); side.extend(r.l)
        run_side(BUD)
    st['gap'] = 0; run_side(100000)
    stamp(a, 4)
    r = Rec(); epilogue(r, 1)
    for s_ in r.l:
        if s_.startswith(";ST"):
            vm.add('hB'); continue
        if s_.startswith(";Q"):
            if s_ == ";Q1" + ("00", "01", "10", "11")[opt("fa", 3)]:
                vm.wait('hA'); wflag(a, 72, 44, 45); vm.add('fA')
            continue
        a(s_)
    stamp(a, 5)
    a(f"s_setprio {opt('prio2', 0)}")
    g2_setup(a, 0)
    tr_setup(a, 11)
    w2_setup(a)
    a(f"s_lshl_b32 s75, s{sLR}, 7")
    a(f"s_add_u32 s76, s75, {64*896}")
    lwait(a, 'W2A', 8, own=True)
    for b in range(7): pair_reads(a, b, W2BLK[b], 11)
    a("s_waitcnt lgkmcnt(0)")
    stamp(a, 6)
    NB1 = opt("nb1", 2)
    for b in range(NSTG, NSTG + NB1): w2_dma(a, vm, b, 1)
    vm.wait('hB')
    wflag(a, 65, 8, 9); vm.add('fB')
    spoll(a, 64, 7)
    for j in range(HRN): hload(a, vm, j)
    for b in range(NSTG + NB1, 7): w2_dma(a, vm, b, 1)
    stamp(a, 7)
    E0 = 144
    def hook(j):
        if j == HRN: sig(a, 'W2B')
        if j == 15:
            a(f"v_and_b32 v6, 31, v{vL}")
            a(f"v_lshrrev_b32 v7, 5, v{vL}")
            a(f"s_lshl_b32 s68, s{sTT}, 6")
            a(f"v_add_u32 v6, s68, v6")
            a(f"v_lshlrev_b32 v4, 4, v6")
            a(f"s_mov_b32 s71, {WS_STATS}")
            for th in range(2): a(f"buffer_load_dwordx2 v[{E0+2*th}:{E0+1+2*th}], v4, {srd(sWS)}, s71 offen offset:{512*th} sc1")
            a(f"v_mul_u32_u24 v4, 896, v6")
            a(f"v_lshl_add_u32 v4, v7, 4, v4")
            a(f"s_lshl_b32 s71, s{sLR}, 7")
            a(f"s_lshl_b32 s73, s{sA}, 5")
            a(f"s_add_u32 s71, s71, s73")
            a(f"s_add_u32 s72, s71, {32*896}")
            for th in range(2): a(f"buffer_load_dwordx4 v[{E0+4+4*th}:{E0+7+4*th}], v4, {srd(sQ)}, s{71+th} offen")
            vm.add('e', 4)
            a(f"v_and_b32 v5, 0x7f8, v6")
            a(f"v_and_b32 v9, 1, v6")
            a(f"v_lshl_add_u32 v5, v9, 2, v5")
            a(f"v_bfe_u32 v9, v6, 1, 2")
            a(f"v_add_u32 v5, v5, v9")
            a(f"v_lshlrev_b32 v5, 2, v5")
            a(f"v_lshl_add_u32 v5, v7, 15, v5")
            a(f"s_lshl_b32 s73, s{sLR}, 5")
            a(f"s_lshl_b32 s75, s{sA}, 3")
            a(f"s_add_u32 s73, s73, s75")
            a(f"s_lshl_b32 s73, s73, 13")
            a(f"s_add_u32 s73, s73, {WS_Y}")
            a(f"s_lshl_b32 s75, s{sLR}, 9")
            a(f"s_lshr_b32 s76, s{sTT}, 3")
            a(f"s_lshl_b32 s76, s76, 7")
            a(f"s_add_u32 s75, s75, s76")
            a(f"s_lshl_b32 s76, s{sA}, 5")
            a(f"s_add_u32 s75, s75, s76")
            a(f"s_add_u32 s75, s75, {WS_F4}")
    g2_loop(a, vm, 0, hook)
    stamp(a, 8)
    a("s_nop 7")
    lwait(a, 'PRE', 8, own=True)
    g2_partials(a, 0)
    sig(a, 'MP')
    spoll(a, 75, 8)
    Y0 = E0 + 12
    for p in range(4):
        for th in range(2): a(f"buffer_load_dword v{Y0+4*th+p}, v5, {srd(sWS)}, s73 offen offset:{128*th} sc1")
        a(f"s_add_u32 s73, s73, 8192")
    a(f"s_lshl_b32 s76, s{sA}, 14")
    a(f"v_add_u32 v9, s76, v{vH}")
    a(f"v_add_u32 v10, 0x10000, v9")
    lwait(a, 'MP', 8)
    def rd_part(vb, dst):
        for th in range(2):
            for src in range(4):
                r0 = dst + 32*th + 8*src
                a(f"ds_read_b128 v[{r0}:{r0+3}], v{vb} offset:{4096*src + 2048*th}")
                a(f"ds_read_b128 v[{r0+4}:{r0+7}], v{vb} offset:{4096*src + 2048*th + 1024}")
    rd_part(9, 16)
    XB, XN = 176, 192
    a("s_waitcnt vmcnt(8)")
    for th in range(2):
        for p in range(4):
            lo(a, XB+8*th+2*p, E0+4+4*th+p); hi(a, XB+1+8*th+2*p, E0+4+4*th+p)
        for e in range(8):
            a(f"v_sub_f32 v{XN+8*th+e}, v{XB+8*th+e}, v{E0+2*th}")
            a(f"v_mul_f32 v{XN+8*th+e}, v{XN+8*th+e}, v{E0+1+2*th}")
        a(f"v_mul_f32 v{E0+1+2*th}, v{E0+1+2*th}, v{E0+1+2*th}")
    a("s_waitcnt lgkmcnt(0)")
    SM = 208
    for th in range(2):
        b = 16 + 32*th
        for e in range(8):
            a(f"v_add_f32 v{b+e}, v{b+e}, v{b+8+e}")
            a(f"v_add_f32 v{b+16+e}, v{b+16+e}, v{b+24+e}")
        for e in range(8): a(f"v_add_f32 v{SM+8*th+e}, v{b+e}, v{b+16+e}")
    a("s_waitcnt vmcnt(0)")
    for th in range(2):
        for p in range(4):
            lo(a, 224+2*p, Y0+4*th+p); hi(a, 225+2*p, Y0+4*th+p)
        for e in range(8): a(f"v_fmac_f32 v{XB+8*th+e}, v{XN+8*th+e}, v{224+e}")
    stamp(a, 9)
    lwait(a, 'XP', 8)
    rd_part(10, 16)
    for th in range(2):
        b = 16 + 32*th
        a(f"s_waitcnt lgkmcnt({8*(1-th)})")
        for e in range(8):
            a(f"v_add_f32 v{b+e}, v{b+e}, v{b+8+e}")
            a(f"v_add_f32 v{b+16+e}, v{b+16+e}, v{b+24+e}")
        for e in range(8): a(f"v_add_f32 v{b+e}, v{b+e}, v{SM+8*th+e}")
        for e in range(8): a(f"v_add_f32 v{b+e}, v{b+e}, v{b+16+e}")
        for rr in range(4): a(f"v_permlane32_swap_b32 v{b+rr}, v{b+4+rr}")
        for e in range(8): a(f"v_fmac_f32 v{XB+8*th+e}, v{E0+1+2*th}, v{b+e}")
        for p in range(4): a(f"v_cvt_pk_bf16_f32 v{224+4*th+p}, v{XB+8*th+2*p}, v{XB+8*th+1+2*p}")
        a(f"buffer_store_dwordx4 v[{224+4*th}:{227+4*th}], v4, {srd(sO)}, s{71+th} offen")

a = Asm()
stamp(a, 0)
prologue(a)
a(f"s_cmp_lt_u32 s{sSLOT}, 4")
a("s_cbranch_scc1 L_spare")
a(f"s_cmp_lt_u32 s{sWV}, 4")
a("s_cbranch_scc1 L_mwave")
aux(a)
a.label("L_spare")
spare(a)
a("s_branch L_fin")
a.label("L_mwave")
mwave(a)
a.label("L_fin")
stamp_flush(a)
a.label("L_end")
a("s_endpgm")
kn = NAME + "_kernel"
hdr = open("cdna_kernels/%s.s.ref" % NAME).read().split("; Override launch")[0]
out = hdr + f"; @launch grid=(256,1,1) block=(512,1,1) lds={LDS_BYTES}\n"
out += '.amdgcn_target "amdgcn-amd-amdhsa--gfx950"\n.text\n'
out += f".globl {kn}\n.p2align 8\n.type {kn},@function\n{kn}:\n" + a.finalize()
out += f""".section .rodata,"a"
.p2align 6
.amdhsa_kernel {kn}
  .amdhsa_next_free_vgpr 256
  .amdhsa_next_free_sgpr 102
  .amdhsa_accum_offset 256
  .amdhsa_group_segment_fixed_size 0
  .amdhsa_kernarg_size 104
  .amdhsa_user_sgpr_count 2
  .amdhsa_user_sgpr_kernarg_segment_ptr 1
  .amdhsa_system_sgpr_workgroup_id_x 1
  .amdhsa_float_denorm_mode_32 3
.end_amdhsa_kernel
"""
dst = sys.argv[1] if len(sys.argv) > 1 and not sys.argv[1].startswith("--") else "cdna_kernels/%s.s" % NAME
open(dst, "w").write(out)
print("wrote", dst, len(out), "barriers:", out.count("s_barrier"))
```

```python
import sys, struct
from asmdsl import Asm, TRANS

NAME = "parallel_sum__ssm_conv_h3__glu_gated_swiglu__prompt"
S, D, F = 2048, 448, 1792
WS_F1, WS_F2, WS_F3, WS_F4 = 0x1000, 0x3000, 0x4000, 0x6000
WS_STATS = 0x10000
WS_CS    = 0x18000
WS_R     = 0x30000
RP       = 4224
WS_Y     = 0x200000
WS_H     = 0x400000
HTYPE    = 64*56*1024
WS_BYTES = 0x1000000
WS_DBG   = 0xF00000
STAMP = "--stamp" in sys.argv
CLK = "s_memtime" if "--cyc" in sys.argv else "s_memrealtime"
def NT(name, default=0): return " nt" if opt(name, default) else ""
def opt(name, default):
    for x in sys.argv:
        if x.startswith(f"--{name}="): return int(x.split("=")[1])
    return default

sQ, sK, sV, sSH, sSK, sD, sW1, sW3, sW2, sO, sWS = 4, 8, 12, 16, 20, 24, 28, 32, 36, 40, 44
def srd(b): return f"s[{b}:{b+3}]"
SRD_INFO = {
    'q': (sQ, 0, S*D*2), 'w1': (sW1, 56, D*F*2), 'w3': (sW3, 64, D*F*2), 'ws': (sWS, 96, WS_BYTES),
    'k': (sK, 8, S*D*2), 'v': (sV, 16, S*D*2), 'sh': (sSH, 24, D*8),
    'sk': (sSK, 32, D*S*2), 'd': (sD, 40, D*2),
    'w2': (sW2, 72, D*F*2), 'o': (sO, 80, S*D*2),
}
sROT = 3
sA, sI, sJ, sTT = 48, 49, 50, 51
sX, sLQ, sLR, sWV, sSLOT = 52, 53, 54, 55, 56
sE = 78
sA4K = 57
def fh(f): return "0x%08x" % struct.unpack("<I", struct.pack("<f", f))[0]
def lo(a, d, s): a(f"v_lshlrev_b32 v{d}, 16, v{s}")
def hi(a, d, s): a(f"v_and_b32 v{d}, 0xffff0000, v{s}")
NST = 11
SMODE = opt("smode", 0)
def stamp(a, idx, mode=0):
    if STAMP and (mode == SMODE or idx in (0, NST-1)): a(f"{CLK} s[{80+2*idx}:{81+2*idx}]")
def stamp_flush(a):
    if not STAMP: return
    a("s_waitcnt vmcnt(0) lgkmcnt(0)")
    stamp(a, NST-1)
    a(f"s_and_b32 s60, s{sWV}, 3")
    a(f"s_cmp_lg_u32 s60, 0")
    a(f"s_cbranch_scc1 L_end")
    a("s_waitcnt lgkmcnt(0)")
    a(f"s_lshl_b32 s60, s2, 7")
    a(f"s_lshl_b32 s61, s{sWV}, 13")
    a(f"s_add_u32 s60, s60, s61")
    a(f"s_add_u32 s60, s60, {WS_DBG}")
    a("v_mov_b32 v0, 0")
    for i in range(NST):
        a(f"v_mov_b32 v2, s{80+2*i}")
        a(f"v_mov_b32 v3, s{81+2*i}")
        a(f"buffer_store_dwordx2 v[2:3], v0, {srd(sWS)}, s60 offen offset:{8*i}")

UID = [0]
def uid():
    UID[0] += 1; return UID[0]
def poll(a, vaddr, vtmp, soff, n=None, sleep=4):
    n = n or uid()
    a(f"s_mov_b32 s58, 0")
    a.label(f"L_poll{n}")
    a(f"buffer_load_dword v{vtmp}, v{vaddr}, {srd(sWS)}, s{soff} offen sc1")
    a(f"s_waitcnt vmcnt(0)")
    a(f"v_cmp_ne_u32 vcc, s{sE}, v{vtmp}")
    a(f"s_cbranch_vccz L_polled{n}")
    a(f"s_add_u32 s58, s58, 1")
    a(f"s_cmp_lt_u32 s58, 0x40000")
    a(f"s_cbranch_scc0 L_polled{n}")
    a(f"s_sleep {sleep}")
    a(f"s_branch L_poll{n}")
    a.label(f"L_polled{n}")
def poll_issue(a, vaddr, vtmp, soff):
    a(f"buffer_load_dword v{vtmp}, v{vaddr}, {srd(sWS)}, s{soff} offen sc1")
def poll_check(a, vaddr, vtmp, soff):
    n = uid()
    a(f"v_cmp_ne_u32 vcc, s{sE}, v{vtmp}")
    a(f"s_cbranch_vccz L_polled{n}")
    poll(a, vaddr, vtmp, soff, n)
def spoll(a, soff, nw):
    n = uid()
    a(f"s_mov_b32 s58, 0")
    a.label(f"L_sp{n}")
    a(f"s_load_dwordx8 s[8:15], s[{sWS}:{sWS+1}], s{soff} glc")
    a(f"s_waitcnt lgkmcnt(0)")
    if nw == 7: a(f"s_mov_b32 s15, s{sE}")
    for i in range(4): a(f"s_xor_b64 s[{8+2*i}:{9+2*i}], s[{8+2*i}:{9+2*i}], s[{sE}:{sE+1}]")
    a(f"s_or_b64 s[8:9], s[8:9], s[10:11]")
    a(f"s_or_b64 s[12:13], s[12:13], s[14:15]")
    a(f"s_or_b64 s[8:9], s[8:9], s[12:13]")
    a(f"s_cbranch_scc0 L_spd{n}")
    a(f"s_add_u32 s58, s58, 1")
    a(f"s_cmp_lt_u32 s58, 0x40000")
    a(f"s_cbranch_scc1 L_sp{n}")
    a.label(f"L_spd{n}")
def wflag(a, soff, v0, v1):
    a(f"v_mov_b32 v{v0}, 0")
    a(f"v_mov_b32 v{v1}, s{sE}")
    a(f"s_mov_b64 exec, 1")
    a(f"buffer_store_dword v{v1}, v{v0}, {srd(sWS)}, s{soff} offen sc1")
    a(f"s_mov_b64 exec, -1")

def XS(p): return (3 if p == 6 else p % 3) * 16384
WB0, WA0 = 65536, 114688
def WOFF(half, p): return ((p + 1) % 3 if half == 0 else p % 3) * 16384
def WS_(half, p): return (WA0 if half == 0 else WB0) + WOFF(half, p)
CVL = 114688
CB = 18176
HA, HB, U0, U1 = 256, 4736, 8960, 13536
CNT = CVL + 2*CB
EV = {n: 16*i for i, n in enumerate(['A6','B4','B5','B6','WB5','WB6','W2A','PRE','CV0','CV1','CV2','CV3','MP','XP','W2B','WB56'])}
LDS_BYTES = 163840
W2BLK = [0, 1, 5, 2, 6, 3, 4]
NSTG = opt('nstg', 3)
KVL = 3*16384
PST = 3*16384
vL, vH, vCo, vCa, vE = 1, 2, 3, 0, 15
def sig(a, ev):
    a(f"ds_write_b32 v{vCo}, v{vE} offset:{EV[ev]}")
def lread(a, ev, vtmp, own=False):
    a(f"ds_read_b32 v{vtmp}, v{vCo if own else vCa} offset:{EV[ev]}")
def lwait(a, ev, vtmp, own=False, pre=False):
    n = uid()
    if pre:
        a(f"v_cmp_ne_u32 vcc, s{sE}, v{vtmp}")
        a(f"s_cbranch_vccz L_lwd{n}")
    a(f"s_mov_b32 s58, 0")
    a.label(f"L_lw{n}")
    lread(a, ev, vtmp, own)
    a(f"s_waitcnt lgkmcnt(0)")
    a(f"v_cmp_ne_u32 vcc, s{sE}, v{vtmp}")
    a(f"s_cbranch_vccz L_lwd{n}")
    a(f"s_add_u32 s58, s58, 1")
    a(f"s_cmp_lt_u32 s58, 0x400000")
    a(f"s_cbranch_scc0 L_lwd{n}")
    a(f"s_sleep 1")
    a(f"s_branch L_lw{n}")
    a.label(f"L_lwd{n}")
def flag_setup(a):
    a(f"v_lshlrev_b32 v{vH}, 4, v{vL}")
    a(f"s_lshl_b32 s58, s{sA}, 2")
    a(f"s_add_u32 s58, s58, {CNT}")
    a(f"v_mov_b32 v{vCo}, s58")
    a(f"v_and_b32 v{vCa}, 3, v{vL}")
    a(f"v_lshlrev_b32 v{vCa}, 2, v{vCa}")
    a(f"v_add_u32 v{vCa}, {CNT}, v{vCa}")

class Rec:
    def __init__(self): self.l = []
    def __call__(self, t): self.l += [x for x in t.split('\n') if x.strip()]
class VM:
    def __init__(self, a): self.a = a; self.q = []
    def add(self, tag, n=1): self.q += [tag]*n
    def wait(self, *tags):
        idx = max(i for i, t in enumerate(self.q) if t in tags)
        n = len(self.q) - 1 - idx
        assert n <= 63, n
        self.a(f"s_waitcnt vmcnt({n})")
    def drain(self): self.a("s_waitcnt vmcnt(0)")

def prologue(a):
    a(f"s_cmp_ge_u32 s2, 256")
    a(f"s_cbranch_scc1 L_end")
    for n, (r, off, sz) in SRD_INFO.items():
        a(f"s_load_dwordx2 s[{r}:{r+1}], s[0:1], {off}")
    a(f"v_lshrrev_b32 v1, 6, v0")
    a(f"s_and_b32 s{sX}, s2, 7")
    a(f"v_readfirstlane_b32 s{sWV}, v1")
    a(f"s_lshr_b32 s{sSLOT}, s2, 3")
    for n, (r, off, sz) in SRD_INFO.items():
        a(f"s_mov_b32 s{r+2}, {sz}")
        a(f"s_mov_b32 s{r+3}, 0x20000")
    a(f"s_sub_u32 s{sLR}, s{sSLOT}, 4")
    a(f"s_mul_i32 s{sLQ}, s{sLR}, 37")
    a(f"s_lshr_b32 s{sLQ}, s{sLQ}, 8")
    a(f"s_mul_i32 s58, s{sLQ}, 7")
    a(f"s_sub_u32 s{sLR}, s{sLR}, s58")
    a(f"s_and_b32 s{sA}, s{sWV}, 3")
    a(f"s_lshr_b32 s{sI}, s{sX}, 1")
    a(f"s_lshl_b32 s{sI}, s{sI}, 2")
    a(f"s_add_u32 s{sI}, s{sI}, s{sLQ}")
    a(f"s_and_b32 s{sJ}, s{sX}, 1")
    a(f"s_mul_i32 s{sJ}, s{sJ}, 7")
    a(f"s_add_u32 s{sJ}, s{sJ}, s{sLR}")
    a(f"s_lshl_b32 s{sTT}, s{sX}, 2")
    a(f"s_add_u32 s{sTT}, s{sTT}, s{sLQ}")
    a(f"v_and_b32 v1, 63, v0")
    a(f"s_lshl_b32 s{sA4K}, s{sA}, 12")
def rot_setup(a):
    a(f"s_lshl_b32 s3, s{sLQ}, 1")
    a(f"s_add_u32 s3, s3, s{sLR}")
    a(f"s_cmp_ge_u32 s3, 7")
    a(f"s_cselect_b32 s58, 7, 0")
    a(f"s_sub_u32 s3, s3, s58")
    if opt("rot2", 1) == 0: a("s_mov_b32 s3, 0")
def kernarg_wait(a):
    a(f"s_waitcnt lgkmcnt(0)")
    a(f"s_load_dword s{sE}, s[{sWS}:{sWS+1}], 0")
def epoch_hash(a):
    a(f"s_waitcnt lgkmcnt(0)")
    a(f"s_mul_i32 s77, s{sE}, 0x9E3779B1")
    a(f"s_add_u32 s77, s77, 0x7F4A7C15")
    a(f"s_lshr_b32 s{sE}, s77, 15")
    a(f"s_xor_b32 s{sE}, s{sE}, s77")
    a(f"s_and_b32 s{sE}, s{sE}, 0xBFFFBFFF")
    a(f"s_mov_b32 s{sE+1}, s{sE}")
def round_bf16(a, v):
    a(f"v_cvt_pk_bf16_f32 v{v}, v{v}, v{v}")
    a(f"v_lshlrev_b32 v{v}, 16, v{v}")

def spare(a):
    a(f"s_lshl_b32 s60, s{sX}, 2")
    a(f"s_add_u32 s60, s60, s{sSLOT}")
    a("v_lshrrev_b32 v2, 3, v0")
    a("v_and_b32 v3, 7, v0")
    a("v_mul_u32_u24 v4, 896, v2")
    a("v_lshl_add_u32 v4, v3, 4, v4")
    a(f"s_mul_i32 s61, s60, {64*896}")
    kernarg_wait(a)
    for n in range(7): a(f"buffer_load_dwordx4 v[{8+4*n}:{11+4*n}], v4, {srd(sQ)}, s61 offen offset:{128*n}")
    a(f"s_lshr_b32 s62, s{sX}, 1")
    a(f"s_lshl_b32 s62, s62, 2")
    a(f"s_add_u32 s62, s62, s{sSLOT}")
    a(f"s_min_u32 s62, s62, 13")
    a(f"s_cmp_ge_u32 s62, 7")
    a(f"s_cselect_b32 s64, s{sW3}, s{sW1}")
    a(f"s_cselect_b32 s65, s{sW3+1}, s{sW1+1}")
    a(f"s_cselect_b32 s63, 7, 0")
    a(f"s_cselect_b32 s68, {F*16}, 0")
    a(f"s_mov_b32 s66, {D*F*2}")
    a(f"s_mov_b32 s67, 0x20000")
    a(f"s_sub_u32 s63, s62, s63")
    a(f"s_and_b32 s69, s{sX}, 1")
    a(f"s_mul_i32 s69, s69, 7")
    a(f"s_add_u32 s63, s63, s69")
    a("v_lshrrev_b32 v6, 4, v1")
    a("v_and_b32 v5, 15, v1")
    a(f"v_mul_u32_u24 v7, 3584, v6")
    a("v_lshl_add_u32 v7, v5, 4, v7")
    a(f"s_mul_i32 s69, s{sWV}, {56*3584}")
    a(f"s_lshl_b32 s70, s63, 8")
    a(f"s_add_u32 s69, s69, s70")
    for n in range(14):
        a(f"buffer_load_dwordx4 v[{64+4*n}:{67+4*n}], v7, s[64:67], s69 offen")
        a(f"s_add_u32 s69, s69, {4*3584}")
    a("v_lshrrev_b32 v44, 1, v5")
    a("v_and_b32 v45, 1, v5")
    a("v_lshlrev_b32 v45, 4, v45")
    a("v_mov_b32 v46, 0x3f80")
    a("v_lshlrev_b32 v46, v45, v46")
    for dw in range(4):
        a(f"v_cmp_eq_u32 vcc, {dw}, v44")
        a(f"v_cndmask_b32 v{48+dw}, 0, v46, vcc")
    epoch_hash(a)
    a("v_mov_b32 v40, 0\nv_mov_b32 v41, 0\nv_mov_b32 v42, 0\nv_mov_b32 v43, 0")
    a("s_mov_b32 s70, 0x3f803f80")
    a("s_waitcnt vmcnt(14)")
    stamp(a, 2, SMODE)
    for n in range(28):
        a(f"v_dot2_f32_bf16 v{40+2*(n%2)}, v{8+n}, s70, v{40+2*(n%2)}")
        a(f"v_dot2_f32_bf16 v{41+2*(n%2)}, v{8+n}, v{8+n}, v{41+2*(n%2)}")
    a("v_add_f32 v40, v40, v42")
    a("v_add_f32 v41, v41, v43")
    for m in ("quad_perm:[1,0,3,2]", "quad_perm:[2,3,0,1]", "row_half_mirror"):
        a(f"v_add_f32_dpp v40, v40, v40 {m} row_mask:0xf bank_mask:0xf")
        a(f"v_add_f32_dpp v41, v41, v41 {m} row_mask:0xf bank_mask:0xf")
    a(f"v_mul_f32 v40, {fh(1.0/448)}, v40")
    a(f"v_mul_f32 v41, {fh(1.0/448)}, v41")
    a("v_fma_f32 v41, -v40, v40, v41")
    a("v_max_f32 v41, 0, v41")
    round_bf16(a, 40)
    round_bf16(a, 41)
    a(f"v_add_f32 v41, {fh(1e-5)}, v41")
    round_bf16(a, 41)
    a("v_sqrt_f32 v41, v41")
    round_bf16(a, 41)
    a("v_rcp_f32 v41, v41")
    a(f"v_mov_b32 v42, s{sE}")
    a(f"v_mov_b32 v43, 0")
    a("v_lshlrev_b32 v4, 4, v2")
    a(f"s_lshl_b32 s61, s60, 10")
    a(f"s_add_u32 s61, s61, {WS_STATS}")
    a("v_cmp_eq_u32 vcc, 0, v3")
    a("s_and_saveexec_b64 s[72:73], vcc")
    a(f"buffer_store_dwordx4 v[40:43], v4, {srd(sWS)}, s61 offen sc1")
    a("s_mov_b64 exec, s[72:73]")
    for n in range(14):
        a(f"s_waitcnt vmcnt({14-n})")
        c = "0" if n == 0 else "v[52:55]"
        a(f"v_mfma_f32_16x16x32_bf16 v[52:55], v[48:51], v[{64+4*n}:{67+4*n}], {c}")
    stamp(a, 4, SMODE)
    a("v_lshlrev_b32 v4, 5, v5")
    a("v_lshl_add_u32 v4, v6, 4, v4")
    a(f"s_lshl_b32 s61, s{sWV}, 9")
    a("v_add_u32 v4, s61, v4")
    a("v_cmp_gt_u32 vcc, 2, v6")
    a("s_and_saveexec_b64 s[72:73], vcc")
    a("ds_write_b128 v4, v[52:55]")
    a("s_mov_b64 exec, s[72:73]")
    a("s_waitcnt lgkmcnt(0)")
    a("s_barrier")
    stamp(a, 5, SMODE)
    a(f"s_cmp_ge_u32 s{sWV}, 2")
    a("s_cbranch_scc1 L_fin")
    a("v_lshlrev_b32 v4, 2, v0")
    for p in range(8): a(f"ds_read_b32 v{64+p}, v4 offset:{512*p}")
    a("s_waitcnt lgkmcnt(0)")
    for st in (4, 2, 1):
        for p in range(st): a(f"v_add_f32 v{64+p}, v{64+p}, v{64+p+st}")
    a(f"v_and_b32 v70, 0xffff0000, v64")
    a(f"v_sub_f32 v64, v64, v70")
    a(f"v_and_b32 v72, 0xffff0000, v64")
    a(f"v_sub_f32 v64, v64, v72")
    a(f"v_lshrrev_b32 v70, 16, v70")
    a(f"v_or_b32 v40, v70, v72")
    a(f"v_lshrrev_b32 v41, 16, v64")
    a(f"s_lshl_b32 s61, s63, 11")
    a(f"s_add_u32 s61, s61, s68")
    a(f"s_add_u32 s61, s61, {WS_CS}")
    a(f"v_lshlrev_b32 v4, 4, v0")
    a(f"buffer_store_dwordx4 v[40:43], v4, {srd(sWS)}, s61 offen sc1")
    stamp(a, 6, SMODE)
    a(f"s_cmp_lg_u32 s{sWV}, 0")
    a("s_cbranch_scc1 L_fin")
    a(f"s_lshl_b32 s61, s60, 2")
    a(f"s_add_u32 s61, s61, {WS_F2}")
    wflag(a, 61, 2, 3)
    a(f"s_cmp_lg_u32 s60, 0")
    a(f"s_cbranch_scc1 L_fin")
    a(f"v_and_b32 v4, 31, v0")
    a(f"v_lshlrev_b32 v4, 2, v4")
    a(f"s_mov_b32 s61, {WS_F2}")
    poll(a, 4, 5, 61, sleep=8)
    a(f"s_mov_b32 s61, {WS_F1}")
    a.label("L_sp_ep")
    poll(a, 4, 5, 61, sleep=8)
    a(f"s_add_u32 s61, s61, 512")
    a(f"s_cmp_lt_u32 s61, {WS_F1 + 7*512}")
    a(f"s_cbranch_scc1 L_sp_ep")
    a(f"v_mov_b32 v2, 0")
    a(f"v_mov_b32 v3, s77")
    a(f"s_mov_b64 exec, 1")
    a(f"buffer_store_dword v3, v2, {srd(sWS)}, 0 offen sc1")
    a(f"s_mov_b64 exec, -1")

def w2_setup(a):
    a(f"v_lshrrev_b32 v8, 3, v{vL}")
    a(f"v_and_b32 v9, 7, v{vL}")
    a(f"v_bfe_u32 v10, v{vL}, 4, 1")
    a(f"v_lshlrev_b32 v10, 2, v10")
    a(f"v_xor_b32 v9, v9, v10")
    a(f"v_mul_u32_u24 v8, 896, v8")
    a(f"v_lshl_add_u32 v4, v9, 4, v8")
    for i in range(1, 4): a(f"v_add_u32 v{4+i}, {i*(8*896 - 1024)}, v4")
def rot_pair(a, b):
    a(f"s_add_u32 s58, s{sROT}, {b}")
    a(f"s_cmp_ge_u32 s58, 7")
    a(f"s_cselect_b32 s59, 7, 0")
    a(f"s_sub_u32 s58, s58, s59")
    a(f"s_mul_i32 s59, s{sA}, 7")
    a(f"s_add_u32 s58, s58, s59")
def w2_dma(a, vm, b, typ, blk=None):
    if blk is None: blk = W2BLK[b]
    rot_pair(a, b)
    a(f"s_lshr_b32 s59, s58, 1")
    a(f"s_mul_i32 s59, s59, {128*896}")
    a(f"s_and_b32 s58, s58, 1")
    a(f"s_mul_i32 s58, s58, {32*896}")
    a(f"s_add_u32 s58, s58, s59")
    a(f"s_add_u32 m0, s{sA4K}, {blk*16384}")
    a(f"s_add_u32 s58, s58, s{75+typ}")
    for i in range(4): a(f"buffer_load_dwordx4 v{4+i}, {srd(sW2)}, s58 offen offset:{1024*i} lds")
    vm.add(f'w2_{typ}_{b}', 4)
def tr_setup(a, V):
    a(f"v_bfe_u32 v8, v{vL}, 2, 2")
    a(f"v_lshrrev_b32 v9, 5, v{vL}")
    a(f"v_lshl_add_u32 v10, v9, 2, v8")
    a(f"v_lshlrev_b32 v10, 7, v10")
    a(f"v_bfe_u32 v9, v{vL}, 4, 1")
    a(f"v_lshl_add_u32 v10, v9, 5, v10")
    a(f"v_and_b32 v9, 3, v{vL}")
    a(f"v_lshl_add_u32 v10, v9, 3, v10")
    a(f"v_add_u32 v10, s{sA4K}, v10")
    a(f"v_lshrrev_b32 v8, 1, v8")
    a(f"v_lshl_add_u32 v{V}, v8, 6, v10")
    a(f"v_xor_b32 v8, 1, v8")
    a(f"v_lshl_add_u32 v{V+1}, v8, 6, v10")
    a(f"v_add_u32 v{V+2}, 0x10000, v{V}")
    a(f"v_add_u32 v{V+3}, 0x10000, v{V+1}")
def pair_reads(a, b, blk, V, WR=144):
    for k2 in range(2):
        for ct in range(2):
            for z in range(2):
                base = (V if blk < 4 else V+2) + ct
                o = (blk % 4)*16384 + k2*2048 + z*1024
                f = WR + 8*(2*b + k2) + 4*ct + 2*z
                a(f"ds_read_b64_tr_b16 v[{f}:{f+1}], v{base} offset:{o}")
def stage_read(a, vm, b, blk, V, wait=True):
    vm.wait(f'w2_1_{b}')
    pair_reads(a, b, blk, V)
    if wait: a("s_waitcnt lgkmcnt(0)")

WR, AC, HR, HRN = 144, 80, 16, 16
def g2_setup(a, role):
    a(f"s_mul_i32 s62, s{sTT}, {112*1024}")
    a(f"s_add_u32 s62, s62, {WS_H + role*HTYPE}")
    a(f"s_lshl_b32 s64, s{sTT}, 7")
    a(f"s_lshl_b32 s58, s{sA}, 5")
    a(f"s_add_u32 s64, s64, s58")
    a(f"s_add_u32 s64, s64, {WS_F3 + role*4096}")
def hload(a, vm, j):
    k, tt = j // 2, j % 2
    rg = HR + 4*(j % HRN)
    if j % 4 == 0:
        rot_pair(a, k // 2)
        a(f"s_lshl_b32 s63, s58, 11")
        a(f"s_add_u32 s63, s63, s62")
        a(f"s_add_u32 s61, s63, {56*1024}")
    so = 63 if tt == 0 else 61
    a(f"buffer_load_dwordx4 v[{rg}:{rg+3}], v{vH}, {srd(sWS)}, s{so} offen offset:{1024*(k%2)} sc1")
    vm.add(f'h{j}')
def g2_loop(a, vm, role, hook=None):
    for k in range(14):
        for tt in range(2):
            j = 2*k + tt
            vm.wait(f'h{j}')
            rg = HR + 4*(j % HRN)
            for ct in range(2):
                acc = AC + 32*ct + 16*tt
                c = "0" if k == 0 else f"v[{acc}:{acc+15}]"
                f = WR + 8*k + 4*ct
                a(f"v_mfma_f32_32x32x16_bf16 v[{acc}:{acc+15}], v[{f}:{f+3}], v[{rg}:{rg+3}], {c}")
            if j >= 1 and j - 1 + HRN < 28: hload(a, vm, j - 1 + HRN)
            if hook: hook(j)
def g2_partials(a, role):
    a(f"v_add_u32 v9, s{sA4K}, v{vH}")
    if role == 1: a(f"v_add_u32 v9, 0x10000, v9")
    for th in range(2):
        for kq in range(4):
            base = AC + 32*(kq >> 1) + 16*th + 8*(kq & 1)
            o = kq*16384 + th*2048
            a(f"ds_write_b128 v9, v[{base}:{base+3}] offset:{o}")
            a(f"ds_write_b128 v9, v[{base+4}:{base+7}] offset:{o + 1024}")

def aux(a):
    vm = VM(a)
    sXo, sWo, sMw = 60, 61, 64
    vX = [16, 17, 18, 19]; vW = [20, 21, 22, 23]
    a(f"s_mul_i32 s{sXo}, s{sI}, {128*896}")
    a(f"s_mul_i32 s58, s{sA}, {32*896}")
    a(f"s_add_u32 s{sXo}, s{sXo}, s58")
    a(f"s_lshl_b32 s{sWo}, s{sJ}, 8")
    a(f"s_and_b32 s58, s{sA}, 1")
    a(f"s_mul_i32 s58, s58, {32*3584}")
    a(f"s_add_u32 s{sWo}, s{sWo}, s58")
    a(f"v_lshrrev_b32 v6, 3, v{vL}")
    a(f"v_and_b32 v7, 7, v{vL}")
    a(f"v_lshrrev_b32 v8, 4, v{vL}")
    a(f"v_xor_b32 v9, v7, v8")
    a(f"v_mul_u32_u24 v10, 896, v6")
    a(f"v_lshl_add_u32 v{vX[0]}, v9, 4, v10")
    a(f"v_xor_b32 v9, 4, v9")
    a(f"v_lshl_add_u32 v{vX[1]}, v9, 4, v10")
    a(f"v_add_u32 v{vX[1]}, {8*896-1024}, v{vX[1]}")
    a(f"v_add_u32 v{vX[2]}, {16*896-2048}, v{vX[0]}")
    a(f"v_add_u32 v{vX[3]}, {16*896-2048}, v{vX[1]}")
    a(f"v_and_b32 v9, 1, v8")
    a(f"v_lshlrev_b32 v9, 2, v9")
    a(f"v_xor_b32 v9, v7, v9")
    a(f"v_mul_u32_u24 v11, 3584, v6")
    a(f"v_lshl_add_u32 v{vW[0]}, v9, 4, v11")
    for i in range(1, 4): a(f"v_add_u32 v{vW[i]}, {i*(8*3584-1024)}, v{vW[0]}")
    kernarg_wait(a)
    a(f"s_cmp_ge_u32 s{sA}, 2")
    a(f"s_cselect_b32 s{sW1}, s{sW3}, s{sW1}")
    a(f"s_cselect_b32 s{sW1+1}, s{sW3+1}, s{sW1+1}")
    ROT = opt("rot", 0)
    SL = 66
    def dmaX(p):
        a(f"s_add_u32 m0, s{sA4K}, {XS(p)}")
        if ROT and p:
            a(f"s_lshl_b32 s58, s{SL+p-1}, 7")
            a(f"s_add_u32 s58, s58, s{sXo}")
        else: a(f"s_add_u32 s58, s{sXo}, {128*p}")
        for i in range(4): a(f"buffer_load_dwordx4 v{vX[i]}, {srd(sQ)}, s58 offen offset:{1024*i}{NT('ntx')} lds")
        vm.add(f'X{p}', 4)
    def dmaW(p, half):
        a(f"s_add_u32 m0, s{sA4K}, {WS_(half, p)}")
        if ROT and p:
            a(f"s_mul_i32 s58, s{SL+p-1}, {64*3584}")
            a(f"s_add_u32 s58, s58, s{sWo}")
            if half: a(f"s_add_u32 s58, s58, 128")
        else: a(f"s_add_u32 s58, s{sWo}, {64*3584*p + 128*half}")
        for i in range(4): a(f"buffer_load_dwordx4 v{vW[i]}, {srd(sW1)}, s58 offen offset:{1024*i}{NT('ntw')} lds")
        vm.add(f"W{'AB'[half]}{p}", 4)
    def slab_setup():
        a(f"s_lshl_b32 s58, s{sLQ}, 1")
        a(f"s_cmp_eq_u32 s{sLQ}, 3")
        a(f"s_cselect_b32 s58, 1, s58")
        a(f"s_add_u32 s58, s58, s{sLR}")
        a(f"s_cmp_ge_u32 s58, 6")
        a(f"s_cselect_b32 s59, 6, 0")
        a(f"s_sub_u32 s58, s58, s59")
        a(f"s_add_u32 s{SL}, s58, 1")
        for p in range(2, 7):
            a(f"s_add_u32 s{SL+p-1}, s{SL+p-2}, 1")
            a(f"s_cmp_eq_u32 s{SL+p-1}, 7")
            a(f"s_cselect_b32 s{SL+p-1}, 1, s{SL+p-1}")
    dmaX(0); dmaW(0, 0); dmaW(0, 1)
    if ROT: slab_setup()
    P = 64
    a(f"v_lshl_add_u32 v{P}, v7, 4, v10")
    a(f"v_add_u32 v{P+1}, {8*896-1024}, v{P}")
    a(f"s_mul_i32 s65, s{sTT}, {64*896}")
    a(f"s_lshl_b32 s75, s{sLR}, 7")
    a(f"s_add_u32 s76, s75, {64*896}")
    a(f"s_add_u32 s65, s65, s75")
    a(f"s_mul_i32 s58, s{sA}, {16*896}")
    a(f"s_add_u32 s65, s65, s58")
    a(f"s_lshl_b32 s{sMw}, s{sA}, 11")
    def dmaKV():
        a(f"s_add_u32 m0, s{sMw}, {KVL}")
        for i in range(2): a(f"buffer_load_dwordx4 v{P+i}, {srd(sK)}, s65 offen offset:{1024*i}{NT('ntkv')} lds")
        a(f"s_add_u32 m0, s{sMw}, {KVL + 8192}")
        for i in range(2): a(f"buffer_load_dwordx4 v{P+i}, {srd(sV)}, s65 offen offset:{1024*i}{NT('ntkv')} lds")
        vm.add('kv', 4)
    dmaKV()
    if opt("pfb", 1):
        a(f"s_lshr_b64 exec, -1, 32")
        a(f"s_cmp_ge_u32 s{sA}, 2")
        a(f"s_cbranch_scc1 L_pfb_w")
        a(f"v_lshlrev_b32 v24, 7, v{vL}")
        a(f"s_mul_i32 s58, s{sX}, 28")
        a(f"s_add_u32 s58, s58, s{sSLOT}")
        a(f"s_sub_u32 s58, s58, 4")
        a(f"s_lshl_b32 s58, s58, 1")
        a(f"s_add_u32 s58, s58, s{sA}")
        a(f"s_lshl_b32 s58, s58, 12")
        a(f"buffer_load_dword v25, v24, {srd(sSK)}, s58 offen{NT('ntsk')}")
        a(f"s_branch L_pfb_d")
        a.label("L_pfb_w")
        a(f"v_mul_u32_u24 v24, 896, v{vL}")
        a(f"s_lshl_b32 s58, s{sTT}, 1")
        a(f"s_add_u32 s58, s58, s{sA}")
        a(f"s_sub_u32 s58, s58, 2")
        a(f"s_mul_i32 s58, s58, {28*896}")
        a(f"s_add_u32 s58, s58, s75")
        a(f"buffer_load_dword v25, v24, {srd(sW2)}, s58 offen")
        a.label("L_pfb_d")
        a(f"s_mov_b64 exec, -1")
        vm.add('pfb')
    else: dmaX(1)
    a(f"s_mul_i32 s58, s{sA}, {16*144}")
    a(f"s_add_u32 s58, s58, {PST}")
    a(f"v_mul_u32_u24 v{P+2}, 144, v6")
    a(f"v_lshl_add_u32 v{P+2}, v7, 4, v{P+2}")
    a(f"v_add_u32 v{P+2}, s58, v{P+2}")
    a(f"v_mul_u32_u24 v{P+4}, {RP}, v6")
    a(f"v_lshl_add_u32 v{P+4}, v7, 4, v{P+4}")
    a(f"s_lshl_b32 s72, s{sLR}, 2")
    a(f"s_add_u32 s72, s72, s{sA}")
    a(f"s_mul_i32 s73, s72, {16*RP}")
    a(f"s_lshl_b32 s74, s{sTT}, 7")
    a(f"s_sub_u32 s73, s73, s74")
    a(f"s_add_u32 s73, s73, {WS_R + 1984*2}")
    a(f"s_add_u32 s74, s73, {8*RP}")
    a(f"s_lshl_b32 s72, s72, 7")
    a(f"s_lshl_b32 s58, s{sTT}, 2")
    a(f"s_add_u32 s72, s72, s58")
    a(f"s_add_u32 s72, s72, {WS_F1}")
    rot_setup(a)
    flag_setup(a)
    epoch_hash(a)
    a(f"v_mov_b32 v{vE}, s{sE}")
    stamp(a, 1)
    a(f"v_mov_b32 v{P+5}, v7")
    w2_setup(a)
    tr_setup(a, 40)
    vm.wait('WB0'); a("s_barrier")
    stamp(a, 2)
    if opt("pfb", 1): dmaX(1)
    dmaW(1, 0); dmaW(1, 1); dmaX(2); dmaW(2, 0)
    vm.wait('WB1'); a("s_barrier")
    dmaW(2, 1); dmaX(3); dmaW(3, 0)
    vm.wait('WB2'); a("s_barrier")
    dmaW(3, 1); dmaX(4); dmaW(4, 0)
    vm.wait('WA3'); a("s_barrier")
    for i in range(2): a(f"ds_read_b128 v[{P+8+4*i}:{P+11+4*i}], v{P+2} offset:{8*144*i}")
    dmaX(5); dmaW(5, 0)
    a("s_waitcnt lgkmcnt(0)")
    for i in range(2): a(f"buffer_store_dwordx4 v[{P+8+4*i}:{P+11+4*i}], v{P+4}, {srd(sWS)}, s{73+i} offen sc1")
    vm.add('R', 2)
    a(f"s_cmp_lg_u32 s{sTT}, 0")
    a("s_cbranch_scc1 L_nopad")
    for i in range(4): a(f"v_mov_b32 v{P+32+i}, 0")
    a(f"v_cmp_eq_u32 vcc, 7, v{P+5}")
    a("s_and_saveexec_b64 s[58:59], vcc")
    a(f"buffer_store_dwordx4 v[{P+32}:{P+35}], v{P+4}, {srd(sWS)}, s73 offen offset:16 sc1")
    a(f"buffer_store_dwordx4 v[{P+32}:{P+35}], v{P+4}, {srd(sWS)}, s74 offen offset:16 sc1")
    a("s_mov_b64 exec, s[58:59]")
    a.label("L_nopad")
    vm.wait('WB3'); a("s_barrier")
    dmaX(6); dmaW(6, 0)
    vm.wait('WA4'); a("s_barrier")
    dmaW(4, 1); dmaW(5, 1)
    vm.wait('R')
    wflag(a, 72, 24, 25); vm.add('f1')
    vm.wait('WA6'); a("s_barrier")
    stamp(a, 3); stamp(a, 1, 2)
    dmaW(6, 1)
    if NSTG: w2_dma(a, vm, 0, 1, 0)
    else: w2_dma(a, vm, 0, 0)
    sCP, sC, sHf, sDch = 74, 65, 66, 67
    a(f"s_mul_i32 s{sCP}, s{sX}, 28")
    a(f"s_add_u32 s{sCP}, s{sCP}, s{sSLOT}")
    a(f"s_sub_u32 s{sCP}, s{sCP}, 4")
    a(f"s_and_b32 s{sC}, s{sA}, 1")
    a(f"s_lshr_b32 s{sHf}, s{sA}, 1")
    a(f"s_lshl_b32 s{sDch}, s{sCP}, 1")
    a(f"s_add_u32 s{sDch}, s{sDch}, s{sC}")
    a(f"v_mov_b32 v24, 0")
    a(f"s_lshl_b32 s58, s{sDch}, 1")
    a(f"buffer_load_ushort v25, v24, {srd(sD)}, s58 offen")
    a(f"s_lshl_b32 s58, s{sDch}, 12")
    a(f"buffer_load_dword v26, v24, {srd(sSK)}, s58 offen")
    vm.add('dh', 2)
    def stage_next(b):
        if b >= NSTG: return
        stage_read(a, vm, b, 0, 40)
        if b + 1 < NSTG: w2_dma(a, vm, b + 1, 1, 0)
        else: w2_dma(a, vm, 0, 0)
    a(f"s_lshr_b32 s68, s{sCP}, 3")
    a(f"s_lshl_b32 s68, s68, 7")
    a(f"s_add_u32 s68, s68, {WS_F1}")
    a(f"v_and_b32 v33, 31, v{vL}")
    a(f"v_lshlrev_b32 v33, 2, v33")
    a(f"s_lshl_b32 s69, s{sDch}, 12")
    a(f"s_lshl_b32 s58, s{sHf}, 2")
    a(f"s_add_u32 s69, s69, s58")
    a(f"s_mul_i32 s70, s{sDch}, {RP}")
    a(f"s_add_u32 s70, s70, {WS_R + 2}")
    a(f"s_lshl_b32 s58, s{sHf}, 1")
    a(f"s_sub_u32 s70, s70, s58")
    a(f"s_mul_i32 s71, s{sC}, {CB}")
    a(f"s_add_u32 s71, s71, {CVL}")
    a(f"s_mul_i32 s72, s{sHf}, {HB - HA}")
    a(f"s_add_u32 s72, s72, s71")
    a(f"s_add_u32 s72, s72, {HA}")
    a(f"s_mul_i32 s73, s{sHf}, {U1 - U0}")
    a(f"s_add_u32 s73, s73, s71")
    a(f"s_add_u32 s73, s73, {U0}")
    for i in range(4): a(f"v_mov_b32 v{28+i}, 0")
    a(f"s_sub_u32 s58, s72, 256")
    a(f"v_add_u32 v27, s58, v{vH}")
    a(f"s_add_u32 s58, s73, {4096 - 256}")
    a(f"v_add_u32 v32, s58, v{vH}")
    a(f"v_cmp_gt_u32 vcc, 16, v{vL}")
    a(f"v_cndmask_b32 v27, v32, v27, vcc")
    vm.wait('WB6'); sig(a, 'WB56')
    stamp(a, 2, 2)
    poll_issue(a, 33, 35, 68); vm.add('p1')
    stage_next(0)
    vm.wait('p1')
    poll_check(a, 33, 35, 68)
    stamp(a, 3, 2)
    lwait(a, 'A6', 34)
    stamp(a, 4, 2)
    a(f"s_mov_b32 m0, s72")
    for n in range(4): a(f"buffer_load_dwordx4 v{vH}, {srd(sSK)}, s69 offen offset:{1024*n}{NT('ntsk')} lds")
    a(f"s_mov_b32 m0, s73")
    for n in range(4): a(f"buffer_load_dwordx4 v{vH}, {srd(sWS)}, s70 offen offset:{1024*n} sc1 lds")
    vm.add('cvu', 8)
    a(f"v_cmp_gt_u32 vcc, 44, v{vL}")
    a(f"s_and_saveexec_b64 s[58:59], vcc")
    a(f"ds_write_b128 v27, v[28:31]")
    a(f"s_mov_b64 exec, s[58:59]")
    a(f"s_lshl_b32 s58, s{sHf}, 2")
    a(f"s_sub_u32 s58, s72, s58")
    a(f"s_sub_u32 s58, s58, 192")
    a(f"v_mov_b32 v27, s58")
    a(f"ds_write_b32 v27, v25")
    a(f"s_cmp_eq_u32 s{sHf}, 0")
    a(f"s_cbranch_scc1 L_cv_nofix")
    a(f"ds_write_b32 v27, v26 offset:192")
    a.label("L_cv_nofix")
    stage_next(1)
    stamp(a, 4); stamp(a, 5, 2)
    lwait(a, 'B4', 34); stamp(a, 6, 2)
    w2_dma(a, vm, 1, 0); w2_dma(a, vm, 2, 0)
    stage_next(2)
    assert NSTG <= 3
    vA, vB, vDl = 8, 9, 11
    a(f"v_and_b32 v12, 15, v{vL}")
    a(f"v_lshrrev_b32 v13, 4, v{vL}")
    a(f"v_and_b32 v14, 1, v12")
    a(f"v_mov_b32 v17, {HB - 4 - 60 - 192}")
    a(f"v_mov_b32 v16, {HA - 60 - 192}")
    a(f"v_cmp_eq_u32 vcc, 1, v14")
    a(f"v_cndmask_b32 v17, v17, v16, vcc")
    a(f"v_lshl_add_u32 v17, v12, 2, v17")
    a(f"v_lshl_add_u32 v17, v13, 4, v17")
    a(f"v_add_u32 v17, s71, v17")
    a(f"s_lshl_b32 s72, s{sHf}, 8")
    a(f"v_add_u32 v{vA}, s72, v17")
    a(f"s_add_u32 s58, s71, {U0 + 4096}")
    a(f"v_mov_b32 v16, s58")
    a(f"s_cmp_eq_u32 s{sHf}, 0")
    a(f"s_cselect_b64 vcc, -1, 0")
    a(f"v_cndmask_b32 v{vDl}, v16, v17, vcc")
    a(f"v_mov_b32 v17, {U0 + 448}")
    a(f"v_mov_b32 v16, {U1 + 448}")
    a(f"v_cmp_eq_u32 vcc, 1, v14")
    a(f"v_cndmask_b32 v17, v17, v16, vcc")
    a(f"v_lshrrev_b32 v16, 1, v12")
    a(f"v_lshlrev_b32 v16, 6, v16")
    a(f"v_sub_u32 v17, v17, v16")
    a(f"v_lshl_add_u32 v17, v13, 4, v17")
    a(f"s_add_u32 s72, s72, s71")
    a(f"v_add_u32 v{vB}, s72, v17")
    stamp(a, 7, 2)
    vm.wait('cvu'); sig(a, 'CV0')
    lwait(a, 'CV0', 34)
    stamp(a, 5); stamp(a, 8, 2)
    ACC = 16; HI = 48; LOW = [80, 112]; DL = 252
    def Areg(p, it): return (LOW[it % 2] + 4*p) if p < 4 else (HI + 4*(p-4))
    def Breg(q, it): return (LOW[it % 2] + 16 + 4*q) if q < 4 else (HI + 16 + 4*(q-4))
    def rdA(p, it):
        rg = Areg(p, it); o = 192 + 512*p + 64*it
        return [f"ds_read_b64 v[{rg}:{rg+1}], v{vA} offset:{o}", f"ds_read_b64 v[{rg+2}:{rg+3}], v{vA} offset:{o+8}"]
    def rdB(q, it):
        rg = Breg(q, it); o = 3584 - 512*q + 64*it
        return [f"ds_read_b128 v[{rg}:{rg+3}], v{vB} offset:{o}"]
    def cmf(T, A, B, first=False):
        c = "0" if first else f"v[{ACC+4*T}:{ACC+4*T+3}]"
        return f"v_mfma_f32_16x16x32_bf16 v[{ACC+4*T}:{ACC+4*T+3}], v[{A}:{A+3}], v[{B}:{B+3}], {c}"
    a(f"ds_read_b64 v[{DL}:{DL+1}], v{vDl}")
    a(f"ds_read_b64 v[{DL+2}:{DL+3}], v{vDl} offset:8")
    for p in range(4):
        for rr in rdA(p, 0) + rdB(p, 0): a(rr)
    for it in range(4):
        a("s_waitcnt lgkmcnt(0)")
        if it == opt("i6", 1):
            lwait(a, 'B6', 10)
            w2_dma(a, vm, 5, 0); w2_dma(a, vm, 6, 0)
        if it == opt("i6", 1) + 1:
            vm.drain(); sig(a, 'W2A')
        rd = []
        for p in range(4, 8): rd += rdA(p, it) + rdB(p, it)
        ms = []
        if it == 0: ms += [cmf(T, DL, Breg(T, 0), True) for T in range(4)]
        seen = set(range(4)) if it == 0 else set(range(8))
        for p in range(4):
            for q in range(4):
                T = p + q
                ms.append(cmf(T, Areg(p, it), Breg(q, it), T not in seen)); seen.add(T)
        for k, m in enumerate(ms):
            a(m)
            if k < len(rd): a(rd[k])
        a("s_waitcnt lgkmcnt(0)")
        if it == 0:
            lwait(a, 'B5', 10)
            w2_dma(a, vm, 3, 0); w2_dma(a, vm, 4, 0)
        if it == 3: sig(a, 'CV1')
        rd = []
        if it < 3:
            for p in range(4): rd += rdA(p, it+1) + rdB(p, it+1)
        ms = []
        for hp in range(4, 8):
            for l in range(0, 8 - hp):
                T = hp + l
                ms.append(cmf(T, Areg(hp, it), Breg(l, it), T not in seen)); seen.add(T)
                ms.append(cmf(T, Areg(l, it), Breg(hp, it)))
        if it == 0: ms += [cmf(T, DL, Breg(T, 0)) for T in range(4, 8)]
        if it == 3:
            r = Rec()
            r(f"s_lshl_b32 s73, s{sA}, 13")
            r(f"s_add_u32 s73, s73, {CVL}")
            r(f"v_add_u32 v8, s73, v{vH}")
            r(f"s_lshl_b32 s73, s{sA}, 11")
            r(f"s_add_u32 s73, s73, {CVL}")
            r(f"v_add_u32 v5, s73, v{vH}")
            r(f"v_lshrrev_b32 v9, 1, v12")
            r(f"v_lshlrev_b32 v9, 7, v9")
            r(f"v_lshl_add_u32 v9, v13, 5, v9")
            r(f"v_lshl_add_u32 v9, v14, 4, v9")
            r(f"s_lshl_b32 s73, s{sCP}, 13")
            r(f"s_lshl_b32 s58, s{sA}, 11")
            r(f"s_add_u32 s73, s73, s58")
            r(f"s_add_u32 s73, s73, {WS_Y}")
            r(f"ds_read_b32 v10, v{vCa} offset:{EV['CV1']}")
            rd = r.l
        for k, m in enumerate(ms):
            a(m)
            if k < len(rd): a(rd[k])
    stamp(a, 6)
    vm.q = []
    a("s_waitcnt lgkmcnt(0)")
    a("s_nop 3")
    lwait(a, 'CV1', 10, pre=True)
    for T in range(8): a(f"ds_write_b128 v8, v[{ACC+4*T}:{ACC+4*T+3}] offset:{1024*T}")
    sig(a, 'CV2')
    g2_setup(a, 1)
    a(f"s_lshr_b32 s65, s{sCP}, 5")
    a(f"s_lshl_b32 s65, s65, 9")
    a(f"s_lshl_b32 s58, s{sA}, 7")
    a(f"s_add_u32 s65, s65, s58")
    a(f"s_and_b32 s58, s{sCP}, 31")
    a(f"s_lshl_b32 s58, s58, 2")
    a(f"s_add_u32 s65, s65, s58")
    a(f"s_add_u32 s65, s65, {WS_F4}")
    lwait(a, 'CV2', 10)
    for t2 in range(2):
        for w in range(4): a(f"ds_read_b128 v[{80+16*t2+4*w}:{83+16*t2+4*w}], v5 offset:{8192*w + 1024*t2}")
    sig(a, 'CV3')
    a(f"s_waitcnt lgkmcnt(0)")
    for t2 in range(2):
        b = 80 + 16*t2
        for rr in range(4):
            a(f"v_add_f32 v{b+rr}, v{b+rr}, v{b+8+rr}")
            a(f"v_add_f32 v{b+4+rr}, v{b+4+rr}, v{b+12+rr}")
        for rr in range(4): a(f"v_cvt_pk_bf16_f32 v{b+8+rr}, v{b+rr}, v{b+4+rr}")
        a(f"buffer_store_dwordx4 v[{b+8}:{b+11}], v9, {srd(sWS)}, s73 offen offset:{1024*t2} sc1")
    vm.add('y', 2)
    spoll(a, 64, 7)
    stamp(a, 7)
    for j in range(HRN): hload(a, vm, j)
    tr_setup(a, 4)
    vm.wait('y')
    wflag(a, 65, 8, 9); vm.add('f4')
    lwait(a, 'W2B', 10, own=True)
    for b in range(NSTG, 7): pair_reads(a, b, W2BLK[b], 4)
    sig(a, 'PRE')
    lread(a, 'CV3', 11)
    a("s_waitcnt lgkmcnt(0)")
    g2_loop(a, vm, 1)
    stamp(a, 8)
    a("s_nop 7")
    lwait(a, 'CV3', 11, pre=True)
    g2_partials(a, 1)
    sig(a, 'XP')
    stamp(a, 9)
    a("s_branch L_fin")

def cost(s):
    m = s.split()[0]
    return 8 if m in TRANS else 4
def mwave(a):
    vm = VM(a)
    sTH, sCH = 60, 61
    a(f"s_setprio {opt('prio', 2)}")
    a(f"s_and_b32 s{sTH}, s{sA}, 1")
    a(f"s_lshr_b32 s{sCH}, s{sA}, 1")
    vXa = [4, 5, 6, 7]; vWa = [8, 9]
    a(f"v_and_b32 v10, 31, v{vL}")
    a(f"v_lshrrev_b32 v11, 5, v{vL}")
    P = 16
    KR, VR, SHR, HLO = P+4, P+16, P+24, P+1
    a(f"s_lshl_b32 s74, s{sLR}, 9")
    a(f"v_lshlrev_b32 v13, 4, v10")
    a(f"s_mul_i32 s73, s{sTT}, {64*896}")
    a(f"s_lshl_b32 s58, s{sLR}, 7")
    a(f"s_add_u32 s73, s73, s58")
    a(f"s_sub_u32 s73, s73, 2688")
    a(f"s_cmp_eq_u32 s{sTT}, 0")
    a(f"s_cselect_b32 s73, 0x40000000, s73")
    a(f"v_lshlrev_b32 v12, 2, v10")
    kernarg_wait(a)
    a(f"buffer_load_dwordx4 v[{SHR}:{SHR+3}], v13, {srd(sSH)}, s74 offen")
    a(f"s_cmp_lg_u32 s{sA}, 0")
    a(f"s_cbranch_scc1 L_nohalo")
    for j in range(3): a(f"buffer_load_dword v{HLO+j}, v12, {srd(sK)}, s73 offen offset:{896*j}")
    a.label("L_nohalo")
    if opt("tlb", 1):
        a(f"s_cmp_lg_u32 s{sA}, 1")
        a(f"s_cbranch_scc1 L_notouch")
        a(f"v_mov_b32 v48, 0")
        a(f"s_mov_b64 exec, 1")
        for r_ in (sSK, sD, sW2, sO, sWS):
            a(f"buffer_load_dword v49, v48, {srd(r_)}, 0 offen offset:{512 if r_ == sWS else 0}")
        a(f"s_mov_b64 exec, -1")
        a.label("L_notouch")
    a(f"v_bfe_u32 v14, v10, 1, 3")
    a(f"v_xor_b32 v14, v14, v11")
    a(f"s_lshl_b32 s58, s{sTH}, 13")
    a(f"v_lshlrev_b32 v48, 7, v10")
    a(f"v_add_u32 v48, s58, v48")
    for ks in range(4):
        a(f"v_xor_b32 v49, {2*ks}, v14")
        a(f"v_lshl_add_u32 v{vXa[ks]}, v49, 4, v48")
    a(f"v_bfe_u32 v14, v{vL}, 2, 2")
    a(f"v_lshl_add_u32 v48, v11, 3, v14")
    a(f"v_lshlrev_b32 v48, 7, v48")
    a(f"v_lshrrev_b32 v14, 1, v14")
    a(f"v_xor_b32 v14, s{sCH}, v14")
    a(f"v_lshl_add_u32 v48, v14, 6, v48")
    a(f"v_bfe_u32 v14, v{vL}, 4, 1")
    a(f"v_lshl_add_u32 v48, v14, 5, v48")
    a(f"v_and_b32 v14, 3, v{vL}")
    a(f"v_lshl_add_u32 v48, v14, 3, v48")
    a(f"v_add_u32 v{vWa[0]}, {WA0}, v48")
    a(f"v_add_u32 v{vWa[1]}, {WB0}, v48")
    flag_setup(a)
    rot_setup(a)
    a(f"s_lshl_b32 s67, s{sI}, 1")
    a(f"s_add_u32 s67, s67, s{sTH}")
    a(f"s_lshl_b32 s62, s67, 10")
    a(f"s_add_u32 s62, s62, {WS_STATS}")
    a(f"s_lshl_b32 s63, s{sJ}, 11")
    a(f"s_lshl_b32 s58, s{sCH}, 9")
    a(f"s_add_u32 s63, s63, s58")
    a(f"s_add_u32 s63, s63, {WS_CS}")
    a(f"s_add_u32 s64, s63, {F*16}")
    a(f"s_lshl_b32 s66, s{sJ}, 1")
    a(f"s_add_u32 s66, s66, s{sCH}")
    a(f"s_mul_i32 s68, s67, 56")
    a(f"s_add_u32 s68, s68, s66")
    a(f"s_lshl_b32 s68, s68, 11")
    a(f"s_add_u32 s68, s68, {WS_H}")
    a(f"s_add_u32 s69, s68, {56*1024}")
    a(f"s_add_u32 s70, s68, {HTYPE}")
    a(f"s_add_u32 s71, s69, {HTYPE}")
    a(f"s_mul_i32 s58, s66, 37")
    a(f"s_lshr_b32 s58, s58, 8")
    a(f"s_add_u32 s66, s66, s58")
    a(f"s_lshl_b32 s72, s67, 7")
    a(f"s_lshl_b32 s66, s66, 2")
    a(f"s_add_u32 s72, s72, s66")
    a(f"s_add_u32 s72, s72, {WS_F3}")
    a(f"s_add_u32 s65, s72, 4096")
    a(f"s_lshl_b32 s58, s{sA}, 11")
    a(f"s_add_u32 s58, s58, {KVL - 384}")
    a(f"v_lshl_add_u32 v14, v11, 10, v12")
    a(f"v_add_u32 v14, s58, v14")
    a(f"v_mul_u32_u24 v{P}, 288, v10")
    a(f"v_lshlrev_b32 v48, 4, v11")
    a(f"v_sub_u32 v{P}, v{P}, v48")
    a(f"s_lshl_b32 s58, s{sA}, 5")
    a(f"s_sub_u32 s58, {PST + 112}, s58")
    a(f"v_add_u32 v{P}, s58, v{P}")
    a(f"s_cmp_eq_u32 s{sA}, 0")
    a(f"s_cselect_b32 s74, -1, 0")
    a(f"s_mov_b32 s75, 0")
    r = Rec()
    for j in range(11): r(f"ds_read_b32 v{KR+j}, v14 offset:{128*j}")
    for j in range(8): r(f"ds_read_b32 v{VR+j}, v14 offset:{8192 + 384 + 128*j}")
    r(";GAP"); r(";GAP"); r(";GAP")
    r("s_waitcnt vmcnt(0) lgkmcnt(0)")
    for j in range(3): r(f"v_cndmask_b32 v{KR+j}, v{KR+j}, v{HLO+j}, s[74:75]")
    for h in range(2):
        un = lo if h == 0 else hi
        T = P + 28; O = T + 16; R_ = O + 8
        for j in range(11): un(r, T+j, KR+j)
        lo(r, T+11, SHR+2*h); hi(r, T+12, SHR+2*h); lo(r, T+13, SHR+1+2*h); hi(r, T+14, SHR+1+2*h)
        for t in range(8): r(f"v_mul_f32 v{O+t}, v{T+14}, v{T+t}")
        for t in range(8): r(f"v_fmac_f32 v{O+t}, v{T+13}, v{T+1+t}")
        for t in range(8): r(f"v_fmac_f32 v{O+t}, v{T+12}, v{T+2+t}")
        for t in range(8): r(f"v_fmac_f32 v{O+t}, v{T+11}, v{T+3+t}")
        for j in range(8): un(r, T+j, VR+j)
        for t in range(8): r(f"v_mul_f32 v{O+t}, v{O+t}, v{T+t}")
        for p in range(4): r(f"v_cvt_pk_bf16_f32 v{R_+4*h+p}, v{O+7-2*p}, v{O+6-2*p}")
    r(";AFTER2")
    for h in range(2): r(f"ds_write_b128 v{P}, v[{R_+4*h}:{R_+4*h+3}] offset:{144*h}")
    prep_side = r.l
    epoch_hash(a)
    a(f"v_mov_b32 v{vE}, s{sE}")
    stamp(a, 1)
    ACCB = {(0,0): 128, (0,1): 160, (1,0): 192, (1,1): 224}
    CSF = {(0,0): 48, (0,1): 52, (1,0): 56, (1,1): 60}
    MF = [64, 68]
    ST = [72, 76]
    def epilogue(r, half):
        for tt in range(2):
            nrs = ST[tt] + 1
            G = ACCB[(half, 0)] + 16*tt; U = ACCB[(half, 1)] + 16*tt
            for kp in range(2):
                T = 20 + 8*((2*tt + kp) % 2)
                g = lambda e8: G + 8*kp + e8
                u = lambda e8: U + 8*kp + e8
                for e8 in range(10):
                    if e8 < 8: r(f"v_mul_f32 v{T+e8}, v{nrs}, v{g(e8)}")
                    if 1 <= e8 < 9:
                        r(f"v_exp_f32 v{T+e8-1}, v{T+e8-1}")
                        r(f"v_mul_f32 v{g(e8-1)}, v{g(e8-1)}, v{u(e8-1)}")
                    if 2 <= e8:
                        r(f"v_add_f32 v{T+e8-2}, 1.0, v{T+e8-2}")
                for e8 in range(9):
                    if e8 < 8: r(f"v_rcp_f32 v{T+e8}, v{T+e8}")
                    if e8 >= 1:
                        r(f"v_mul_f32 v{g(e8-1)}, v{g(e8-1)}, v{T+e8-1}")
                        if e8 % 2 == 0: r(f"v_cvt_pk_bf16_f32 v{U+8*kp+(e8-2)//2}, v{g(e8-2)}, v{g(e8-1)}")
                r(f";Q{half}{tt}{kp}")
        for tt in range(2):
            U = ACCB[(half, 1)] + 16*tt
            for kp in range(2):
                r(f"buffer_store_dwordx4 v[{U+8*kp}:{U+8*kp+3}], v{vH}, {srd(sWS)}, s{68 + 2*half + tt} offen offset:{1024*kp} sc1")
                r(f";ST{half}{tt}{kp}")
    def opnd_loads():
        for tt in range(2): a(f"buffer_load_dwordx4 v[{ST[tt]}:{ST[tt]+3}], v13, {srd(sWS)}, s62 offen offset:{512*tt} sc1")
        for h in range(2):
            for m in range(2):
                a(f"buffer_load_dwordx4 v[{CSF[(h,m)]}:{CSF[(h,m)]+3}], v13, {srd(sWS)}, s{63+m} offen offset:{1024*h} sc1")
    def fold(half):
        for m in range(2):
            for tt in range(2):
                acc = ACCB[(half, m)] + 16*tt; f = CSF[(half, m)]
                a(f"v_mfma_f32_32x32x16_bf16 v[{acc}:{acc+15}], v[{f}:{f+3}], v[{MF[tt]}:{MF[tt]+3}], v[{acc}:{acc+15}]")
    units = [('F',0),('F',1),('F',2),('A',3),('B',3),('A',4),('A',5),('A',6),('B',4),('B',5),('B',6)]
    FL = {8: 'WB56'}
    NBAR = 7
    mf = []; frags = {}; order = []; started = set()
    for ui, (ty, p) in enumerate(units):
        halves = (0, 1) if ty == 'F' else (0,) if ty == 'A' else (1,)
        for ks in range(4):
            def fx(tt):
                n = ('X', ui, ks, tt)
                if n not in frags:
                    frags[n] = (ui, [f"ds_read_b128 v[{{r0}}:{{r3}}], v{vXa[ks]} offset:{XS(p) + tt*4096}"]); order.append(n)
                return n
            def fw(h, m):
                n = ('W', ui, ks, h, m)
                if n not in frags:
                    o = WOFF(h, p) + m*8192 + ks*2048
                    frags[n] = (ui, [f"ds_read_b64_tr_b16 v[{{r0}}:{{r1}}], v{vWa[h]} offset:{o}",
                                     f"ds_read_b64_tr_b16 v[{{r2}}:{{r3}}], v{vWa[h]} offset:{o + 512}"]); order.append(n)
                return n
            for h in halves:
                for m in range(2):
                    for tt in range(2):
                        w = fw(h, m); x = fx(tt)
                        mf.append((ui, ACCB[(h, m)] + 16*tt, w, x))
    last_use = {}
    for i, (_, _, w, x) in enumerate(mf): last_use[w] = i; last_use[x] = i
    free = [80 + 4*i for i in range(12)]
    reg = {}; read_end = {}
    st = dict(lds=0, done=0, qi=0, unit=-1, since=99, i=-1, gap=0, flagread=None)
    rtime = []; side = []
    def lds_op(text, late=False):
        a(text); st['lds'] += 1; rtime.append(st['i'] + (100 if late else 0)); st['gap'] += 4
    def issue_reads(maxn):
        n = 0
        while st['qi'] < len(order) and n < maxn and free:
            nme = order[st['qi']]; ui, tmpl = frags[nme]
            if ui > st['unit']:
                if ui == 3 and side: return
                if ui in FL and st['flagread'] != ui:
                    lds_op(f"ds_read_b32 v14, v{vCa} offset:{EV[FL[ui]]}")
                    st['flagread'] = ui; st['since'] = 0
                if ui < NBAR or ui in FL:
                    if st['since'] < 3: return
                    a("s_waitcnt lgkmcnt(0)"); st['done'] = st['lds']
                if ui < NBAR: a("s_barrier")
                if ui >= 8: lds_op(f"ds_write_b32 v{vCo}, v{vE} offset:{EV[['A6','B4','B5'][ui-8]]}", True)
                if ui in FL: lwait(a, FL[ui], 14, pre=True)
                st['unit'] = ui
                stamp(a, min(ui + 1, 9), 1) if ui != 4 else None
                on_unit(ui)
            r0 = free.pop(0); reg[nme] = r0
            for t in tmpl:
                lds_op(t.format(r0=r0, r1=r0+1, r2=r0+2, r3=r0+3)); n += 1
            read_end[nme] = st['lds']; st['qi'] += 1; st['since'] = 0
            if st['qi'] == len(order): lds_op(f"ds_write_b32 v{vCo}, v{vE} offset:{EV['B6']}", True)
    def on_unit(ui):
        if ui == 0: stamp(a, 2)
        if ui == 1: side.extend(prep_side)
        if ui == 4: side.extend(f"v_mov_b32 v{r_}, 0" for r_ in (66, 67, 70, 71))
        if ui == opt("opu", 6): opnd_loads()
    issue_reads(12)
    firstB4 = next(i for i, m in enumerate(mf) if m[0] == 8)
    BUD = opt("bud", 24)
    def run_side(budget):
        while side:
            s_ = side[0]
            if s_.startswith(";ST"):
                side.pop(0); vm.add('hA'); continue
            if s_.startswith(";Q"): side.pop(0); continue
            if s_.startswith("buffer_store"): side.pop(0); a(s_); continue
            if s_ == ";GAP": side.pop(0); return
            if s_ == ";AFTER2":
                if st['unit'] < 2: return
                side.pop(0); continue
            c = cost(s_)
            if st['gap'] + c > budget and st['gap'] > 0: return
            side.pop(0)
            if s_.startswith("ds_"): lds_op(s_, True)
            else:
                a(s_); st['gap'] += c
                if "lgkmcnt(0)" in s_: st['done'] = st['lds']
    for i, (ui, acc, w, x) in enumerate(mf):
        while w not in reg or x not in reg:
            st['since'] = 99; st['gap'] = 0; run_side(1000 if ui == 3 else 0); issue_reads(2)
        need = max(read_end[w], read_end[x])
        if need > st['done']:
            old = [k+1 for k, t in enumerate(rtime) if t <= i - 4]
            need = max([need] + old)
            n = st['lds'] - need
            a(f"s_waitcnt lgkmcnt({min(n, 14)})"); st['done'] = st['lds'] - min(n, 14)
        st['i'] = i; st['gap'] = 0
        c = f"v[{acc}:{acc+15}]" if acc in started else "0"; started.add(acc)
        a(f"v_mfma_f32_32x32x16_bf16 v[{acc}:{acc+15}], v[{reg[w]}:{reg[w]+3}], v[{reg[x]}:{reg[x]+3}], {c}")
        st['since'] += 1
        for f in (w, x):
            if last_use[f] == i: free.append(reg[f])
        issue_reads(2)
        if i == firstB4 - 1:
            assert not side
            a("s_mov_b32 s59, 0")
            a.label("L_opnd")
            a("s_waitcnt vmcnt(0)")
            a(f"v_cmp_ne_u32 vcc, s{sE}, v{ST[0]+2}")
            for rg in (ST[1], 48, 52, 56, 60):
                a(f"v_cmp_ne_u32 s[74:75], s{sE}, v{rg+2}")
                a(f"s_or_b64 vcc, vcc, s[74:75]")
            a("s_cbranch_vccz L_opnd_ok")
            a("s_add_u32 s59, s59, 1")
            a("s_cmp_lt_u32 s59, 0x40000")
            a("s_cbranch_scc0 L_opnd_ok")
            a("s_sleep 4")
            opnd_loads()
            a("s_branch L_opnd")
            a.label("L_opnd_ok")
            a(f"v_cmp_gt_u32 vcc, 32, v{vL}")
            for tt in range(2):
                a(f"v_xor_b32 v{ST[tt]}, 0x80000000, v{ST[tt]}")
                a(f"v_cndmask_b32 v{ST[tt]}, 0, v{ST[tt]}, vcc")
                a(f"v_lshrrev_b32 v{MF[tt]+1}, 16, v{ST[tt]}")
                a(f"v_or_b32 v{MF[tt]}, v{MF[tt]+1}, v{ST[tt]}")
                a(f"v_mul_f32 v{ST[tt]+1}, {fh(-1.4426950408889634)}, v{ST[tt]+1}")
            fold(0); fold(1)
            stamp(a, 3)
            r = Rec(); epilogue(r, 0); side.extend(r.l)
        run_side(BUD)
    st['gap'] = 0; run_side(100000)
    stamp(a, 4)
    r = Rec(); epilogue(r, 1)
    for s_ in r.l:
        if s_.startswith(";ST"):
            vm.add('hB'); continue
        if s_.startswith(";Q"):
            if s_ == ";Q1" + ("00", "01", "10", "11")[opt("fa", 3)]:
                vm.wait('hA'); wflag(a, 72, 44, 45); vm.add('fA')
            continue
        a(s_)
    stamp(a, 5)
    a(f"s_setprio {opt('prio2', 0)}")
    g2_setup(a, 0)
    tr_setup(a, 11)
    w2_setup(a)
    a(f"s_lshl_b32 s75, s{sLR}, 7")
    a(f"s_add_u32 s76, s75, {64*896}")
    lwait(a, 'W2A', 8, own=True)
    for b in range(7): pair_reads(a, b, W2BLK[b], 11)
    a("s_waitcnt lgkmcnt(0)")
    stamp(a, 6)
    NB1 = opt("nb1", 2)
    for b in range(NSTG, NSTG + NB1): w2_dma(a, vm, b, 1)
    vm.wait('hB')
    wflag(a, 65, 8, 9); vm.add('fB')
    spoll(a, 64, 7)
    for j in range(HRN): hload(a, vm, j)
    for b in range(NSTG + NB1, 7): w2_dma(a, vm, b, 1)
    stamp(a, 7)
    E0 = 144
    def hook(j):
        if j == HRN: sig(a, 'W2B')
        if j == 15:
            a(f"v_and_b32 v6, 31, v{vL}")
            a(f"v_lshrrev_b32 v7, 5, v{vL}")
            a(f"s_lshl_b32 s68, s{sTT}, 6")
            a(f"v_add_u32 v6, s68, v6")
            a(f"v_lshlrev_b32 v4, 4, v6")
            a(f"s_mov_b32 s71, {WS_STATS}")
            for th in range(2): a(f"buffer_load_dwordx2 v[{E0+2*th}:{E0+1+2*th}], v4, {srd(sWS)}, s71 offen offset:{512*th} sc1")
            a(f"v_mul_u32_u24 v4, 896, v6")
            a(f"v_lshl_add_u32 v4, v7, 4, v4")
            a(f"s_lshl_b32 s71, s{sLR}, 7")
            a(f"s_lshl_b32 s73, s{sA}, 5")
            a(f"s_add_u32 s71, s71, s73")
            a(f"s_add_u32 s72, s71, {32*896}")
            for th in range(2): a(f"buffer_load_dwordx4 v[{E0+4+4*th}:{E0+7+4*th}], v4, {srd(sQ)}, s{71+th} offen")
            vm.add('e', 4)
            a(f"v_and_b32 v5, 0x7f8, v6")
            a(f"v_and_b32 v9, 1, v6")
            a(f"v_lshl_add_u32 v5, v9, 2, v5")
            a(f"v_bfe_u32 v9, v6, 1, 2")
            a(f"v_add_u32 v5, v5, v9")
            a(f"v_lshlrev_b32 v5, 2, v5")
            a(f"v_lshl_add_u32 v5, v7, 15, v5")
            a(f"s_lshl_b32 s73, s{sLR}, 5")
            a(f"s_lshl_b32 s75, s{sA}, 3")
            a(f"s_add_u32 s73, s73, s75")
            a(f"s_lshl_b32 s73, s73, 13")
            a(f"s_add_u32 s73, s73, {WS_Y}")
            a(f"s_lshl_b32 s75, s{sLR}, 9")
            a(f"s_lshr_b32 s76, s{sTT}, 3")
            a(f"s_lshl_b32 s76, s76, 7")
            a(f"s_add_u32 s75, s75, s76")
            a(f"s_lshl_b32 s76, s{sA}, 5")
            a(f"s_add_u32 s75, s75, s76")
            a(f"s_add_u32 s75, s75, {WS_F4}")
    g2_loop(a, vm, 0, hook)
    stamp(a, 8)
    a("s_nop 7")
    lwait(a, 'PRE', 8, own=True)
    g2_partials(a, 0)
    sig(a, 'MP')
    spoll(a, 75, 8)
    Y0 = E0 + 12
    for p in range(4):
        for th in range(2): a(f"buffer_load_dword v{Y0+4*th+p}, v5, {srd(sWS)}, s73 offen offset:{128*th} sc1")
        a(f"s_add_u32 s73, s73, 8192")
    a(f"s_lshl_b32 s76, s{sA}, 14")
    a(f"v_add_u32 v9, s76, v{vH}")
    a(f"v_add_u32 v10, 0x10000, v9")
    lwait(a, 'MP', 8)
    def rd_part(vb, dst):
        for th in range(2):
            for src in range(4):
                r0 = dst + 32*th + 8*src
                a(f"ds_read_b128 v[{r0}:{r0+3}], v{vb} offset:{4096*src + 2048*th}")
                a(f"ds_read_b128 v[{r0+4}:{r0+7}], v{vb} offset:{4096*src + 2048*th + 1024}")
    rd_part(9, 16)
    XB, XN = 176, 192
    a("s_waitcnt vmcnt(8)")
    for th in range(2):
        for p in range(4):
            lo(a, XB+8*th+2*p, E0+4+4*th+p); hi(a, XB+1+8*th+2*p, E0+4+4*th+p)
        for e in range(8):
            a(f"v_sub_f32 v{XN+8*th+e}, v{XB+8*th+e}, v{E0+2*th}")
            a(f"v_mul_f32 v{XN+8*th+e}, v{XN+8*th+e}, v{E0+1+2*th}")
        a(f"v_mul_f32 v{E0+1+2*th}, v{E0+1+2*th}, v{E0+1+2*th}")
    a("s_waitcnt lgkmcnt(0)")
    SM = 208
    for th in range(2):
        b = 16 + 32*th
        for e in range(8):
            a(f"v_add_f32 v{b+e}, v{b+e}, v{b+8+e}")
            a(f"v_add_f32 v{b+16+e}, v{b+16+e}, v{b+24+e}")
        for e in range(8): a(f"v_add_f32 v{SM+8*th+e}, v{b+e}, v{b+16+e}")
    a("s_waitcnt vmcnt(0)")
    for th in range(2):
        for p in range(4):
            lo(a, 224+2*p, Y0+4*th+p); hi(a, 225+2*p, Y0+4*th+p)
        for e in range(8): a(f"v_fmac_f32 v{XB+8*th+e}, v{XN+8*th+e}, v{224+e}")
    stamp(a, 9)
    lwait(a, 'XP', 8)
    rd_part(10, 16)
    for th in range(2):
        b = 16 + 32*th
        a(f"s_waitcnt lgkmcnt({8*(1-th)})")
        for e in range(8):
            a(f"v_add_f32 v{b+e}, v{b+e}, v{b+8+e}")
            a(f"v_add_f32 v{b+16+e}, v{b+16+e}, v{b+24+e}")
        for e in range(8): a(f"v_add_f32 v{b+e}, v{b+e}, v{SM+8*th+e}")
        for e in range(8): a(f"v_add_f32 v{b+e}, v{b+e}, v{b+16+e}")
        for rr in range(4): a(f"v_permlane32_swap_b32 v{b+rr}, v{b+4+rr}")
        for e in range(8): a(f"v_fmac_f32 v{XB+8*th+e}, v{E0+1+2*th}, v{b+e}")
        for p in range(4): a(f"v_cvt_pk_bf16_f32 v{224+4*th+p}, v{XB+8*th+2*p}, v{XB+8*th+1+2*p}")
        a(f"buffer_store_dwordx4 v[{224+4*th}:{227+4*th}], v4, {srd(sO)}, s{71+th} offen")

a = Asm()
stamp(a, 0)
DIL = opt("dil", 0)
if DIL: a("s_memrealtime s[80:81]")
prologue(a)
a(f"s_cmp_lt_u32 s{sSLOT}, 4")
a("s_cbranch_scc1 L_spare")
a(f"s_cmp_lt_u32 s{sWV}, 4")
a("s_cbranch_scc1 L_mwave")
aux(a)
a.label("L_spare")
spare(a)
a("s_branch L_fin")
a.label("L_mwave")
mwave(a)
a.label("L_fin")
if DIL:
    a.label("L_dil")
    a("s_memrealtime s[82:83]")
    a("s_waitcnt lgkmcnt(0)")
    a("s_sub_u32 s82, s82, s80")
    a(f"s_cmp_lt_u32 s82, {DIL}")
    a("s_cbranch_scc1 L_dil")
stamp_flush(a)
a.label("L_end")
a("s_endpgm")
kn = NAME + "_kernel"
hdr = open("cdna_kernels/%s.s.ref" % NAME).read().split("; Override launch")[0]
out = hdr + f"; @launch grid=(256,1,1) block=(512,1,1) lds={LDS_BYTES}\n"
out += '.amdgcn_target "amdgcn-amd-amdhsa--gfx950"\n.text\n'
out += f".globl {kn}\n.p2align 8\n.type {kn},@function\n{kn}:\n" + a.finalize()
out += f""".section .rodata,"a"
.p2align 6
.amdhsa_kernel {kn}
  .amdhsa_next_free_vgpr 256
  .amdhsa_next_free_sgpr 102
  .amdhsa_accum_offset 256
  .amdhsa_group_segment_fixed_size 0
  .amdhsa_kernarg_size 104
  .amdhsa_user_sgpr_count 2
  .amdhsa_user_sgpr_kernarg_segment_ptr 1
  .amdhsa_system_sgpr_workgroup_id_x 1
  .amdhsa_float_denorm_mode_32 3
.end_amdhsa_kernel
"""
dst = sys.argv[1] if len(sys.argv) > 1 and not sys.argv[1].startswith("--") else "cdna_kernels/%s.s" % NAME
open(dst, "w").write(out)
print("wrote", dst, len(out), "barriers:", out.count("s_barrier"))
```

```python
import sys, struct
from asmdsl import Asm, TRANS

NAME = "parallel_sum__ssm_conv_h3__glu_gated_swiglu__prompt"
S, D, F = 2048, 448, 1792
WS_F1, WS_F2, WS_F3, WS_F4 = 0x1000, 0x3000, 0x4000, 0x6000
WS_STATS = 0x10000
WS_CS    = 0x18000
WS_R     = 0x30000
RP       = 4224
WS_Y     = 0x200000
WS_H     = 0x400000
HTYPE    = 64*56*1024
WS_BYTES = 0x1000000
WS_DBG   = 0xF00000
STAMP = "--stamp" in sys.argv
CLK = "s_memtime" if "--cyc" in sys.argv else "s_memrealtime"
def NT(name, default=0): return " nt" if opt(name, default) else ""
def opt(name, default):
    for x in sys.argv:
        if x.startswith(f"--{name}="): return int(x.split("=")[1])
    return default

sQ, sK, sV, sSH, sSK, sD, sW1, sW3, sW2, sO, sWS = 4, 8, 12, 16, 20, 24, 28, 32, 36, 40, 44
def srd(b): return f"s[{b}:{b+3}]"
SRD_INFO = {
    'q': (sQ, 0, S*D*2), 'w1': (sW1, 56, D*F*2), 'w3': (sW3, 64, D*F*2), 'ws': (sWS, 96, WS_BYTES),
    'k': (sK, 8, S*D*2), 'v': (sV, 16, S*D*2), 'sh': (sSH, 24, D*8),
    'sk': (sSK, 32, D*S*2), 'd': (sD, 40, D*2),
    'w2': (sW2, 72, D*F*2), 'o': (sO, 80, S*D*2),
}
sROT = 3
sA, sI, sJ, sTT = 48, 49, 50, 51
sX, sLQ, sLR, sWV, sSLOT = 52, 53, 54, 55, 56
sE = 78
sA4K = 57
def fh(f): return "0x%08x" % struct.unpack("<I", struct.pack("<f", f))[0]
def lo(a, d, s): a(f"v_lshlrev_b32 v{d}, 16, v{s}")
def hi(a, d, s): a(f"v_and_b32 v{d}, 0xffff0000, v{s}")
NST = 11
SMODE = opt("smode", 0)
def stamp(a, idx, mode=0):
    if STAMP and (mode == SMODE or idx in (0, NST-1)): a(f"{CLK} s[{80+2*idx}:{81+2*idx}]")
def stamp_flush(a):
    if not STAMP: return
    a("s_waitcnt vmcnt(0) lgkmcnt(0)")
    stamp(a, NST-1)
    a(f"s_and_b32 s60, s{sWV}, 3")
    a(f"s_cmp_lg_u32 s60, 0")
    a(f"s_cbranch_scc1 L_end")
    a("s_waitcnt lgkmcnt(0)")
    a(f"s_lshl_b32 s60, s2, 7")
    a(f"s_lshl_b32 s61, s{sWV}, 13")
    a(f"s_add_u32 s60, s60, s61")
    a(f"s_add_u32 s60, s60, {WS_DBG}")
    a("v_mov_b32 v0, 0")
    for i in range(NST):
        a(f"v_mov_b32 v2, s{80+2*i}")
        a(f"v_mov_b32 v3, s{81+2*i}")
        a(f"buffer_store_dwordx2 v[2:3], v0, {srd(sWS)}, s60 offen offset:{8*i}")

UID = [0]
def uid():
    UID[0] += 1; return UID[0]
def poll(a, vaddr, vtmp, soff, n=None, sleep=4):
    n = n or uid()
    a(f"s_mov_b32 s58, 0")
    a.label(f"L_poll{n}")
    a(f"buffer_load_dword v{vtmp}, v{vaddr}, {srd(sWS)}, s{soff} offen sc1")
    a(f"s_waitcnt vmcnt(0)")
    a(f"v_cmp_ne_u32 vcc, s{sE}, v{vtmp}")
    a(f"s_cbranch_vccz L_polled{n}")
    a(f"s_add_u32 s58, s58, 1")
    a(f"s_cmp_lt_u32 s58, 0x40000")
    a(f"s_cbranch_scc0 L_polled{n}")
    a(f"s_sleep {sleep}")
    a(f"s_branch L_poll{n}")
    a.label(f"L_polled{n}")
def poll_issue(a, vaddr, vtmp, soff):
    a(f"buffer_load_dword v{vtmp}, v{vaddr}, {srd(sWS)}, s{soff} offen sc1")
def poll_check(a, vaddr, vtmp, soff):
    n = uid()
    a(f"v_cmp_ne_u32 vcc, s{sE}, v{vtmp}")
    a(f"s_cbranch_vccz L_polled{n}")
    poll(a, vaddr, vtmp, soff, n)
def spoll(a, soff, nw):
    n = uid()
    a(f"s_mov_b32 s58, 0")
    a.label(f"L_sp{n}")
    a(f"s_load_dwordx8 s[8:15], s[{sWS}:{sWS+1}], s{soff} glc")
    a(f"s_waitcnt lgkmcnt(0)")
    if nw == 7: a(f"s_mov_b32 s15, s{sE}")
    for i in range(4): a(f"s_xor_b64 s[{8+2*i}:{9+2*i}], s[{8+2*i}:{9+2*i}], s[{sE}:{sE+1}]")
    a(f"s_or_b64 s[8:9], s[8:9], s[10:11]")
    a(f"s_or_b64 s[12:13], s[12:13], s[14:15]")
    a(f"s_or_b64 s[8:9], s[8:9], s[12:13]")
    a(f"s_cbranch_scc0 L_spd{n}")
    a(f"s_add_u32 s58, s58, 1")
    a(f"s_cmp_lt_u32 s58, 0x40000")
    a(f"s_cbranch_scc1 L_sp{n}")
    a.label(f"L_spd{n}")
def wflag(a, soff, v0, v1):
    a(f"v_mov_b32 v{v0}, 0")
    a(f"v_mov_b32 v{v1}, s{sE}")
    a(f"s_mov_b64 exec, 1")
    a(f"buffer_store_dword v{v1}, v{v0}, {srd(sWS)}, s{soff} offen sc1")
    a(f"s_mov_b64 exec, -1")

def XS(p): return (3 if p == 6 else p % 3) * 16384
WB0, WA0 = 65536, 114688
def WOFF(half, p): return ((p + 1) % 3 if half == 0 else p % 3) * 16384
def WS_(half, p): return (WA0 if half == 0 else WB0) + WOFF(half, p)
CVL = 114688
CB = 18176
HA, HB, U0, U1 = 256, 4736, 8960, 13536
CNT = CVL + 2*CB
EV = {n: 16*i for i, n in enumerate(['A6','B4','B5','B6','WB5','WB6','W2A','PRE','CV0','CV1','CV2','CV3','MP','XP','W2B','WB56'])}
LDS_BYTES = 163840
W2BLK = [0, 1, 5, 2, 6, 3, 4]
NSTG = opt('nstg', 3)
KVL = 3*16384
PST = 3*16384
vL, vH, vCo, vCa, vE = 1, 2, 3, 0, 15
def sig(a, ev):
    a(f"ds_write_b32 v{vCo}, v{vE} offset:{EV[ev]}")
def lread(a, ev, vtmp, own=False):
    a(f"ds_read_b32 v{vtmp}, v{vCo if own else vCa} offset:{EV[ev]}")
def lwait(a, ev, vtmp, own=False, pre=False):
    n = uid()
    if pre:
        a(f"v_cmp_ne_u32 vcc, s{sE}, v{vtmp}")
        a(f"s_cbranch_vccz L_lwd{n}")
    a(f"s_mov_b32 s58, 0")
    a.label(f"L_lw{n}")
    lread(a, ev, vtmp, own)
    a(f"s_waitcnt lgkmcnt(0)")
    a(f"v_cmp_ne_u32 vcc, s{sE}, v{vtmp}")
    a(f"s_cbranch_vccz L_lwd{n}")
    a(f"s_add_u32 s58, s58, 1")
    a(f"s_cmp_lt_u32 s58, 0x400000")
    a(f"s_cbranch_scc0 L_lwd{n}")
    a(f"s_sleep 1")
    a(f"s_branch L_lw{n}")
    a.label(f"L_lwd{n}")
def flag_setup(a):
    a(f"v_lshlrev_b32 v{vH}, 4, v{vL}")
    a(f"s_lshl_b32 s58, s{sA}, 2")
    a(f"s_add_u32 s58, s58, {CNT}")
    a(f"v_mov_b32 v{vCo}, s58")
    a(f"v_and_b32 v{vCa}, 3, v{vL}")
    a(f"v_lshlrev_b32 v{vCa}, 2, v{vCa}")
    a(f"v_add_u32 v{vCa}, {CNT}, v{vCa}")

class Rec:
    def __init__(self): self.l = []
    def __call__(self, t): self.l += [x for x in t.split('\n') if x.strip()]
class VM:
    def __init__(self, a): self.a = a; self.q = []
    def add(self, tag, n=1): self.q += [tag]*n
    def wait(self, *tags):
        idx = max(i for i, t in enumerate(self.q) if t in tags)
        n = len(self.q) - 1 - idx
        assert n <= 63, n
        self.a(f"s_waitcnt vmcnt({n})")
    def drain(self): self.a("s_waitcnt vmcnt(0)")

def prologue(a):
    a(f"s_cmp_ge_u32 s2, 256")
    a(f"s_cbranch_scc1 L_end")
    for n, (r, off, sz) in SRD_INFO.items():
        a(f"s_load_dwordx2 s[{r}:{r+1}], s[0:1], {off}")
    a(f"v_lshrrev_b32 v1, 6, v0")
    a(f"s_and_b32 s{sX}, s2, 7")
    a(f"v_readfirstlane_b32 s{sWV}, v1")
    a(f"s_lshr_b32 s{sSLOT}, s2, 3")
    for n, (r, off, sz) in SRD_INFO.items():
        a(f"s_mov_b32 s{r+2}, {sz}")
        a(f"s_mov_b32 s{r+3}, 0x20000")
    a(f"s_sub_u32 s{sLR}, s{sSLOT}, 4")
    a(f"s_mul_i32 s{sLQ}, s{sLR}, 37")
    a(f"s_lshr_b32 s{sLQ}, s{sLQ}, 8")
    a(f"s_mul_i32 s58, s{sLQ}, 7")
    a(f"s_sub_u32 s{sLR}, s{sLR}, s58")
    a(f"s_and_b32 s{sA}, s{sWV}, 3")
    a(f"s_lshr_b32 s{sI}, s{sX}, 1")
    a(f"s_lshl_b32 s{sI}, s{sI}, 2")
    a(f"s_add_u32 s{sI}, s{sI}, s{sLQ}")
    a(f"s_and_b32 s{sJ}, s{sX}, 1")
    a(f"s_mul_i32 s{sJ}, s{sJ}, 7")
    a(f"s_add_u32 s{sJ}, s{sJ}, s{sLR}")
    a(f"s_lshl_b32 s{sTT}, s{sX}, 2")
    a(f"s_add_u32 s{sTT}, s{sTT}, s{sLQ}")
    a(f"v_and_b32 v1, 63, v0")
    a(f"s_lshl_b32 s{sA4K}, s{sA}, 12")
def rot_setup(a):
    a(f"s_lshl_b32 s3, s{sLQ}, 1")
    a(f"s_add_u32 s3, s3, s{sLR}")
    a(f"s_cmp_ge_u32 s3, 7")
    a(f"s_cselect_b32 s58, 7, 0")
    a(f"s_sub_u32 s3, s3, s58")
    if opt("rot2", 1) == 0: a("s_mov_b32 s3, 0")
def kernarg_wait(a):
    a(f"s_waitcnt lgkmcnt(0)")
    a(f"s_load_dword s{sE}, s[{sWS}:{sWS+1}], 0")
def epoch_hash(a):
    a(f"s_waitcnt lgkmcnt(0)")
    a(f"s_mul_i32 s77, s{sE}, 0x9E3779B1")
    a(f"s_add_u32 s77, s77, 0x7F4A7C15")
    a(f"s_lshr_b32 s{sE}, s77, 15")
    a(f"s_xor_b32 s{sE}, s{sE}, s77")
    a(f"s_and_b32 s{sE}, s{sE}, 0xBFFFBFFF")
    a(f"s_mov_b32 s{sE+1}, s{sE}")
def round_bf16(a, v):
    a(f"v_cvt_pk_bf16_f32 v{v}, v{v}, v{v}")
    a(f"v_lshlrev_b32 v{v}, 16, v{v}")

def spare(a):
    a(f"s_lshl_b32 s60, s{sX}, 2")
    a(f"s_add_u32 s60, s60, s{sSLOT}")
    a("v_lshrrev_b32 v2, 3, v0")
    a("v_and_b32 v3, 7, v0")
    a("v_mul_u32_u24 v4, 896, v2")
    a("v_lshl_add_u32 v4, v3, 4, v4")
    a(f"s_mul_i32 s61, s60, {64*896}")
    kernarg_wait(a)
    for n in range(7): a(f"buffer_load_dwordx4 v[{8+4*n}:{11+4*n}], v4, {srd(sQ)}, s61 offen offset:{128*n}")
    a(f"s_lshr_b32 s62, s{sX}, 1")
    a(f"s_lshl_b32 s62, s62, 2")
    a(f"s_add_u32 s62, s62, s{sSLOT}")
    a(f"s_min_u32 s62, s62, 13")
    a(f"s_cmp_ge_u32 s62, 7")
    a(f"s_cselect_b32 s64, s{sW3}, s{sW1}")
    a(f"s_cselect_b32 s65, s{sW3+1}, s{sW1+1}")
    a(f"s_cselect_b32 s63, 7, 0")
    a(f"s_cselect_b32 s68, {F*16}, 0")
    a(f"s_mov_b32 s66, {D*F*2}")
    a(f"s_mov_b32 s67, 0x20000")
    a(f"s_sub_u32 s63, s62, s63")
    a(f"s_and_b32 s69, s{sX}, 1")
    a(f"s_mul_i32 s69, s69, 7")
    a(f"s_add_u32 s63, s63, s69")
    a("v_lshrrev_b32 v6, 4, v1")
    a("v_and_b32 v5, 15, v1")
    a(f"v_mul_u32_u24 v7, 3584, v6")
    a("v_lshl_add_u32 v7, v5, 4, v7")
    a(f"s_mul_i32 s69, s{sWV}, {56*3584}")
    a(f"s_lshl_b32 s70, s63, 8")
    a(f"s_add_u32 s69, s69, s70")
    for n in range(14):
        a(f"buffer_load_dwordx4 v[{64+4*n}:{67+4*n}], v7, s[64:67], s69 offen")
        a(f"s_add_u32 s69, s69, {4*3584}")
    a("v_lshrrev_b32 v44, 1, v5")
    a("v_and_b32 v45, 1, v5")
    a("v_lshlrev_b32 v45, 4, v45")
    a("v_mov_b32 v46, 0x3f80")
    a("v_lshlrev_b32 v46, v45, v46")
    for dw in range(4):
        a(f"v_cmp_eq_u32 vcc, {dw}, v44")
        a(f"v_cndmask_b32 v{48+dw}, 0, v46, vcc")
    epoch_hash(a)
    a("v_mov_b32 v40, 0\nv_mov_b32 v41, 0\nv_mov_b32 v42, 0\nv_mov_b32 v43, 0")
    a("s_mov_b32 s70, 0x3f803f80")
    a("s_waitcnt vmcnt(14)")
    stamp(a, 2, SMODE)
    for n in range(28):
        a(f"v_dot2_f32_bf16 v{40+2*(n%2)}, v{8+n}, s70, v{40+2*(n%2)}")
        a(f"v_dot2_f32_bf16 v{41+2*(n%2)}, v{8+n}, v{8+n}, v{41+2*(n%2)}")
    a("v_add_f32 v40, v40, v42")
    a("v_add_f32 v41, v41, v43")
    for m in ("quad_perm:[1,0,3,2]", "quad_perm:[2,3,0,1]", "row_half_mirror"):
        a(f"v_add_f32_dpp v40, v40, v40 {m} row_mask:0xf bank_mask:0xf")
        a(f"v_add_f32_dpp v41, v41, v41 {m} row_mask:0xf bank_mask:0xf")
    a(f"v_mul_f32 v40, {fh(1.0/448)}, v40")
    a(f"v_mul_f32 v41, {fh(1.0/448)}, v41")
    a("v_fma_f32 v41, -v40, v40, v41")
    a("v_max_f32 v41, 0, v41")
    round_bf16(a, 40)
    round_bf16(a, 41)
    a(f"v_add_f32 v41, {fh(1e-5)}, v41")
    round_bf16(a, 41)
    a("v_sqrt_f32 v41, v41")
    round_bf16(a, 41)
    a("v_rcp_f32 v41, v41")
    a(f"v_mov_b32 v42, s{sE}")
    a(f"v_mov_b32 v43, 0")
    a("v_lshlrev_b32 v4, 4, v2")
    a(f"s_lshl_b32 s61, s60, 10")
    a(f"s_add_u32 s61, s61, {WS_STATS}")
    a("v_cmp_eq_u32 vcc, 0, v3")
    a("s_and_saveexec_b64 s[72:73], vcc")
    a(f"buffer_store_dwordx4 v[40:43], v4, {srd(sWS)}, s61 offen sc1")
    a("s_mov_b64 exec, s[72:73]")
    for n in range(14):
        a(f"s_waitcnt vmcnt({14-n})")
        c = "0" if n == 0 else "v[52:55]"
        a(f"v_mfma_f32_16x16x32_bf16 v[52:55], v[48:51], v[{64+4*n}:{67+4*n}], {c}")
    stamp(a, 4, SMODE)
    a("v_lshlrev_b32 v4, 5, v5")
    a("v_lshl_add_u32 v4, v6, 4, v4")
    a(f"s_lshl_b32 s61, s{sWV}, 9")
    a("v_add_u32 v4, s61, v4")
    a("v_cmp_gt_u32 vcc, 2, v6")
    a("s_and_saveexec_b64 s[72:73], vcc")
    a("ds_write_b128 v4, v[52:55]")
    a("s_mov_b64 exec, s[72:73]")
    a("s_waitcnt lgkmcnt(0)")
    a("s_barrier")
    stamp(a, 5, SMODE)
    a(f"s_cmp_ge_u32 s{sWV}, 2")
    a("s_cbranch_scc1 L_fin")
    a("v_lshlrev_b32 v4, 2, v0")
    for p in range(8): a(f"ds_read_b32 v{64+p}, v4 offset:{512*p}")
    a("s_waitcnt lgkmcnt(0)")
    for st in (4, 2, 1):
        for p in range(st): a(f"v_add_f32 v{64+p}, v{64+p}, v{64+p+st}")
    a(f"v_and_b32 v70, 0xffff0000, v64")
    a(f"v_sub_f32 v64, v64, v70")
    a(f"v_and_b32 v72, 0xffff0000, v64")
    a(f"v_sub_f32 v64, v64, v72")
    a(f"v_lshrrev_b32 v70, 16, v70")
    a(f"v_or_b32 v40, v70, v72")
    a(f"v_lshrrev_b32 v41, 16, v64")
    a(f"s_lshl_b32 s61, s63, 11")
    a(f"s_add_u32 s61, s61, s68")
    a(f"s_add_u32 s61, s61, {WS_CS}")
    a(f"v_lshlrev_b32 v4, 4, v0")
    a(f"buffer_store_dwordx4 v[40:43], v4, {srd(sWS)}, s61 offen sc1")
    stamp(a, 6, SMODE)
    a(f"s_cmp_lg_u32 s{sWV}, 0")
    a("s_cbranch_scc1 L_fin")
    a(f"s_lshl_b32 s61, s60, 2")
    a(f"s_add_u32 s61, s61, {WS_F2}")
    wflag(a, 61, 2, 3)
    a(f"s_cmp_lg_u32 s60, 0")
    a(f"s_cbranch_scc1 L_fin")
    a(f"v_and_b32 v4, 31, v0")
    a(f"v_lshlrev_b32 v4, 2, v4")
    a(f"s_mov_b32 s61, {WS_F2}")
    poll(a, 4, 5, 61, sleep=8)
    a(f"s_mov_b32 s61, {WS_F1}")
    a.label("L_sp_ep")
    poll(a, 4, 5, 61, sleep=8)
    a(f"s_add_u32 s61, s61, 512")
    a(f"s_cmp_lt_u32 s61, {WS_F1 + 7*512}")
    a(f"s_cbranch_scc1 L_sp_ep")
    a(f"v_mov_b32 v2, 0")
    a(f"v_mov_b32 v3, s77")
    a(f"s_mov_b64 exec, 1")
    a(f"buffer_store_dword v3, v2, {srd(sWS)}, 0 offen sc1")
    a(f"s_mov_b64 exec, -1")

def w2_setup(a):
    a(f"v_lshrrev_b32 v8, 3, v{vL}")
    a(f"v_and_b32 v9, 7, v{vL}")
    a(f"v_bfe_u32 v10, v{vL}, 4, 1")
    a(f"v_lshlrev_b32 v10, 2, v10")
    a(f"v_xor_b32 v9, v9, v10")
    a(f"v_mul_u32_u24 v8, 896, v8")
    a(f"v_lshl_add_u32 v4, v9, 4, v8")
    for i in range(1, 4): a(f"v_add_u32 v{4+i}, {i*(8*896 - 1024)}, v4")
def rot_pair(a, b):
    a(f"s_add_u32 s58, s{sROT}, {b}")
    a(f"s_cmp_ge_u32 s58, 7")
    a(f"s_cselect_b32 s59, 7, 0")
    a(f"s_sub_u32 s58, s58, s59")
    a(f"s_mul_i32 s59, s{sA}, 7")
    a(f"s_add_u32 s58, s58, s59")
def w2_dma(a, vm, b, typ, blk=None):
    if blk is None: blk = W2BLK[b]
    rot_pair(a, b)
    a(f"s_lshr_b32 s59, s58, 1")
    a(f"s_mul_i32 s59, s59, {128*896}")
    a(f"s_and_b32 s58, s58, 1")
    a(f"s_mul_i32 s58, s58, {32*896}")
    a(f"s_add_u32 s58, s58, s59")
    a(f"s_add_u32 m0, s{sA4K}, {blk*16384}")
    a(f"s_add_u32 s58, s58, s{75+typ}")
    for i in range(4): a(f"buffer_load_dwordx4 v{4+i}, {srd(sW2)}, s58 offen offset:{1024*i} lds")
    vm.add(f'w2_{typ}_{b}', 4)
def tr_setup(a, V):
    a(f"v_bfe_u32 v8, v{vL}, 2, 2")
    a(f"v_lshrrev_b32 v9, 5, v{vL}")
    a(f"v_lshl_add_u32 v10, v9, 2, v8")
    a(f"v_lshlrev_b32 v10, 7, v10")
    a(f"v_bfe_u32 v9, v{vL}, 4, 1")
    a(f"v_lshl_add_u32 v10, v9, 5, v10")
    a(f"v_and_b32 v9, 3, v{vL}")
    a(f"v_lshl_add_u32 v10, v9, 3, v10")
    a(f"v_add_u32 v10, s{sA4K}, v10")
    a(f"v_lshrrev_b32 v8, 1, v8")
    a(f"v_lshl_add_u32 v{V}, v8, 6, v10")
    a(f"v_xor_b32 v8, 1, v8")
    a(f"v_lshl_add_u32 v{V+1}, v8, 6, v10")
    a(f"v_add_u32 v{V+2}, 0x10000, v{V}")
    a(f"v_add_u32 v{V+3}, 0x10000, v{V+1}")
def pair_reads(a, b, blk, V, WR=144):
    for k2 in range(2):
        for ct in range(2):
            for z in range(2):
                base = (V if blk < 4 else V+2) + ct
                o = (blk % 4)*16384 + k2*2048 + z*1024
                f = WR + 8*(2*b + k2) + 4*ct + 2*z
                a(f"ds_read_b64_tr_b16 v[{f}:{f+1}], v{base} offset:{o}")
def stage_read(a, vm, b, blk, V, wait=True):
    vm.wait(f'w2_1_{b}')
    pair_reads(a, b, blk, V)
    if wait: a("s_waitcnt lgkmcnt(0)")

WR, AC, HR, HRN = 144, 80, 16, 16
def g2_setup(a, role):
    a(f"s_mul_i32 s62, s{sTT}, {112*1024}")
    a(f"s_add_u32 s62, s62, {WS_H + role*HTYPE}")
    a(f"s_lshl_b32 s64, s{sTT}, 7")
    a(f"s_lshl_b32 s58, s{sA}, 5")
    a(f"s_add_u32 s64, s64, s58")
    a(f"s_add_u32 s64, s64, {WS_F3 + role*4096}")
def hload(a, vm, j):
    k, tt = j // 2, j % 2
    rg = HR + 4*(j % HRN)
    if j % 4 == 0:
        rot_pair(a, k // 2)
        a(f"s_lshl_b32 s63, s58, 11")
        a(f"s_add_u32 s63, s63, s62")
        a(f"s_add_u32 s61, s63, {56*1024}")
    so = 63 if tt == 0 else 61
    a(f"buffer_load_dwordx4 v[{rg}:{rg+3}], v{vH}, {srd(sWS)}, s{so} offen offset:{1024*(k%2)} sc1")
    vm.add(f'h{j}')
def g2_loop(a, vm, role, hook=None):
    for k in range(14):
        for tt in range(2):
            j = 2*k + tt
            vm.wait(f'h{j}')
            rg = HR + 4*(j % HRN)
            for ct in range(2):
                acc = AC + 32*ct + 16*tt
                c = "0" if k == 0 else f"v[{acc}:{acc+15}]"
                f = WR + 8*k + 4*ct
                a(f"v_mfma_f32_32x32x16_bf16 v[{acc}:{acc+15}], v[{f}:{f+3}], v[{rg}:{rg+3}], {c}")
            if j >= 1 and j - 1 + HRN < 28: hload(a, vm, j - 1 + HRN)
            if hook: hook(j)
def g2_partials(a, role):
    a(f"v_add_u32 v9, s{sA4K}, v{vH}")
    if role == 1: a(f"v_add_u32 v9, 0x10000, v9")
    for th in range(2):
        for kq in range(4):
            base = AC + 32*(kq >> 1) + 16*th + 8*(kq & 1)
            o = kq*16384 + th*2048
            a(f"ds_write_b128 v9, v[{base}:{base+3}] offset:{o}")
            a(f"ds_write_b128 v9, v[{base+4}:{base+7}] offset:{o + 1024}")

def aux(a):
    vm = VM(a)
    sXo, sWo, sMw = 60, 61, 64
    vX = [16, 17, 18, 19]; vW = [20, 21, 22, 23]
    a(f"s_mul_i32 s{sXo}, s{sI}, {128*896}")
    a(f"s_mul_i32 s58, s{sA}, {32*896}")
    a(f"s_add_u32 s{sXo}, s{sXo}, s58")
    a(f"s_lshl_b32 s{sWo}, s{sJ}, 8")
    a(f"s_and_b32 s58, s{sA}, 1")
    a(f"s_mul_i32 s58, s58, {32*3584}")
    a(f"s_add_u32 s{sWo}, s{sWo}, s58")
    a(f"v_lshrrev_b32 v6, 3, v{vL}")
    a(f"v_and_b32 v7, 7, v{vL}")
    a(f"v_lshrrev_b32 v8, 4, v{vL}")
    a(f"v_xor_b32 v9, v7, v8")
    a(f"v_mul_u32_u24 v10, 896, v6")
    a(f"v_lshl_add_u32 v{vX[0]}, v9, 4, v10")
    a(f"v_xor_b32 v9, 4, v9")
    a(f"v_lshl_add_u32 v{vX[1]}, v9, 4, v10")
    a(f"v_add_u32 v{vX[1]}, {8*896-1024}, v{vX[1]}")
    a(f"v_add_u32 v{vX[2]}, {16*896-2048}, v{vX[0]}")
    a(f"v_add_u32 v{vX[3]}, {16*896-2048}, v{vX[1]}")
    a(f"v_and_b32 v9, 1, v8")
    a(f"v_lshlrev_b32 v9, 2, v9")
    a(f"v_xor_b32 v9, v7, v9")
    a(f"v_mul_u32_u24 v11, 3584, v6")
    a(f"v_lshl_add_u32 v{vW[0]}, v9, 4, v11")
    for i in range(1, 4): a(f"v_add_u32 v{vW[i]}, {i*(8*3584-1024)}, v{vW[0]}")
    kernarg_wait(a)
    a(f"s_cmp_ge_u32 s{sA}, 2")
    a(f"s_cselect_b32 s{sW1}, s{sW3}, s{sW1}")
    a(f"s_cselect_b32 s{sW1+1}, s{sW3+1}, s{sW1+1}")
    ROT = opt("rot", 0)
    SL = 66
    def dmaX(p):
        a(f"s_add_u32 m0, s{sA4K}, {XS(p)}")
        if ROT and p:
            a(f"s_lshl_b32 s58, s{SL+p-1}, 7")
            a(f"s_add_u32 s58, s58, s{sXo}")
        else: a(f"s_add_u32 s58, s{sXo}, {128*p}")
        for i in range(4): a(f"buffer_load_dwordx4 v{vX[i]}, {srd(sQ)}, s58 offen offset:{1024*i}{NT('ntx')} lds")
        vm.add(f'X{p}', 4)
    def dmaW(p, half):
        a(f"s_add_u32 m0, s{sA4K}, {WS_(half, p)}")
        if ROT and p:
            a(f"s_mul_i32 s58, s{SL+p-1}, {64*3584}")
            a(f"s_add_u32 s58, s58, s{sWo}")
            if half: a(f"s_add_u32 s58, s58, 128")
        else: a(f"s_add_u32 s58, s{sWo}, {64*3584*p + 128*half}")
        for i in range(4): a(f"buffer_load_dwordx4 v{vW[i]}, {srd(sW1)}, s58 offen offset:{1024*i}{NT('ntw')} lds")
        vm.add(f"W{'AB'[half]}{p}", 4)
    def slab_setup():
        a(f"s_lshl_b32 s58, s{sLQ}, 1")
        a(f"s_cmp_eq_u32 s{sLQ}, 3")
        a(f"s_cselect_b32 s58, 1, s58")
        a(f"s_add_u32 s58, s58, s{sLR}")
        a(f"s_cmp_ge_u32 s58, 6")
        a(f"s_cselect_b32 s59, 6, 0")
        a(f"s_sub_u32 s58, s58, s59")
        a(f"s_add_u32 s{SL}, s58, 1")
        for p in range(2, 7):
            a(f"s_add_u32 s{SL+p-1}, s{SL+p-2}, 1")
            a(f"s_cmp_eq_u32 s{SL+p-1}, 7")
            a(f"s_cselect_b32 s{SL+p-1}, 1, s{SL+p-1}")
    dmaX(0); dmaW(0, 0); dmaW(0, 1)
    if ROT: slab_setup()
    P = 64
    a(f"v_lshl_add_u32 v{P}, v7, 4, v10")
    a(f"v_add_u32 v{P+1}, {8*896-1024}, v{P}")
    a(f"s_mul_i32 s65, s{sTT}, {64*896}")
    a(f"s_lshl_b32 s75, s{sLR}, 7")
    a(f"s_add_u32 s76, s75, {64*896}")
    a(f"s_add_u32 s65, s65, s75")
    a(f"s_mul_i32 s58, s{sA}, {16*896}")
    a(f"s_add_u32 s65, s65, s58")
    a(f"s_lshl_b32 s{sMw}, s{sA}, 11")
    def dmaKV():
        a(f"s_add_u32 m0, s{sMw}, {KVL}")
        for i in range(2): a(f"buffer_load_dwordx4 v{P+i}, {srd(sK)}, s65 offen offset:{1024*i}{NT('ntkv')} lds")
        a(f"s_add_u32 m0, s{sMw}, {KVL + 8192}")
        for i in range(2): a(f"buffer_load_dwordx4 v{P+i}, {srd(sV)}, s65 offen offset:{1024*i}{NT('ntkv')} lds")
        vm.add('kv', 4)
    dmaKV()
    if opt("pfb", 1):
        a(f"s_lshr_b64 exec, -1, 32")
        a(f"s_cmp_ge_u32 s{sA}, 2")
        a(f"s_cbranch_scc1 L_pfb_w")
        a(f"v_lshlrev_b32 v24, 7, v{vL}")
        a(f"s_mul_i32 s58, s{sX}, 28")
        a(f"s_add_u32 s58, s58, s{sSLOT}")
        a(f"s_sub_u32 s58, s58, 4")
        a(f"s_lshl_b32 s58, s58, 1")
        a(f"s_add_u32 s58, s58, s{sA}")
        a(f"s_lshl_b32 s58, s58, 12")
        a(f"buffer_load_dword v25, v24, {srd(sSK)}, s58 offen{NT('ntsk')}")
        a(f"s_branch L_pfb_d")
        a.label("L_pfb_w")
        a(f"v_mul_u32_u24 v24, 896, v{vL}")
        a(f"s_lshl_b32 s58, s{sTT}, 1")
        a(f"s_add_u32 s58, s58, s{sA}")
        a(f"s_sub_u32 s58, s58, 2")
        a(f"s_mul_i32 s58, s58, {28*896}")
        a(f"s_add_u32 s58, s58, s75")
        a(f"buffer_load_dword v25, v24, {srd(sW2)}, s58 offen")
        a.label("L_pfb_d")
        a(f"s_mov_b64 exec, -1")
        vm.add('pfb')
    else: dmaX(1)
    a(f"s_mul_i32 s58, s{sA}, {16*144}")
    a(f"s_add_u32 s58, s58, {PST}")
    a(f"v_mul_u32_u24 v{P+2}, 144, v6")
    a(f"v_lshl_add_u32 v{P+2}, v7, 4, v{P+2}")
    a(f"v_add_u32 v{P+2}, s58, v{P+2}")
    a(f"v_mul_u32_u24 v{P+4}, {RP}, v6")
    a(f"v_lshl_add_u32 v{P+4}, v7, 4, v{P+4}")
    a(f"s_lshl_b32 s72, s{sLR}, 2")
    a(f"s_add_u32 s72, s72, s{sA}")
    a(f"s_mul_i32 s73, s72, {16*RP}")
    a(f"s_lshl_b32 s74, s{sTT}, 7")
    a(f"s_sub_u32 s73, s73, s74")
    a(f"s_add_u32 s73, s73, {WS_R + 1984*2}")
    a(f"s_add_u32 s74, s73, {8*RP}")
    a(f"s_lshl_b32 s72, s72, 7")
    a(f"s_lshl_b32 s58, s{sTT}, 2")
    a(f"s_add_u32 s72, s72, s58")
    a(f"s_add_u32 s72, s72, {WS_F1}")
    rot_setup(a)
    flag_setup(a)
    epoch_hash(a)
    a(f"v_mov_b32 v{vE}, s{sE}")
    stamp(a, 1)
    a(f"v_mov_b32 v{P+5}, v7")
    w2_setup(a)
    tr_setup(a, 40)
    vm.wait('WB0'); a("s_barrier")
    stamp(a, 2)
    if opt("pfb", 1): dmaX(1)
    dmaW(1, 0); dmaW(1, 1); dmaX(2); dmaW(2, 0)
    vm.wait('WB1'); a("s_barrier")
    dmaW(2, 1); dmaX(3); dmaW(3, 0)
    vm.wait('WB2'); a("s_barrier")
    dmaW(3, 1); dmaX(4); dmaW(4, 0)
    vm.wait('WA3'); a("s_barrier")
    for i in range(2): a(f"ds_read_b128 v[{P+8+4*i}:{P+11+4*i}], v{P+2} offset:{8*144*i}")
    dmaX(5); dmaW(5, 0)
    a("s_waitcnt lgkmcnt(0)")
    for i in range(2): a(f"buffer_store_dwordx4 v[{P+8+4*i}:{P+11+4*i}], v{P+4}, {srd(sWS)}, s{73+i} offen sc1")
    vm.add('R', 2)
    a(f"s_cmp_lg_u32 s{sTT}, 0")
    a("s_cbranch_scc1 L_nopad")
    for i in range(4): a(f"v_mov_b32 v{P+32+i}, 0")
    a(f"v_cmp_eq_u32 vcc, 7, v{P+5}")
    a("s_and_saveexec_b64 s[58:59], vcc")
    a(f"buffer_store_dwordx4 v[{P+32}:{P+35}], v{P+4}, {srd(sWS)}, s73 offen offset:16 sc1")
    a(f"buffer_store_dwordx4 v[{P+32}:{P+35}], v{P+4}, {srd(sWS)}, s74 offen offset:16 sc1")
    a("s_mov_b64 exec, s[58:59]")
    a.label("L_nopad")
    vm.wait('WB3'); a("s_barrier")
    dmaX(6); dmaW(6, 0)
    vm.wait('WA4'); a("s_barrier")
    dmaW(4, 1); dmaW(5, 1)
    vm.wait('R')
    wflag(a, 72, 24, 25); vm.add('f1')
    vm.wait('WA6'); a("s_barrier")
    stamp(a, 3); stamp(a, 1, 2)
    dmaW(6, 1)
    if NSTG: w2_dma(a, vm, 0, 1, 0)
    else: w2_dma(a, vm, 0, 0)
    sCP, sC, sHf, sDch = 74, 65, 66, 67
    a(f"s_mul_i32 s{sCP}, s{sX}, 28")
    a(f"s_add_u32 s{sCP}, s{sCP}, s{sSLOT}")
    a(f"s_sub_u32 s{sCP}, s{sCP}, 4")
    a(f"s_and_b32 s{sC}, s{sA}, 1")
    a(f"s_lshr_b32 s{sHf}, s{sA}, 1")
    a(f"s_lshl_b32 s{sDch}, s{sCP}, 1")
    a(f"s_add_u32 s{sDch}, s{sDch}, s{sC}")
    a(f"v_mov_b32 v24, 0")
    a(f"s_lshl_b32 s58, s{sDch}, 1")
    a(f"buffer_load_ushort v25, v24, {srd(sD)}, s58 offen")
    a(f"s_lshl_b32 s58, s{sDch}, 12")
    a(f"buffer_load_dword v26, v24, {srd(sSK)}, s58 offen")
    vm.add('dh', 2)
    def stage_next(b):
        if b >= NSTG: return
        stage_read(a, vm, b, 0, 40)
        if b + 1 < NSTG: w2_dma(a, vm, b + 1, 1, 0)
        else: w2_dma(a, vm, 0, 0)
    a(f"s_lshr_b32 s68, s{sCP}, 3")
    a(f"s_lshl_b32 s68, s68, 7")
    a(f"s_add_u32 s68, s68, {WS_F1}")
    a(f"v_and_b32 v33, 31, v{vL}")
    a(f"v_lshlrev_b32 v33, 2, v33")
    a(f"s_lshl_b32 s69, s{sDch}, 12")
    a(f"s_lshl_b32 s58, s{sHf}, 2")
    a(f"s_add_u32 s69, s69, s58")
    a(f"s_mul_i32 s70, s{sDch}, {RP}")
    a(f"s_add_u32 s70, s70, {WS_R + 2}")
    a(f"s_lshl_b32 s58, s{sHf}, 1")
    a(f"s_sub_u32 s70, s70, s58")
    a(f"s_mul_i32 s71, s{sC}, {CB}")
    a(f"s_add_u32 s71, s71, {CVL}")
    a(f"s_mul_i32 s72, s{sHf}, {HB - HA}")
    a(f"s_add_u32 s72, s72, s71")
    a(f"s_add_u32 s72, s72, {HA}")
    a(f"s_mul_i32 s73, s{sHf}, {U1 - U0}")
    a(f"s_add_u32 s73, s73, s71")
    a(f"s_add_u32 s73, s73, {U0}")
    for i in range(4): a(f"v_mov_b32 v{28+i}, 0")
    a(f"s_sub_u32 s58, s72, 256")
    a(f"v_add_u32 v27, s58, v{vH}")
    a(f"s_add_u32 s58, s73, {4096 - 256}")
    a(f"v_add_u32 v32, s58, v{vH}")
    a(f"v_cmp_gt_u32 vcc, 16, v{vL}")
    a(f"v_cndmask_b32 v27, v32, v27, vcc")
    vm.wait('WB6'); sig(a, 'WB56')
    stamp(a, 2, 2)
    poll_issue(a, 33, 35, 68); vm.add('p1')
    stage_next(0)
    vm.wait('p1')
    poll_check(a, 33, 35, 68)
    stamp(a, 3, 2)
    lwait(a, 'A6', 34)
    stamp(a, 4, 2)
    a(f"s_mov_b32 m0, s72")
    for n in range(4): a(f"buffer_load_dwordx4 v{vH}, {srd(sSK)}, s69 offen offset:{1024*n}{NT('ntsk')} lds")
    a(f"s_mov_b32 m0, s73")
    for n in range(4): a(f"buffer_load_dwordx4 v{vH}, {srd(sWS)}, s70 offen offset:{1024*n} sc1 lds")
    vm.add('cvu', 8)
    a(f"v_cmp_gt_u32 vcc, 44, v{vL}")
    a(f"s_and_saveexec_b64 s[58:59], vcc")
    a(f"ds_write_b128 v27, v[28:31]")
    a(f"s_mov_b64 exec, s[58:59]")
    a(f"s_lshl_b32 s58, s{sHf}, 2")
    a(f"s_sub_u32 s58, s72, s58")
    a(f"s_sub_u32 s58, s58, 192")
    a(f"v_mov_b32 v27, s58")
    a(f"ds_write_b32 v27, v25")
    a(f"s_cmp_eq_u32 s{sHf}, 0")
    a(f"s_cbranch_scc1 L_cv_nofix")
    a(f"ds_write_b32 v27, v26 offset:192")
    a.label("L_cv_nofix")
    stage_next(1)
    stamp(a, 4); stamp(a, 5, 2)
    lwait(a, 'B4', 34); stamp(a, 6, 2)
    w2_dma(a, vm, 1, 0); w2_dma(a, vm, 2, 0)
    stage_next(2)
    assert NSTG <= 3
    vA, vB, vDl = 8, 9, 11
    a(f"v_and_b32 v12, 15, v{vL}")
    a(f"v_lshrrev_b32 v13, 4, v{vL}")
    a(f"v_and_b32 v14, 1, v12")
    a(f"v_mov_b32 v17, {HB - 4 - 60 - 192}")
    a(f"v_mov_b32 v16, {HA - 60 - 192}")
    a(f"v_cmp_eq_u32 vcc, 1, v14")
    a(f"v_cndmask_b32 v17, v17, v16, vcc")
    a(f"v_lshl_add_u32 v17, v12, 2, v17")
    a(f"v_lshl_add_u32 v17, v13, 4, v17")
    a(f"v_add_u32 v17, s71, v17")
    a(f"s_lshl_b32 s72, s{sHf}, 8")
    a(f"v_add_u32 v{vA}, s72, v17")
    a(f"s_add_u32 s58, s71, {U0 + 4096}")
    a(f"v_mov_b32 v16, s58")
    a(f"s_cmp_eq_u32 s{sHf}, 0")
    a(f"s_cselect_b64 vcc, -1, 0")
    a(f"v_cndmask_b32 v{vDl}, v16, v17, vcc")
    a(f"v_mov_b32 v17, {U0 + 448}")
    a(f"v_mov_b32 v16, {U1 + 448}")
    a(f"v_cmp_eq_u32 vcc, 1, v14")
    a(f"v_cndmask_b32 v17, v17, v16, vcc")
    a(f"v_lshrrev_b32 v16, 1, v12")
    a(f"v_lshlrev_b32 v16, 6, v16")
    a(f"v_sub_u32 v17, v17, v16")
    a(f"v_lshl_add_u32 v17, v13, 4, v17")
    a(f"s_add_u32 s72, s72, s71")
    a(f"v_add_u32 v{vB}, s72, v17")
    stamp(a, 7, 2)
    vm.wait('cvu'); sig(a, 'CV0')
    lwait(a, 'CV0', 34)
    stamp(a, 5); stamp(a, 8, 2)
    ACC = 16; HI = 48; LOW = [80, 112]; DL = 252
    def Areg(p, it): return (LOW[it % 2] + 4*p) if p < 4 else (HI + 4*(p-4))
    def Breg(q, it): return (LOW[it % 2] + 16 + 4*q) if q < 4 else (HI + 16 + 4*(q-4))
    def rdA(p, it):
        rg = Areg(p, it); o = 192 + 512*p + 64*it
        return [f"ds_read_b64 v[{rg}:{rg+1}], v{vA} offset:{o}", f"ds_read_b64 v[{rg+2}:{rg+3}], v{vA} offset:{o+8}"]
    def rdB(q, it):
        rg = Breg(q, it); o = 3584 - 512*q + 64*it
        return [f"ds_read_b128 v[{rg}:{rg+3}], v{vB} offset:{o}"]
    def cmf(T, A, B, first=False):
        c = "0" if first else f"v[{ACC+4*T}:{ACC+4*T+3}]"
        return f"v_mfma_f32_16x16x32_bf16 v[{ACC+4*T}:{ACC+4*T+3}], v[{A}:{A+3}], v[{B}:{B+3}], {c}"
    a(f"ds_read_b64 v[{DL}:{DL+1}], v{vDl}")
    a(f"ds_read_b64 v[{DL+2}:{DL+3}], v{vDl} offset:8")
    for p in range(4):
        for rr in rdA(p, 0) + rdB(p, 0): a(rr)
    for it in range(4):
        a("s_waitcnt lgkmcnt(0)")
        if it == opt("i6", 1):
            lwait(a, 'B6', 10)
            w2_dma(a, vm, 5, 0); w2_dma(a, vm, 6, 0)
        if it == opt("i6", 1) + 1:
            vm.drain(); sig(a, 'W2A')
        rd = []
        for p in range(4, 8): rd += rdA(p, it) + rdB(p, it)
        ms = []
        if it == 0: ms += [cmf(T, DL, Breg(T, 0), True) for T in range(4)]
        seen = set(range(4)) if it == 0 else set(range(8))
        for p in range(4):
            for q in range(4):
                T = p + q
                ms.append(cmf(T, Areg(p, it), Breg(q, it), T not in seen)); seen.add(T)
        for k, m in enumerate(ms):
            a(m)
            if k < len(rd): a(rd[k])
        a("s_waitcnt lgkmcnt(0)")
        if it == 0:
            lwait(a, 'B5', 10)
            w2_dma(a, vm, 3, 0); w2_dma(a, vm, 4, 0)
        if it == 3: sig(a, 'CV1')
        rd = []
        if it < 3:
            for p in range(4): rd += rdA(p, it+1) + rdB(p, it+1)
        ms = []
        for hp in range(4, 8):
            for l in range(0, 8 - hp):
                T = hp + l
                ms.append(cmf(T, Areg(hp, it), Breg(l, it), T not in seen)); seen.add(T)
                ms.append(cmf(T, Areg(l, it), Breg(hp, it)))
        if it == 0: ms += [cmf(T, DL, Breg(T, 0)) for T in range(4, 8)]
        if it == 3:
            r = Rec()
            r(f"s_lshl_b32 s73, s{sA}, 13")
            r(f"s_add_u32 s73, s73, {CVL}")
            r(f"v_add_u32 v8, s73, v{vH}")
            r(f"s_lshl_b32 s73, s{sA}, 11")
            r(f"s_add_u32 s73, s73, {CVL}")
            r(f"v_add_u32 v5, s73, v{vH}")
            r(f"v_lshrrev_b32 v9, 1, v12")
            r(f"v_lshlrev_b32 v9, 7, v9")
            r(f"v_lshl_add_u32 v9, v13, 5, v9")
            r(f"v_lshl_add_u32 v9, v14, 4, v9")
            r(f"s_lshl_b32 s73, s{sCP}, 13")
            r(f"s_lshl_b32 s58, s{sA}, 11")
            r(f"s_add_u32 s73, s73, s58")
            r(f"s_add_u32 s73, s73, {WS_Y}")
            r(f"ds_read_b32 v10, v{vCa} offset:{EV['CV1']}")
            rd = r.l
        for k, m in enumerate(ms):
            a(m)
            if k < len(rd): a(rd[k])
    stamp(a, 6)
    vm.q = []
    a("s_waitcnt lgkmcnt(0)")
    a("s_nop 3")
    lwait(a, 'CV1', 10, pre=True)
    for T in range(8): a(f"ds_write_b128 v8, v[{ACC+4*T}:{ACC+4*T+3}] offset:{1024*T}")
    sig(a, 'CV2')
    g2_setup(a, 1)
    a(f"s_lshr_b32 s65, s{sCP}, 5")
    a(f"s_lshl_b32 s65, s65, 9")
    a(f"s_lshl_b32 s58, s{sA}, 7")
    a(f"s_add_u32 s65, s65, s58")
    a(f"s_and_b32 s58, s{sCP}, 31")
    a(f"s_lshl_b32 s58, s58, 2")
    a(f"s_add_u32 s65, s65, s58")
    a(f"s_add_u32 s65, s65, {WS_F4}")
    lwait(a, 'CV2', 10)
    for t2 in range(2):
        for w in range(4): a(f"ds_read_b128 v[{80+16*t2+4*w}:{83+16*t2+4*w}], v5 offset:{8192*w + 1024*t2}")
    sig(a, 'CV3')
    a(f"s_waitcnt lgkmcnt(0)")
    for t2 in range(2):
        b = 80 + 16*t2
        for rr in range(4):
            a(f"v_add_f32 v{b+rr}, v{b+rr}, v{b+8+rr}")
            a(f"v_add_f32 v{b+4+rr}, v{b+4+rr}, v{b+12+rr}")
        for rr in range(4): a(f"v_cvt_pk_bf16_f32 v{b+8+rr}, v{b+rr}, v{b+4+rr}")
        a(f"buffer_store_dwordx4 v[{b+8}:{b+11}], v9, {srd(sWS)}, s73 offen offset:{1024*t2} sc1")
    vm.add('y', 2)
    spoll(a, 64, 7)
    stamp(a, 7)
    for j in range(HRN): hload(a, vm, j)
    tr_setup(a, 4)
    vm.wait('y')
    wflag(a, 65, 8, 9); vm.add('f4')
    lwait(a, 'W2B', 10, own=True)
    for b in range(NSTG, 7): pair_reads(a, b, W2BLK[b], 4)
    sig(a, 'PRE')
    lread(a, 'CV3', 11)
    a("s_waitcnt lgkmcnt(0)")
    g2_loop(a, vm, 1)
    stamp(a, 8)
    a("s_nop 7")
    lwait(a, 'CV3', 11, pre=True)
    g2_partials(a, 1)
    sig(a, 'XP')
    stamp(a, 9)
    a("s_branch L_fin")

def cost(s):
    m = s.split()[0]
    return 8 if m in TRANS else 4
def mwave(a):
    vm = VM(a)
    sTH, sCH = 60, 61
    a(f"s_setprio {opt('prio', 2)}")
    a(f"s_and_b32 s{sTH}, s{sA}, 1")
    a(f"s_lshr_b32 s{sCH}, s{sA}, 1")
    vXa = [4, 5, 6, 7]; vWa = [8, 9]
    a(f"v_and_b32 v10, 31, v{vL}")
    a(f"v_lshrrev_b32 v11, 5, v{vL}")
    P = 16
    KR, VR, SHR, HLO = P+4, P+16, P+24, P+1
    a(f"s_lshl_b32 s74, s{sLR}, 9")
    a(f"v_lshlrev_b32 v13, 4, v10")
    a(f"s_mul_i32 s73, s{sTT}, {64*896}")
    a(f"s_lshl_b32 s58, s{sLR}, 7")
    a(f"s_add_u32 s73, s73, s58")
    a(f"s_sub_u32 s73, s73, 2688")
    a(f"s_cmp_eq_u32 s{sTT}, 0")
    a(f"s_cselect_b32 s73, 0x40000000, s73")
    a(f"v_lshlrev_b32 v12, 2, v10")
    kernarg_wait(a)
    a(f"buffer_load_dwordx4 v[{SHR}:{SHR+3}], v13, {srd(sSH)}, s74 offen")
    a(f"s_cmp_lg_u32 s{sA}, 0")
    a(f"s_cbranch_scc1 L_nohalo")
    for j in range(3): a(f"buffer_load_dword v{HLO+j}, v12, {srd(sK)}, s73 offen offset:{896*j}")
    a.label("L_nohalo")
    if opt("tlb", 1):
        a(f"s_cmp_lg_u32 s{sA}, 1")
        a(f"s_cbranch_scc1 L_notouch")
        a(f"v_mov_b32 v48, 0")
        a(f"s_mov_b64 exec, 1")
        for r_ in (sSK, sD, sW2, sO, sWS):
            a(f"buffer_load_dword v49, v48, {srd(r_)}, 0 offen offset:{512 if r_ == sWS else 0}")
        a(f"s_mov_b64 exec, -1")
        a.label("L_notouch")
    a(f"v_bfe_u32 v14, v10, 1, 3")
    a(f"v_xor_b32 v14, v14, v11")
    a(f"s_lshl_b32 s58, s{sTH}, 13")
    a(f"v_lshlrev_b32 v48, 7, v10")
    a(f"v_add_u32 v48, s58, v48")
    for ks in range(4):
        a(f"v_xor_b32 v49, {2*ks}, v14")
        a(f"v_lshl_add_u32 v{vXa[ks]}, v49, 4, v48")
    a(f"v_bfe_u32 v14, v{vL}, 2, 2")
    a(f"v_lshl_add_u32 v48, v11, 3, v14")
    a(f"v_lshlrev_b32 v48, 7, v48")
    a(f"v_lshrrev_b32 v14, 1, v14")
    a(f"v_xor_b32 v14, s{sCH}, v14")
    a(f"v_lshl_add_u32 v48, v14, 6, v48")
    a(f"v_bfe_u32 v14, v{vL}, 4, 1")
    a(f"v_lshl_add_u32 v48, v14, 5, v48")
    a(f"v_and_b32 v14, 3, v{vL}")
    a(f"v_lshl_add_u32 v48, v14, 3, v48")
    a(f"v_add_u32 v{vWa[0]}, {WA0}, v48")
    a(f"v_add_u32 v{vWa[1]}, {WB0}, v48")
    flag_setup(a)
    rot_setup(a)
    a(f"s_lshl_b32 s67, s{sI}, 1")
    a(f"s_add_u32 s67, s67, s{sTH}")
    a(f"s_lshl_b32 s62, s67, 10")
    a(f"s_add_u32 s62, s62, {WS_STATS}")
    a(f"s_lshl_b32 s63, s{sJ}, 11")
    a(f"s_lshl_b32 s58, s{sCH}, 9")
    a(f"s_add_u32 s63, s63, s58")
    a(f"s_add_u32 s63, s63, {WS_CS}")
    a(f"s_add_u32 s64, s63, {F*16}")
    a(f"s_lshl_b32 s66, s{sJ}, 1")
    a(f"s_add_u32 s66, s66, s{sCH}")
    a(f"s_mul_i32 s68, s67, 56")
    a(f"s_add_u32 s68, s68, s66")
    a(f"s_lshl_b32 s68, s68, 11")
    a(f"s_add_u32 s68, s68, {WS_H}")
    a(f"s_add_u32 s69, s68, {56*1024}")
    a(f"s_add_u32 s70, s68, {HTYPE}")
    a(f"s_add_u32 s71, s69, {HTYPE}")
    a(f"s_mul_i32 s58, s66, 37")
    a(f"s_lshr_b32 s58, s58, 8")
    a(f"s_add_u32 s66, s66, s58")
    a(f"s_lshl_b32 s72, s67, 7")
    a(f"s_lshl_b32 s66, s66, 2")
    a(f"s_add_u32 s72, s72, s66")
    a(f"s_add_u32 s72, s72, {WS_F3}")
    a(f"s_add_u32 s65, s72, 4096")
    a(f"s_lshl_b32 s58, s{sA}, 11")
    a(f"s_add_u32 s58, s58, {KVL - 384}")
    a(f"v_lshl_add_u32 v14, v11, 10, v12")
    a(f"v_add_u32 v14, s58, v14")
    a(f"v_mul_u32_u24 v{P}, 288, v10")
    a(f"v_lshlrev_b32 v48, 4, v11")
    a(f"v_sub_u32 v{P}, v{P}, v48")
    a(f"s_lshl_b32 s58, s{sA}, 5")
    a(f"s_sub_u32 s58, {PST + 112}, s58")
    a(f"v_add_u32 v{P}, s58, v{P}")
    a(f"s_cmp_eq_u32 s{sA}, 0")
    a(f"s_cselect_b32 s74, -1, 0")
    a(f"s_mov_b32 s75, 0")
    r = Rec()
    for j in range(11): r(f"ds_read_b32 v{KR+j}, v14 offset:{128*j}")
    for j in range(8): r(f"ds_read_b32 v{VR+j}, v14 offset:{8192 + 384 + 128*j}")
    r(";GAP"); r(";GAP"); r(";GAP")
    r("s_waitcnt vmcnt(0) lgkmcnt(0)")
    for j in range(3): r(f"v_cndmask_b32 v{KR+j}, v{KR+j}, v{HLO+j}, s[74:75]")
    for h in range(2):
        un = lo if h == 0 else hi
        T = P + 28; O = T + 16; R_ = O + 8
        for j in range(11): un(r, T+j, KR+j)
        lo(r, T+11, SHR+2*h); hi(r, T+12, SHR+2*h); lo(r, T+13, SHR+1+2*h); hi(r, T+14, SHR+1+2*h)
        for t in range(8): r(f"v_mul_f32 v{O+t}, v{T+14}, v{T+t}")
        for t in range(8): r(f"v_fmac_f32 v{O+t}, v{T+13}, v{T+1+t}")
        for t in range(8): r(f"v_fmac_f32 v{O+t}, v{T+12}, v{T+2+t}")
        for t in range(8): r(f"v_fmac_f32 v{O+t}, v{T+11}, v{T+3+t}")
        for j in range(8): un(r, T+j, VR+j)
        for t in range(8): r(f"v_mul_f32 v{O+t}, v{O+t}, v{T+t}")
        for p in range(4): r(f"v_cvt_pk_bf16_f32 v{R_+4*h+p}, v{O+7-2*p}, v{O+6-2*p}")
    r(";AFTER2")
    for h in range(2): r(f"ds_write_b128 v{P}, v[{R_+4*h}:{R_+4*h+3}] offset:{144*h}")
    prep_side = r.l
    epoch_hash(a)
    a(f"v_mov_b32 v{vE}, s{sE}")
    stamp(a, 1)
    ACCB = {(0,0): 128, (0,1): 160, (1,0): 192, (1,1): 224}
    CSF = {(0,0): 48, (0,1): 52, (1,0): 56, (1,1): 60}
    MF = [64, 68]
    ST = [72, 76]
    def epilogue(r, half):
        for tt in range(2):
            nrs = ST[tt] + 1
            G = ACCB[(half, 0)] + 16*tt; U = ACCB[(half, 1)] + 16*tt
            for kp in range(2):
                T = 20 + 8*((2*tt + kp) % 2)
                g = lambda e8: G + 8*kp + e8
                u = lambda e8: U + 8*kp + e8
                for e8 in range(10):
                    if e8 < 8: r(f"v_mul_f32 v{T+e8}, v{nrs}, v{g(e8)}")
                    if 1 <= e8 < 9:
                        r(f"v_exp_f32 v{T+e8-1}, v{T+e8-1}")
                        r(f"v_mul_f32 v{g(e8-1)}, v{g(e8-1)}, v{u(e8-1)}")
                    if 2 <= e8:
                        r(f"v_add_f32 v{T+e8-2}, 1.0, v{T+e8-2}")
                for e8 in range(9):
                    if e8 < 8: r(f"v_rcp_f32 v{T+e8}, v{T+e8}")
                    if e8 >= 1:
                        r(f"v_mul_f32 v{g(e8-1)}, v{g(e8-1)}, v{T+e8-1}")
                        if e8 % 2 == 0: r(f"v_cvt_pk_bf16_f32 v{U+8*kp+(e8-2)//2}, v{g(e8-2)}, v{g(e8-1)}")
                r(f";Q{half}{tt}{kp}")
        for tt in range(2):
            U = ACCB[(half, 1)] + 16*tt
            for kp in range(2):
                r(f"buffer_store_dwordx4 v[{U+8*kp}:{U+8*kp+3}], v{vH}, {srd(sWS)}, s{68 + 2*half + tt} offen offset:{1024*kp} sc1")
                r(f";ST{half}{tt}{kp}")
    def opnd_loads():
        for tt in range(2): a(f"buffer_load_dwordx4 v[{ST[tt]}:{ST[tt]+3}], v13, {srd(sWS)}, s62 offen offset:{512*tt} sc1")
        for h in range(2):
            for m in range(2):
                a(f"buffer_load_dwordx4 v[{CSF[(h,m)]}:{CSF[(h,m)]+3}], v13, {srd(sWS)}, s{63+m} offen offset:{1024*h} sc1")
    def fold(half):
        for m in range(2):
            for tt in range(2):
                acc = ACCB[(half, m)] + 16*tt; f = CSF[(half, m)]
                a(f"v_mfma_f32_32x32x16_bf16 v[{acc}:{acc+15}], v[{f}:{f+3}], v[{MF[tt]}:{MF[tt]+3}], v[{acc}:{acc+15}]")
    units = [('F',0),('F',1),('F',2),('A',3),('B',3),('A',4),('A',5),('A',6),('B',4),('B',5),('B',6)]
    FL = {8: 'WB56'}
    NBAR = 7
    mf = []; frags = {}; order = []; started = set()
    for ui, (ty, p) in enumerate(units):
        halves = (0, 1) if ty == 'F' else (0,) if ty == 'A' else (1,)
        for ks in range(4):
            def fx(tt):
                n = ('X', ui, ks, tt)
                if n not in frags:
                    frags[n] = (ui, [f"ds_read_b128 v[{{r0}}:{{r3}}], v{vXa[ks]} offset:{XS(p) + tt*4096}"]); order.append(n)
                return n
            def fw(h, m):
                n = ('W', ui, ks, h, m)
                if n not in frags:
                    o = WOFF(h, p) + m*8192 + ks*2048
                    frags[n] = (ui, [f"ds_read_b64_tr_b16 v[{{r0}}:{{r1}}], v{vWa[h]} offset:{o}",
                                     f"ds_read_b64_tr_b16 v[{{r2}}:{{r3}}], v{vWa[h]} offset:{o + 512}"]); order.append(n)
                return n
            for h in halves:
                for m in range(2):
                    for tt in range(2):
                        w = fw(h, m); x = fx(tt)
                        mf.append((ui, ACCB[(h, m)] + 16*tt, w, x))
    last_use = {}
    for i, (_, _, w, x) in enumerate(mf): last_use[w] = i; last_use[x] = i
    free = [80 + 4*i for i in range(12)]
    reg = {}; read_end = {}
    st = dict(lds=0, done=0, qi=0, unit=-1, since=99, i=-1, gap=0, flagread=None)
    rtime = []; side = []
    def lds_op(text, late=False):
        a(text); st['lds'] += 1; rtime.append(st['i'] + (100 if late else 0)); st['gap'] += 4
    def issue_reads(maxn):
        n = 0
        while st['qi'] < len(order) and n < maxn and free:
            nme = order[st['qi']]; ui, tmpl = frags[nme]
            if ui > st['unit']:
                if ui == 3 and side: return
                if ui in FL and st['flagread'] != ui:
                    lds_op(f"ds_read_b32 v14, v{vCa} offset:{EV[FL[ui]]}")
                    st['flagread'] = ui; st['since'] = 0
                if ui < NBAR or ui in FL:
                    if st['since'] < 3: return
                    a("s_waitcnt lgkmcnt(0)"); st['done'] = st['lds']
                if ui < NBAR: a("s_barrier")
                if ui >= 8: lds_op(f"ds_write_b32 v{vCo}, v{vE} offset:{EV[['A6','B4','B5'][ui-8]]}", True)
                if ui in FL: lwait(a, FL[ui], 14, pre=True)
                st['unit'] = ui
                stamp(a, min(ui + 1, 9), 1) if ui != 4 else None
                on_unit(ui)
            r0 = free.pop(0); reg[nme] = r0
            for t in tmpl:
                lds_op(t.format(r0=r0, r1=r0+1, r2=r0+2, r3=r0+3)); n += 1
            read_end[nme] = st['lds']; st['qi'] += 1; st['since'] = 0
            if st['qi'] == len(order): lds_op(f"ds_write_b32 v{vCo}, v{vE} offset:{EV['B6']}", True)
    def on_unit(ui):
        if ui == 0: stamp(a, 2)
        if ui == 1: side.extend(prep_side)
        if ui == 4: side.extend(f"v_mov_b32 v{r_}, 0" for r_ in (66, 67, 70, 71))
        if ui == opt("opu", 6): opnd_loads()
    issue_reads(12)
    firstB4 = next(i for i, m in enumerate(mf) if m[0] == 8)
    BUD = opt("bud", 24)
    def run_side(budget):
        while side:
            s_ = side[0]
            if s_.startswith(";ST"):
                side.pop(0); vm.add('hA'); continue
            if s_.startswith(";Q"): side.pop(0); continue
            if s_.startswith("buffer_store"): side.pop(0); a(s_); continue
            if s_ == ";GAP": side.pop(0); return
            if s_ == ";AFTER2":
                if st['unit'] < 2: return
                side.pop(0); continue
            c = cost(s_)
            if st['gap'] + c > budget and st['gap'] > 0: return
            side.pop(0)
            if s_.startswith("ds_"): lds_op(s_, True)
            else:
                a(s_); st['gap'] += c
                if "lgkmcnt(0)" in s_: st['done'] = st['lds']
    for i, (ui, acc, w, x) in enumerate(mf):
        while w not in reg or x not in reg:
            st['since'] = 99; st['gap'] = 0; run_side(1000 if ui == 3 else 0); issue_reads(2)
        need = max(read_end[w], read_end[x])
        if need > st['done']:
            old = [k+1 for k, t in enumerate(rtime) if t <= i - 4]
            need = max([need] + old)
            n = st['lds'] - need
            a(f"s_waitcnt lgkmcnt({min(n, 14)})"); st['done'] = st['lds'] - min(n, 14)
        st['i'] = i; st['gap'] = 0
        c = f"v[{acc}:{acc+15}]" if acc in started else "0"; started.add(acc)
        a(f"v_mfma_f32_32x32x16_bf16 v[{acc}:{acc+15}], v[{reg[w]}:{reg[w]+3}], v[{reg[x]}:{reg[x]+3}], {c}")
        st['since'] += 1
        for f in (w, x):
            if last_use[f] == i: free.append(reg[f])
        issue_reads(2)
        if i == firstB4 - 1:
            assert not side
            a("s_mov_b32 s59, 0")
            a.label("L_opnd")
            a("s_waitcnt vmcnt(0)")
            a(f"v_cmp_ne_u32 vcc, s{sE}, v{ST[0]+2}")
            for rg in (ST[1], 48, 52, 56, 60):
                a(f"v_cmp_ne_u32 s[74:75], s{sE}, v{rg+2}")
                a(f"s_or_b64 vcc, vcc, s[74:75]")
            a("s_cbranch_vccz L_opnd_ok")
            a("s_add_u32 s59, s59, 1")
            a("s_cmp_lt_u32 s59, 0x40000")
            a("s_cbranch_scc0 L_opnd_ok")
            a("s_sleep 4")
            opnd_loads()
            a("s_branch L_opnd")
            a.label("L_opnd_ok")
            a(f"v_cmp_gt_u32 vcc, 32, v{vL}")
            for tt in range(2):
                a(f"v_xor_b32 v{ST[tt]}, 0x80000000, v{ST[tt]}")
                a(f"v_cndmask_b32 v{ST[tt]}, 0, v{ST[tt]}, vcc")
                a(f"v_lshrrev_b32 v{MF[tt]+1}, 16, v{ST[tt]}")
                a(f"v_or_b32 v{MF[tt]}, v{MF[tt]+1}, v{ST[tt]}")
                a(f"v_mul_f32 v{ST[tt]+1}, {fh(-1.4426950408889634)}, v{ST[tt]+1}")
            fold(0); fold(1)
            stamp(a, 3)
            r = Rec(); epilogue(r, 0); side.extend(r.l)
        run_side(BUD)
    st['gap'] = 0; run_side(100000)
    stamp(a, 4)
    r = Rec(); epilogue(r, 1)
    for s_ in r.l:
        if s_.startswith(";ST"):
            vm.add('hB'); continue
        if s_.startswith(";Q"):
            if s_ == ";Q1" + ("00", "01", "10", "11")[opt("fa", 3)]:
                vm.wait('hA'); wflag(a, 72, 44, 45); vm.add('fA')
            continue
        a(s_)
    stamp(a, 5)
    a(f"s_setprio {opt('prio2', 0)}")
    g2_setup(a, 0)
    tr_setup(a, 11)
    w2_setup(a)
    a(f"s_lshl_b32 s75, s{sLR}, 7")
    a(f"s_add_u32 s76, s75, {64*896}")
    lwait(a, 'W2A', 8, own=True)
    for b in range(7): pair_reads(a, b, W2BLK[b], 11)
    a("s_waitcnt lgkmcnt(0)")
    stamp(a, 6)
    NB1 = opt("nb1", 2)
    for b in range(NSTG, NSTG + NB1): w2_dma(a, vm, b, 1)
    vm.wait('hB')
    wflag(a, 65, 8, 9); vm.add('fB')
    spoll(a, 64, 7)
    for j in range(HRN): hload(a, vm, j)
    for b in range(NSTG + NB1, 7): w2_dma(a, vm, b, 1)
    stamp(a, 7)
    E0 = 144
    def hook(j):
        if j == HRN: sig(a, 'W2B')
        if j == 15:
            a(f"v_and_b32 v6, 31, v{vL}")
            a(f"v_lshrrev_b32 v7, 5, v{vL}")
            a(f"s_lshl_b32 s68, s{sTT}, 6")
            a(f"v_add_u32 v6, s68, v6")
            a(f"v_lshlrev_b32 v4, 4, v6")
            a(f"s_mov_b32 s71, {WS_STATS}")
            for th in range(2): a(f"buffer_load_dwordx2 v[{E0+2*th}:{E0+1+2*th}], v4, {srd(sWS)}, s71 offen offset:{512*th} sc1")
            a(f"v_mul_u32_u24 v4, 896, v6")
            a(f"v_lshl_add_u32 v4, v7, 4, v4")
            a(f"s_lshl_b32 s71, s{sLR}, 7")
            a(f"s_lshl_b32 s73, s{sA}, 5")
            a(f"s_add_u32 s71, s71, s73")
            a(f"s_add_u32 s72, s71, {32*896}")
            for th in range(2): a(f"buffer_load_dwordx4 v[{E0+4+4*th}:{E0+7+4*th}], v4, {srd(sQ)}, s{71+th} offen")
            vm.add('e', 4)
            a(f"v_and_b32 v5, 0x7f8, v6")
            a(f"v_and_b32 v9, 1, v6")
            a(f"v_lshl_add_u32 v5, v9, 2, v5")
            a(f"v_bfe_u32 v9, v6, 1, 2")
            a(f"v_add_u32 v5, v5, v9")
            a(f"v_lshlrev_b32 v5, 2, v5")
            a(f"v_lshl_add_u32 v5, v7, 15, v5")
            a(f"s_lshl_b32 s73, s{sLR}, 5")
            a(f"s_lshl_b32 s75, s{sA}, 3")
            a(f"s_add_u32 s73, s73, s75")
            a(f"s_lshl_b32 s73, s73, 13")
            a(f"s_add_u32 s73, s73, {WS_Y}")
            a(f"s_lshl_b32 s75, s{sLR}, 9")
            a(f"s_lshr_b32 s76, s{sTT}, 3")
            a(f"s_lshl_b32 s76, s76, 7")
            a(f"s_add_u32 s75, s75, s76")
            a(f"s_lshl_b32 s76, s{sA}, 5")
            a(f"s_add_u32 s75, s75, s76")
            a(f"s_add_u32 s75, s75, {WS_F4}")
    g2_loop(a, vm, 0, hook)
    stamp(a, 8)
    a("s_nop 7")
    lwait(a, 'PRE', 8, own=True)
    g2_partials(a, 0)
    sig(a, 'MP')
    spoll(a, 75, 8)
    Y0 = E0 + 12
    for p in range(4):
        for th in range(2): a(f"buffer_load_dword v{Y0+4*th+p}, v5, {srd(sWS)}, s73 offen offset:{128*th} sc1")
        a(f"s_add_u32 s73, s73, 8192")
    a(f"s_lshl_b32 s76, s{sA}, 14")
    a(f"v_add_u32 v9, s76, v{vH}")
    a(f"v_add_u32 v10, 0x10000, v9")
    lwait(a, 'MP', 8)
    def rd_part(vb, dst):
        for th in range(2):
            for src in range(4):
                r0 = dst + 32*th + 8*src
                a(f"ds_read_b128 v[{r0}:{r0+3}], v{vb} offset:{4096*src + 2048*th}")
                a(f"ds_read_b128 v[{r0+4}:{r0+7}], v{vb} offset:{4096*src + 2048*th + 1024}")
    rd_part(9, 16)
    XB, XN = 176, 192
    a("s_waitcnt vmcnt(8)")
    for th in range(2):
        for p in range(4):
            lo(a, XB+8*th+2*p, E0+4+4*th+p); hi(a, XB+1+8*th+2*p, E0+4+4*th+p)
        for e in range(8):
            a(f"v_sub_f32 v{XN+8*th+e}, v{XB+8*th+e}, v{E0+2*th}")
            a(f"v_mul_f32 v{XN+8*th+e}, v{XN+8*th+e}, v{E0+1+2*th}")
        a(f"v_mul_f32 v{E0+1+2*th}, v{E0+1+2*th}, v{E0+1+2*th}")
    a("s_waitcnt lgkmcnt(0)")
    SM = 208
    for th in range(2):
        b = 16 + 32*th
        for e in range(8):
            a(f"v_add_f32 v{b+e}, v{b+e}, v{b+8+e}")
            a(f"v_add_f32 v{b+16+e}, v{b+16+e}, v{b+24+e}")
        for e in range(8): a(f"v_add_f32 v{SM+8*th+e}, v{b+e}, v{b+16+e}")
    a("s_waitcnt vmcnt(0)")
    for th in range(2):
        for p in range(4):
            lo(a, 224+2*p, Y0+4*th+p); hi(a, 225+2*p, Y0+4*th+p)
        for e in range(8): a(f"v_fmac_f32 v{XB+8*th+e}, v{XN+8*th+e}, v{224+e}")
    stamp(a, 9)
    lwait(a, 'XP', 8)
    rd_part(10, 16)
    for th in range(2):
        b = 16 + 32*th
        a(f"s_waitcnt lgkmcnt({8*(1-th)})")
        for e in range(8):
            a(f"v_add_f32 v{b+e}, v{b+e}, v{b+8+e}")
            a(f"v_add_f32 v{b+16+e}, v{b+16+e}, v{b+24+e}")
        for e in range(8): a(f"v_add_f32 v{b+e}, v{b+e}, v{SM+8*th+e}")
        for e in range(8): a(f"v_add_f32 v{b+e}, v{b+e}, v{b+16+e}")
        for rr in range(4): a(f"v_permlane32_swap_b32 v{b+rr}, v{b+4+rr}")
        for e in range(8): a(f"v_fmac_f32 v{XB+8*th+e}, v{E0+1+2*th}, v{b+e}")
        for p in range(4): a(f"v_cvt_pk_bf16_f32 v{224+4*th+p}, v{XB+8*th+2*p}, v{XB+8*th+1+2*p}")
        a(f"buffer_store_dwordx4 v[{224+4*th}:{227+4*th}], v4, {srd(sO)}, s{71+th} offen")

a = Asm()
stamp(a, 0)
DIL = opt("dil", 0)
if DIL: a("s_memrealtime s[80:81]")
prologue(a)
a(f"s_cmp_lt_u32 s{sSLOT}, 4")
a("s_cbranch_scc1 L_spare")
a(f"s_cmp_lt_u32 s{sWV}, 4")
a("s_cbranch_scc1 L_mwave")
aux(a)
a.label("L_spare")
spare(a)
a("s_branch L_fin")
a.label("L_mwave")
mwave(a)
a.label("L_fin")
if DIL:
    if opt("dilk", -1) >= 0:
        a(f"s_cmp_lg_u32 s2, {opt('dilk', -1)}")
        a("s_cbranch_scc1 L_end")
        a(f"s_cmp_lg_u32 s{sWV}, 0")
        a("s_cbranch_scc1 L_end")
    a.label("L_dil")
    a("s_memrealtime s[82:83]")
    a("s_waitcnt lgkmcnt(0)")
    a("s_sub_u32 s82, s82, s80")
    a(f"s_cmp_lt_u32 s82, {DIL}")
    a("s_cbranch_scc1 L_dil")
stamp_flush(a)
a.label("L_end")
a("s_endpgm")
kn = NAME + "_kernel"
hdr = open("cdna_kernels/%s.s.ref" % NAME).read().split("; Override launch")[0]
out = hdr + f"; @launch grid=(256,1,1) block=(512,1,1) lds={LDS_BYTES}\n"
out += '.amdgcn_target "amdgcn-amd-amdhsa--gfx950"\n.text\n'
out += f".globl {kn}\n.p2align 8\n.type {kn},@function\n{kn}:\n" + a.finalize()
out += f""".section .rodata,"a"
.p2align 6
.amdhsa_kernel {kn}
  .amdhsa_next_free_vgpr 256
  .amdhsa_next_free_sgpr 102
  .amdhsa_accum_offset 256
  .amdhsa_group_segment_fixed_size 0
  .amdhsa_kernarg_size 104
  .amdhsa_user_sgpr_count 2
  .amdhsa_user_sgpr_kernarg_segment_ptr 1
  .amdhsa_system_sgpr_workgroup_id_x 1
  .amdhsa_float_denorm_mode_32 3
.end_amdhsa_kernel
"""
dst = sys.argv[1] if len(sys.argv) > 1 and not sys.argv[1].startswith("--") else "cdna_kernels/%s.s" % NAME
open(dst, "w").write(out)
print("wrote", dst, len(out), "barriers:", out.count("s_barrier"))
```

```python
import sys, struct
from asmdsl import Asm, TRANS

NAME = "parallel_sum__ssm_conv_h3__glu_gated_swiglu__prompt"
S, D, F = 2048, 448, 1792
WS_F1, WS_F2, WS_F3, WS_F4 = 0x1000, 0x3000, 0x4000, 0x6000
WS_STATS = 0x10000
WS_CS    = 0x18000
WS_R     = 0x30000
RP       = 4224
WS_Y     = 0x200000
WS_H     = 0x400000
HTYPE    = 64*56*1024
WS_BYTES = 0x1000000
WS_DBG   = 0xF00000
STAMP = "--stamp" in sys.argv
CLK = "s_memtime" if "--cyc" in sys.argv else "s_memrealtime"
def NT(name, default=0): return " nt" if opt(name, default) else ""
def opt(name, default):
    for x in sys.argv:
        if x.startswith(f"--{name}="): return int(x.split("=")[1])
    return default

sQ, sK, sV, sSH, sSK, sD, sW1, sW3, sW2, sO, sWS = 4, 8, 12, 16, 20, 24, 28, 32, 36, 40, 44
def srd(b): return f"s[{b}:{b+3}]"
SRD_INFO = {
    'q': (sQ, 0, S*D*2), 'w1': (sW1, 56, D*F*2), 'w3': (sW3, 64, D*F*2), 'ws': (sWS, 96, WS_BYTES),
    'k': (sK, 8, S*D*2), 'v': (sV, 16, S*D*2), 'sh': (sSH, 24, D*8),
    'sk': (sSK, 32, D*S*2), 'd': (sD, 40, D*2),
    'w2': (sW2, 72, D*F*2), 'o': (sO, 80, S*D*2),
}
sROT = 3
sA, sI, sJ, sTT = 48, 49, 50, 51
sX, sLQ, sLR, sWV, sSLOT = 52, 53, 54, 55, 56
sE = 78
sA4K = 57
def fh(f): return "0x%08x" % struct.unpack("<I", struct.pack("<f", f))[0]
def lo(a, d, s): a(f"v_lshlrev_b32 v{d}, 16, v{s}")
def hi(a, d, s): a(f"v_and_b32 v{d}, 0xffff0000, v{s}")
NST = 11
SMODE = opt("smode", 0)
def stamp(a, idx, mode=0):
    if STAMP and (mode == SMODE or idx in (0, NST-1)): a(f"{CLK} s[{80+2*idx}:{81+2*idx}]")
def stamp_flush(a):
    if not STAMP: return
    a("s_waitcnt vmcnt(0) lgkmcnt(0)")
    stamp(a, NST-1)
    a(f"s_and_b32 s60, s{sWV}, 3")
    a(f"s_cmp_lg_u32 s60, 0")
    a(f"s_cbranch_scc1 L_end")
    a("s_waitcnt lgkmcnt(0)")
    a(f"s_lshl_b32 s60, s2, 7")
    a(f"s_lshl_b32 s61, s{sWV}, 13")
    a(f"s_add_u32 s60, s60, s61")
    a(f"s_add_u32 s60, s60, {WS_DBG}")
    a("v_mov_b32 v0, 0")
    for i in range(NST):
        a(f"v_mov_b32 v2, s{80+2*i}")
        a(f"v_mov_b32 v3, s{81+2*i}")
        a(f"buffer_store_dwordx2 v[2:3], v0, {srd(sWS)}, s60 offen offset:{8*i}")

UID = [0]
def uid():
    UID[0] += 1; return UID[0]
def poll(a, vaddr, vtmp, soff, n=None, sleep=12):
    n = n or uid()
    a(f"s_mov_b32 s58, 0")
    a.label(f"L_poll{n}")
    a(f"buffer_load_dword v{vtmp}, v{vaddr}, {srd(sWS)}, s{soff} offen sc1")
    a(f"s_waitcnt vmcnt(0)")
    a(f"v_cmp_ne_u32 vcc, s{sE}, v{vtmp}")
    a(f"s_cbranch_vccz L_polled{n}")
    a(f"s_add_u32 s58, s58, 1")
    a(f"s_cmp_lt_u32 s58, 0x40000")
    a(f"s_cbranch_scc0 L_polled{n}")
    a(f"s_sleep {sleep}")
    a(f"s_branch L_poll{n}")
    a.label(f"L_polled{n}")
def poll_issue(a, vaddr, vtmp, soff):
    a(f"buffer_load_dword v{vtmp}, v{vaddr}, {srd(sWS)}, s{soff} offen sc1")
def poll_check(a, vaddr, vtmp, soff):
    n = uid()
    a(f"v_cmp_ne_u32 vcc, s{sE}, v{vtmp}")
    a(f"s_cbranch_vccz L_polled{n}")
    poll(a, vaddr, vtmp, soff, n)
def spoll(a, soff, nw):
    n = uid()
    a(f"s_mov_b32 s58, 0")
    a.label(f"L_sp{n}")
    a(f"s_load_dwordx8 s[8:15], s[{sWS}:{sWS+1}], s{soff} glc")
    a(f"s_waitcnt lgkmcnt(0)")
    if nw == 7: a(f"s_mov_b32 s15, s{sE}")
    for i in range(4): a(f"s_xor_b64 s[{8+2*i}:{9+2*i}], s[{8+2*i}:{9+2*i}], s[{sE}:{sE+1}]")
    a(f"s_or_b64 s[8:9], s[8:9], s[10:11]")
    a(f"s_or_b64 s[12:13], s[12:13], s[14:15]")
    a(f"s_or_b64 s[8:9], s[8:9], s[12:13]")
    a(f"s_cbranch_scc0 L_spd{n}")
    a(f"s_add_u32 s58, s58, 1")
    a(f"s_cmp_lt_u32 s58, 0x40000")
    a(f"s_sleep {opt('ssl', 8)}")
    a(f"s_cbranch_scc1 L_sp{n}")
    a.label(f"L_spd{n}")
def wflag(a, soff, v0, v1):
    a(f"v_mov_b32 v{v0}, 0")
    a(f"v_mov_b32 v{v1}, s{sE}")
    a(f"s_mov_b64 exec, 1")
    a(f"buffer_store_dword v{v1}, v{v0}, {srd(sWS)}, s{soff} offen sc1")
    a(f"s_mov_b64 exec, -1")

SLOTBLK = {0: (0, 1, 2), 1: (7, 8, 9), 2: (4, 5, 6)}
def XS(p): return SLOTBLK[p % 3][0] * 16384
def WS_(half, p): return SLOTBLK[p % 3][1 + half] * 16384
CVL = 114688
CB = 18176
HA, HB, U0, U1 = 256, 4736, 8960, 13536
CNT = CVL + 2*CB
EV = {n: 16*i for i, n in enumerate(['F6','W2M','PRE','CV0','CV1','CV2','CV3','MP','XP','F1'])}
LDS_BYTES = 163840
W2BLK = [6, 0, 1, 2, 3, 4, 5]
KVL = 3*16384
PST = 3*16384
vL, vH, vCo, vCa, vE = 1, 2, 3, 0, 15
def sig(a, ev):
    a(f"ds_write_b32 v{vCo}, v{vE} offset:{EV[ev]}")
def lread(a, ev, vtmp, own=False):
    a(f"ds_read_b32 v{vtmp}, v{vCo if own else vCa} offset:{EV[ev]}")
def lwait(a, ev, vtmp, own=False, pre=False):
    n = uid()
    if pre:
        a(f"v_cmp_ne_u32 vcc, s{sE}, v{vtmp}")
        a(f"s_cbranch_vccz L_lwd{n}")
    a(f"s_mov_b32 s58, 0")
    a.label(f"L_lw{n}")
    lread(a, ev, vtmp, own)
    a(f"s_waitcnt lgkmcnt(0)")
    a(f"v_cmp_ne_u32 vcc, s{sE}, v{vtmp}")
    a(f"s_cbranch_vccz L_lwd{n}")
    a(f"s_add_u32 s58, s58, 1")
    a(f"s_cmp_lt_u32 s58, 0x400000")
    a(f"s_cbranch_scc0 L_lwd{n}")
    a(f"s_sleep 1")
    a(f"s_branch L_lw{n}")
    a.label(f"L_lwd{n}")
def flag_setup(a):
    a(f"v_lshlrev_b32 v{vH}, 4, v{vL}")
    a(f"s_lshl_b32 s58, s{sA}, 2")
    a(f"s_add_u32 s58, s58, {CNT}")
    a(f"v_mov_b32 v{vCo}, s58")
    a(f"v_and_b32 v{vCa}, 3, v{vL}")
    a(f"v_lshlrev_b32 v{vCa}, 2, v{vCa}")
    a(f"v_add_u32 v{vCa}, {CNT}, v{vCa}")

class Rec:
    def __init__(self): self.l = []
    def __call__(self, t): self.l += [x for x in t.split('\n') if x.strip()]
class VM:
    def __init__(self, a): self.a = a; self.q = []
    def add(self, tag, n=1): self.q += [tag]*n
    def wait(self, *tags):
        idx = max(i for i, t in enumerate(self.q) if t in tags)
        n = len(self.q) - 1 - idx
        assert n <= 63, n
        self.a(f"s_waitcnt vmcnt({n})")
    def drain(self): self.a("s_waitcnt vmcnt(0)")

def prologue(a):
    a(f"s_cmp_ge_u32 s2, 256")
    a(f"s_cbranch_scc1 L_end")
    for n, (r, off, sz) in SRD_INFO.items():
        a(f"s_load_dwordx2 s[{r}:{r+1}], s[0:1], {off}")
    a(f"v_lshrrev_b32 v1, 6, v0")
    a(f"s_and_b32 s{sX}, s2, 7")
    a(f"v_readfirstlane_b32 s{sWV}, v1")
    a(f"s_lshr_b32 s{sSLOT}, s2, 3")
    for n, (r, off, sz) in SRD_INFO.items():
        a(f"s_mov_b32 s{r+2}, {sz}")
        a(f"s_mov_b32 s{r+3}, 0x20000")
    a(f"s_sub_u32 s{sLR}, s{sSLOT}, 4")
    a(f"s_mul_i32 s{sLQ}, s{sLR}, 37")
    a(f"s_lshr_b32 s{sLQ}, s{sLQ}, 8")
    a(f"s_mul_i32 s58, s{sLQ}, 7")
    a(f"s_sub_u32 s{sLR}, s{sLR}, s58")
    a(f"s_and_b32 s{sA}, s{sWV}, 3")
    a(f"s_lshr_b32 s{sI}, s{sX}, 1")
    a(f"s_lshl_b32 s{sI}, s{sI}, 2")
    a(f"s_add_u32 s{sI}, s{sI}, s{sLQ}")
    a(f"s_and_b32 s{sJ}, s{sX}, 1")
    a(f"s_mul_i32 s{sJ}, s{sJ}, 7")
    a(f"s_add_u32 s{sJ}, s{sJ}, s{sLR}")
    a(f"s_lshl_b32 s{sTT}, s{sX}, 2")
    a(f"s_add_u32 s{sTT}, s{sTT}, s{sLQ}")
    a(f"v_and_b32 v1, 63, v0")
    a(f"s_lshl_b32 s{sA4K}, s{sA}, 12")
def rot_setup(a):
    a(f"s_lshl_b32 s3, s{sLQ}, 1")
    a(f"s_add_u32 s3, s3, s{sLR}")
    a(f"s_cmp_ge_u32 s3, 7")
    a(f"s_cselect_b32 s58, 7, 0")
    a(f"s_sub_u32 s3, s3, s58")
    if opt("rot2", 1) == 0: a("s_mov_b32 s3, 0")
def kernarg_wait(a):
    a(f"s_waitcnt lgkmcnt(0)")
    a(f"s_load_dword s{sE}, s[{sWS}:{sWS+1}], 0")
def epoch_hash(a):
    a(f"s_waitcnt lgkmcnt(0)")
    a(f"s_mul_i32 s77, s{sE}, 0x9E3779B1")
    a(f"s_add_u32 s77, s77, 0x7F4A7C15")
    a(f"s_lshr_b32 s{sE}, s77, 15")
    a(f"s_xor_b32 s{sE}, s{sE}, s77")
    a(f"s_and_b32 s{sE}, s{sE}, 0xBFFFBFFF")
    a(f"s_mov_b32 s{sE+1}, s{sE}")
def round_bf16(a, v):
    a(f"v_cvt_pk_bf16_f32 v{v}, v{v}, v{v}")
    a(f"v_lshlrev_b32 v{v}, 16, v{v}")

def spare(a):
    a(f"s_lshl_b32 s60, s{sX}, 2")
    a(f"s_add_u32 s60, s60, s{sSLOT}")
    a("v_lshrrev_b32 v2, 3, v0")
    a("v_and_b32 v3, 7, v0")
    a("v_mul_u32_u24 v4, 896, v2")
    a("v_lshl_add_u32 v4, v3, 4, v4")
    a(f"s_mul_i32 s61, s60, {64*896}")
    kernarg_wait(a)
    for n in range(7): a(f"buffer_load_dwordx4 v[{8+4*n}:{11+4*n}], v4, {srd(sQ)}, s61 offen offset:{128*n}")
    a(f"s_lshr_b32 s62, s{sX}, 1")
    a(f"s_lshl_b32 s62, s62, 2")
    a(f"s_add_u32 s62, s62, s{sSLOT}")
    a(f"s_min_u32 s62, s62, 13")
    a(f"s_cmp_ge_u32 s62, 7")
    a(f"s_cselect_b32 s64, s{sW3}, s{sW1}")
    a(f"s_cselect_b32 s65, s{sW3+1}, s{sW1+1}")
    a(f"s_cselect_b32 s63, 7, 0")
    a(f"s_cselect_b32 s68, {F*16}, 0")
    a(f"s_mov_b32 s66, {D*F*2}")
    a(f"s_mov_b32 s67, 0x20000")
    a(f"s_sub_u32 s63, s62, s63")
    a(f"s_and_b32 s69, s{sX}, 1")
    a(f"s_mul_i32 s69, s69, 7")
    a(f"s_add_u32 s63, s63, s69")
    a("v_lshrrev_b32 v6, 4, v1")
    a("v_and_b32 v5, 15, v1")
    a(f"v_mul_u32_u24 v7, 3584, v6")
    a("v_lshl_add_u32 v7, v5, 4, v7")
    a(f"s_mul_i32 s69, s{sWV}, {56*3584}")
    a(f"s_lshl_b32 s70, s63, 8")
    a(f"s_add_u32 s69, s69, s70")
    for n in range(14):
        a(f"buffer_load_dwordx4 v[{64+4*n}:{67+4*n}], v7, s[64:67], s69 offen")
        a(f"s_add_u32 s69, s69, {4*3584}")
    a("v_lshrrev_b32 v44, 1, v5")
    a("v_and_b32 v45, 1, v5")
    a("v_lshlrev_b32 v45, 4, v45")
    a("v_mov_b32 v46, 0x3f80")
    a("v_lshlrev_b32 v46, v45, v46")
    for dw in range(4):
        a(f"v_cmp_eq_u32 vcc, {dw}, v44")
        a(f"v_cndmask_b32 v{48+dw}, 0, v46, vcc")
    epoch_hash(a)
    a("v_mov_b32 v40, 0\nv_mov_b32 v41, 0\nv_mov_b32 v42, 0\nv_mov_b32 v43, 0")
    a("s_mov_b32 s70, 0x3f803f80")
    a("s_waitcnt vmcnt(14)")
    stamp(a, 2, SMODE)
    for n in range(28):
        a(f"v_dot2_f32_bf16 v{40+2*(n%2)}, v{8+n}, s70, v{40+2*(n%2)}")
        a(f"v_dot2_f32_bf16 v{41+2*(n%2)}, v{8+n}, v{8+n}, v{41+2*(n%2)}")
    a("v_add_f32 v40, v40, v42")
    a("v_add_f32 v41, v41, v43")
    for m in ("quad_perm:[1,0,3,2]", "quad_perm:[2,3,0,1]", "row_half_mirror"):
        a(f"v_add_f32_dpp v40, v40, v40 {m} row_mask:0xf bank_mask:0xf")
        a(f"v_add_f32_dpp v41, v41, v41 {m} row_mask:0xf bank_mask:0xf")
    a(f"v_mul_f32 v40, {fh(1.0/448)}, v40")
    a(f"v_mul_f32 v41, {fh(1.0/448)}, v41")
    a("v_fma_f32 v41, -v40, v40, v41")
    a("v_max_f32 v41, 0, v41")
    round_bf16(a, 40)
    round_bf16(a, 41)
    a(f"v_add_f32 v41, {fh(1e-5)}, v41")
    round_bf16(a, 41)
    a("v_sqrt_f32 v41, v41")
    round_bf16(a, 41)
    a("v_rcp_f32 v41, v41")
    a(f"v_mov_b32 v42, s{sE}")
    a(f"v_mov_b32 v43, 0")
    a("v_lshlrev_b32 v4, 4, v2")
    a(f"s_lshl_b32 s61, s60, 10")
    a(f"s_add_u32 s61, s61, {WS_STATS}")
    a("v_cmp_eq_u32 vcc, 0, v3")
    a("s_and_saveexec_b64 s[72:73], vcc")
    a(f"buffer_store_dwordx4 v[40:43], v4, {srd(sWS)}, s61 offen sc1")
    a("s_mov_b64 exec, s[72:73]")
    for n in range(14):
        a(f"s_waitcnt vmcnt({14-n})")
        c = "0" if n == 0 else "v[52:55]"
        a(f"v_mfma_f32_16x16x32_bf16 v[52:55], v[48:51], v[{64+4*n}:{67+4*n}], {c}")
    stamp(a, 4, SMODE)
    a("v_lshlrev_b32 v4, 5, v5")
    a("v_lshl_add_u32 v4, v6, 4, v4")
    a(f"s_lshl_b32 s61, s{sWV}, 9")
    a("v_add_u32 v4, s61, v4")
    a("v_cmp_gt_u32 vcc, 2, v6")
    a("s_and_saveexec_b64 s[72:73], vcc")
    a("ds_write_b128 v4, v[52:55]")
    a("s_mov_b64 exec, s[72:73]")
    a("s_waitcnt lgkmcnt(0)")
    a("s_barrier")
    stamp(a, 5, SMODE)
    a(f"s_cmp_ge_u32 s{sWV}, 2")
    a("s_cbranch_scc1 L_fin")
    a("v_lshlrev_b32 v4, 2, v0")
    for p in range(8): a(f"ds_read_b32 v{64+p}, v4 offset:{512*p}")
    a("s_waitcnt lgkmcnt(0)")
    for st in (4, 2, 1):
        for p in range(st): a(f"v_add_f32 v{64+p}, v{64+p}, v{64+p+st}")
    a(f"v_and_b32 v70, 0xffff0000, v64")
    a(f"v_sub_f32 v64, v64, v70")
    a(f"v_and_b32 v72, 0xffff0000, v64")
    a(f"v_sub_f32 v64, v64, v72")
    a(f"v_lshrrev_b32 v70, 16, v70")
    a(f"v_or_b32 v40, v70, v72")
    a(f"v_lshrrev_b32 v41, 16, v64")
    a(f"s_lshl_b32 s61, s63, 11")
    a(f"s_add_u32 s61, s61, s68")
    a(f"s_add_u32 s61, s61, {WS_CS}")
    a(f"v_lshlrev_b32 v4, 4, v0")
    a(f"buffer_store_dwordx4 v[40:43], v4, {srd(sWS)}, s61 offen sc1")
    stamp(a, 6, SMODE)
    a(f"s_cmp_lg_u32 s{sWV}, 0")
    a("s_cbranch_scc1 L_fin")
    a(f"s_lshl_b32 s61, s60, 2")
    a(f"s_add_u32 s61, s61, {WS_F2}")
    wflag(a, 61, 2, 3)
    a(f"s_cmp_lg_u32 s60, 0")
    a(f"s_cbranch_scc1 L_fin")
    a(f"v_and_b32 v4, 31, v0")
    a(f"v_lshlrev_b32 v4, 2, v4")
    a(f"s_mov_b32 s61, {WS_F2}")
    poll(a, 4, 5, 61, sleep=8)
    a(f"s_mov_b32 s61, {WS_F1}")
    a.label("L_sp_ep")
    poll(a, 4, 5, 61, sleep=8)
    a(f"s_add_u32 s61, s61, 512")
    a(f"s_cmp_lt_u32 s61, {WS_F1 + 7*512}")
    a(f"s_cbranch_scc1 L_sp_ep")
    a(f"v_mov_b32 v2, 0")
    a(f"v_mov_b32 v3, s77")
    a(f"s_mov_b64 exec, 1")
    a(f"buffer_store_dword v3, v2, {srd(sWS)}, 0 offen sc1")
    a(f"s_mov_b64 exec, -1")

def w2_setup(a):
    a(f"v_lshrrev_b32 v8, 3, v{vL}")
    a(f"v_and_b32 v9, 7, v{vL}")
    a(f"v_bfe_u32 v10, v{vL}, 4, 1")
    a(f"v_lshlrev_b32 v10, 2, v10")
    a(f"v_xor_b32 v9, v9, v10")
    a(f"v_mul_u32_u24 v8, 896, v8")
    a(f"v_lshl_add_u32 v4, v9, 4, v8")
    for i in range(1, 4): a(f"v_add_u32 v{4+i}, {i*(8*896 - 1024)}, v4")
def rot_pair(a, b):
    a(f"s_add_u32 s58, s{sROT}, {b}")
    a(f"s_cmp_ge_u32 s58, 7")
    a(f"s_cselect_b32 s59, 7, 0")
    a(f"s_sub_u32 s58, s58, s59")
    a(f"s_mul_i32 s59, s{sA}, 7")
    a(f"s_add_u32 s58, s58, s59")
def w2_dma(a, vm, b, typ, blk=None):
    if blk is None: blk = W2BLK[b]
    rot_pair(a, b)
    a(f"s_lshr_b32 s59, s58, 1")
    a(f"s_mul_i32 s59, s59, {128*896}")
    a(f"s_and_b32 s58, s58, 1")
    a(f"s_mul_i32 s58, s58, {32*896}")
    a(f"s_add_u32 s58, s58, s59")
    a(f"s_add_u32 m0, s{sA4K}, {blk*16384}")
    a(f"s_add_u32 s58, s58, s{75+typ}")
    for i in range(4): a(f"buffer_load_dwordx4 v{4+i}, {srd(sW2)}, s58 offen offset:{1024*i} lds")
    vm.add(f'w2_{typ}_{b}', 4)
def tr_setup(a, V):
    a(f"v_bfe_u32 v8, v{vL}, 2, 2")
    a(f"v_lshrrev_b32 v9, 5, v{vL}")
    a(f"v_lshl_add_u32 v10, v9, 2, v8")
    a(f"v_lshlrev_b32 v10, 7, v10")
    a(f"v_bfe_u32 v9, v{vL}, 4, 1")
    a(f"v_lshl_add_u32 v10, v9, 5, v10")
    a(f"v_and_b32 v9, 3, v{vL}")
    a(f"v_lshl_add_u32 v10, v9, 3, v10")
    a(f"v_add_u32 v10, s{sA4K}, v10")
    a(f"v_lshrrev_b32 v8, 1, v8")
    a(f"v_lshl_add_u32 v{V}, v8, 6, v10")
    a(f"v_xor_b32 v8, 1, v8")
    a(f"v_lshl_add_u32 v{V+1}, v8, 6, v10")
    a(f"v_add_u32 v{V+2}, 0x10000, v{V}")
    a(f"v_add_u32 v{V+3}, 0x10000, v{V+1}")
def pair_reads(a, b, blk, V, WR=144):
    for k2 in range(2):
        for ct in range(2):
            for z in range(2):
                base = (V if blk < 4 else V+2) + ct
                o = (blk % 4)*16384 + k2*2048 + z*1024
                f = WR + 8*(2*b + k2) + 4*ct + 2*z
                a(f"ds_read_b64_tr_b16 v[{f}:{f+1}], v{base} offset:{o}")
def stage_read(a, vm, b, blk, V, wait=True):
    vm.wait(f'w2_1_{b}')
    pair_reads(a, b, blk, V)
    if wait: a("s_waitcnt lgkmcnt(0)")

WR, HRN = 144, 16
HRB = {1: 16, 0: 48}
def ACR(role, ct, tt): return (80 + 32*ct + 16*tt) if role == 1 else ((112, 16)[ct] + 16*tt)
def g2_setup(a, role):
    a(f"s_mul_i32 s62, s{sTT}, {112*1024}")
    a(f"s_add_u32 s62, s62, {WS_H + role*HTYPE}")
    a(f"s_lshl_b32 s64, s{sTT}, 7")
    a(f"s_lshl_b32 s58, s{sA}, 5")
    a(f"s_add_u32 s64, s64, s58")
    a(f"s_add_u32 s64, s64, {WS_F3 + role*4096}")
def hload(a, vm, j, role):
    k, tt = j // 2, j % 2
    rg = HRB[role] + 4*(j % HRN)
    if j % 4 == 0:
        rot_pair(a, k // 2)
        a(f"s_lshl_b32 s63, s58, 11")
        a(f"s_add_u32 s63, s63, s62")
        a(f"s_add_u32 s61, s63, {56*1024}")
    so = 63 if tt == 0 else 61
    a(f"buffer_load_dwordx4 v[{rg}:{rg+3}], v{vH}, {srd(sWS)}, s{so} offen offset:{1024*(k%2)} sc1")
    vm.add(f'h{j}')
def g2_loop(a, vm, role, hook=None):
    for k in range(14):
        for tt in range(2):
            j = 2*k + tt
            vm.wait(f'h{j}')
            rg = HRB[role] + 4*(j % HRN)
            for ct in range(2):
                acc = ACR(role, ct, tt)
                c = "0" if k == 0 else f"v[{acc}:{acc+15}]"
                f = WR + 8*k + 4*ct
                a(f"v_mfma_f32_32x32x16_bf16 v[{acc}:{acc+15}], v[{f}:{f+3}], v[{rg}:{rg+3}], {c}")
            if j >= 1 and j - 1 + HRN < 28: hload(a, vm, j - 1 + HRN, role)
            if hook: hook(j)
def g2_partials(a, role, wrole):
    a(f"v_add_u32 v9, s{sA4K}, v{vH}")
    if role == 1: a(f"v_add_u32 v9, 0x10000, v9")
    for th in range(2):
        for kq in range(4):
            base = ACR(wrole, kq >> 1, th) + 8*(kq & 1)
            o = kq*16384 + th*2048
            a(f"ds_write_b128 v9, v[{base}:{base+3}] offset:{o}")
            a(f"ds_write_b128 v9, v[{base+4}:{base+7}] offset:{o + 1024}")

def conv_scalar(a):
    a(f"s_mul_i32 s74, s{sX}, 28")
    a(f"s_add_u32 s74, s74, s{sSLOT}")
    a(f"s_sub_u32 s74, s74, 4")
    a(f"s_and_b32 s65, s{sA}, 1")
    a(f"s_lshr_b32 s66, s{sA}, 1")
    a(f"s_lshl_b32 s67, s74, 1")
    a(f"s_add_u32 s67, s67, s65")
    a(f"s_mul_i32 s71, s65, {CB}")
    a(f"s_add_u32 s71, s71, {CVL}")

def aux(a):
    vm = VM(a)
    sXo, sWo, sMw = 60, 61, 64
    vX = [16, 17, 18, 19]; vW = [20, 21, 22, 23]
    a(f"s_mul_i32 s{sXo}, s{sI}, {128*896}")
    a(f"s_mul_i32 s58, s{sA}, {32*896}")
    a(f"s_add_u32 s{sXo}, s{sXo}, s58")
    a(f"s_lshl_b32 s{sWo}, s{sJ}, 8")
    a(f"s_and_b32 s58, s{sA}, 1")
    a(f"s_mul_i32 s58, s58, {32*3584}")
    a(f"s_add_u32 s{sWo}, s{sWo}, s58")
    a(f"v_lshrrev_b32 v6, 3, v{vL}")
    a(f"v_and_b32 v7, 7, v{vL}")
    a(f"v_lshrrev_b32 v8, 4, v{vL}")
    a(f"v_xor_b32 v9, v7, v8")
    a(f"v_mul_u32_u24 v10, 896, v6")
    a(f"v_lshl_add_u32 v{vX[0]}, v9, 4, v10")
    a(f"v_xor_b32 v9, 4, v9")
    a(f"v_lshl_add_u32 v{vX[1]}, v9, 4, v10")
    a(f"v_add_u32 v{vX[1]}, {8*896-1024}, v{vX[1]}")
    a(f"v_add_u32 v{vX[2]}, {16*896-2048}, v{vX[0]}")
    a(f"v_add_u32 v{vX[3]}, {16*896-2048}, v{vX[1]}")
    a(f"v_and_b32 v9, 1, v8")
    a(f"v_lshlrev_b32 v9, 2, v9")
    a(f"v_xor_b32 v9, v7, v9")
    a(f"v_mul_u32_u24 v11, 3584, v6")
    a(f"v_lshl_add_u32 v{vW[0]}, v9, 4, v11")
    for i in range(1, 4): a(f"v_add_u32 v{vW[i]}, {i*(8*3584-1024)}, v{vW[0]}")
    kernarg_wait(a)
    a(f"s_cmp_ge_u32 s{sA}, 2")
    a(f"s_cselect_b32 s{sW1}, s{sW3}, s{sW1}")
    a(f"s_cselect_b32 s{sW1+1}, s{sW3+1}, s{sW1+1}")
    def dmaX(p):
        a(f"s_add_u32 m0, s{sA4K}, {XS(p)}")
        a(f"s_add_u32 s58, s{sXo}, {128*p}")
        for i in range(4): a(f"buffer_load_dwordx4 v{vX[i]}, {srd(sQ)}, s58 offen offset:{1024*i} lds")
        vm.add(f'X{p}', 4)
    def dmaW(p, half):
        a(f"s_add_u32 m0, s{sA4K}, {WS_(half, p)}")
        a(f"s_add_u32 s58, s{sWo}, {64*3584*p + 128*half}")
        for i in range(4): a(f"buffer_load_dwordx4 v{vW[i]}, {srd(sW1)}, s58 offen offset:{1024*i} lds")
        vm.add(f"W{'AB'[half]}{p}", 4)
    dmaX(0); dmaW(0, 0); dmaW(0, 1)
    P = 64
    a(f"v_lshl_add_u32 v{P}, v7, 4, v10")
    a(f"v_add_u32 v{P+1}, {8*896-1024}, v{P}")
    a(f"s_mul_i32 s65, s{sTT}, {64*896}")
    a(f"s_lshl_b32 s75, s{sLR}, 7")
    a(f"s_add_u32 s76, s75, {64*896}")
    a(f"s_add_u32 s65, s65, s75")
    a(f"s_mul_i32 s58, s{sA}, {16*896}")
    a(f"s_add_u32 s65, s65, s58")
    a(f"s_lshl_b32 s{sMw}, s{sA}, 11")
    a(f"s_add_u32 m0, s{sMw}, {KVL}")
    for i in range(2): a(f"buffer_load_dwordx4 v{P+i}, {srd(sK)}, s65 offen offset:{1024*i} lds")
    a(f"s_add_u32 m0, s{sMw}, {KVL + 8192}")
    for i in range(2): a(f"buffer_load_dwordx4 v{P+i}, {srd(sV)}, s65 offen offset:{1024*i} lds")
    vm.add('kv', 4)
    dmaX(1)
    epoch_hash(a)
    a(f"v_mov_b32 v{vE}, s{sE}")
    stamp(a, 1)
    vm.wait('WB0'); a("s_barrier")
    stamp(a, 2)
    dmaW(1, 0); dmaW(1, 1)
    a(f"s_lshl_b32 s58, s{sA}, 9")
    a(f"s_add_u32 s58, s58, {KVL + 8192 + 3*2048}")
    a(f"v_lshrrev_b32 v{P+3}, 1, v7")
    a(f"v_lshlrev_b32 v{P+3}, 11, v{P+3}")
    a(f"v_lshlrev_b32 v{P+2}, 5, v6")
    a(f"v_sub_u32 v{P+2}, v{P+2}, v{P+3}")
    a(f"v_and_b32 v{P+3}, 1, v7")
    a(f"v_lshl_add_u32 v{P+2}, v{P+3}, 4, v{P+2}")
    a(f"v_add_u32 v{P+2}, s58, v{P+2}")
    a(f"v_mul_u32_u24 v{P+4}, {RP}, v6")
    a(f"v_lshl_add_u32 v{P+4}, v7, 4, v{P+4}")
    a(f"s_lshl_b32 s72, s{sLR}, 2")
    a(f"s_add_u32 s72, s72, s{sA}")
    a(f"s_mul_i32 s62, s72, {16*RP}")
    a(f"s_lshl_b32 s63, s{sTT}, 7")
    a(f"s_sub_u32 s62, s62, s63")
    a(f"s_add_u32 s62, s62, {WS_R + 1984*2}")
    a(f"s_add_u32 s63, s62, {8*RP}")
    a(f"s_lshl_b32 s{sMw}, s72, 7")
    a(f"s_lshl_b32 s58, s{sTT}, 2")
    a(f"s_add_u32 s{sMw}, s{sMw}, s58")
    a(f"s_add_u32 s{sMw}, s{sMw}, {WS_F1}")
    rot_setup(a)
    flag_setup(a)
    a(f"v_mov_b32 v{P+5}, v7")
    w2_setup(a)
    tr_setup(a, 40)
    conv_scalar(a)
    a(f"s_lshr_b32 s68, s74, 3")
    a(f"s_lshl_b32 s68, s68, 7")
    a(f"s_add_u32 s68, s68, {WS_F1}")
    a(f"v_and_b32 v33, 31, v{vL}")
    a(f"v_lshlrev_b32 v33, 2, v33")
    a(f"s_lshl_b32 s69, s67, 12")
    a(f"s_lshl_b32 s58, s66, 2")
    a(f"s_add_u32 s69, s69, s58")
    a(f"s_mul_i32 s70, s67, {RP}")
    a(f"s_add_u32 s70, s70, {WS_R + 2}")
    a(f"s_lshl_b32 s58, s66, 1")
    a(f"s_sub_u32 s70, s70, s58")
    a(f"s_mul_i32 s72, s66, {HB - HA}")
    a(f"s_add_u32 s72, s72, s71")
    a(f"s_add_u32 s72, s72, {HA}")
    a(f"s_mul_i32 s73, s66, {U1 - U0}")
    a(f"s_add_u32 s73, s73, s71")
    a(f"s_add_u32 s73, s73, {U0}")
    for i in range(4): a(f"v_mov_b32 v{28+i}, 0")
    a(f"s_sub_u32 s58, s72, 256")
    a(f"v_add_u32 v27, s58, v{vH}")
    a(f"s_add_u32 s58, s73, {4096 - 256}")
    a(f"v_add_u32 v32, s58, v{vH}")
    a(f"v_cmp_gt_u32 vcc, 16, v{vL}")
    a(f"v_cndmask_b32 v27, v32, v27, vcc")
    dmaX(2); dmaW(2, 0)
    vm.wait('WB1'); a("s_barrier")
    dmaW(2, 1); dmaX(3); dmaW(3, 0); dmaW(3, 1)
    vm.wait('WB2'); a("s_barrier")
    for i in range(2): a(f"ds_read_b128 v[{P+8+4*i}:{P+11+4*i}], v{P+2} offset:{256*i}")
    a("s_waitcnt lgkmcnt(0)")
    for i in range(2): a(f"buffer_store_dwordx4 v[{P+8+4*i}:{P+11+4*i}], v{P+4}, {srd(sWS)}, s{62+i} offen sc1")
    vm.add('R', 2)
    a(f"s_cmp_lg_u32 s{sTT}, 0")
    a("s_cbranch_scc1 L_nopad")
    a(f"v_cmp_eq_u32 vcc, 7, v{P+5}")
    a("s_and_saveexec_b64 s[58:59], vcc")
    a(f"buffer_store_dwordx4 v[28:31], v{P+4}, {srd(sWS)}, s62 offen offset:16 sc1")
    a(f"buffer_store_dwordx4 v[28:31], v{P+4}, {srd(sWS)}, s63 offen offset:16 sc1")
    a("s_mov_b64 exec, s[58:59]")
    a.label("L_nopad")
    dmaX(4); dmaW(4, 0); dmaW(4, 1)
    vm.wait('WB3'); a("s_barrier")
    vm.wait('R')
    wflag(a, sMw, 24, 25); vm.add('f1')
    a(f"v_mov_b32 v24, 0")
    a(f"s_lshl_b32 s58, s67, 1")
    a(f"buffer_load_ushort v25, v24, {srd(sD)}, s58 offen")
    a(f"s_lshl_b32 s58, s67, 12")
    a(f"buffer_load_dword v26, v24, {srd(sSK)}, s58 offen")
    vm.add('dh', 2)
    dmaX(5); dmaW(5, 0)
    vm.wait('WB4'); a("s_barrier")
    a(f"s_lshl_b32 s58, s{sJ}, 11")
    a(f"s_and_b32 s59, s{sA}, 1")
    a(f"s_lshl_b32 s59, s59, 10")
    a(f"s_add_u32 s58, s58, s59")
    a(f"s_lshr_b32 s59, s{sA}, 1")
    a(f"s_mul_i32 s59, s59, {F*16}")
    a(f"s_add_u32 s58, s58, s59")
    a(f"s_add_u32 s58, s58, {WS_CS}")
    a(f"s_lshl_b32 s59, s{sA}, 10")
    a(f"s_add_u32 m0, s59, {KVL}")
    a(f"buffer_load_dwordx4 v{vH}, {srd(sWS)}, s58 offen sc1 lds")
    a(f"s_lshl_b32 s58, s{sI}, 11")
    a(f"s_and_b32 s59, s{sA}, 1")
    a(f"s_lshl_b32 s59, s59, 10")
    a(f"s_add_u32 s58, s58, s59")
    a(f"s_add_u32 s58, s58, {WS_STATS}")
    a(f"s_add_u32 m0, s59, {KVL + 4096}")
    a(f"buffer_load_dwordx4 v{vH}, {srd(sWS)}, s58 offen sc1 lds")
    vm.add('op', 2)
    dmaW(5, 1); dmaX(6); dmaW(6, 0)
    vm.wait('WB5'); a("s_barrier")
    stamp(a, 3); stamp(a, 1, 2)
    dmaW(6, 1)
    a(f"s_mov_b32 m0, s72")
    for n in range(4): a(f"buffer_load_dwordx4 v{vH}, {srd(sSK)}, s69 offen offset:{1024*n} lds")
    vm.add('cvh', 4)
    poll_issue(a, 33, 35, 68); vm.add('p1')
    vm.wait('p1')
    poll_check(a, 33, 35, 68)
    a(f"s_mov_b32 m0, s73")
    for n in range(4): a(f"buffer_load_dwordx4 v{vH}, {srd(sWS)}, s70 offen offset:{1024*n} sc1 lds")
    vm.add('cvu', 4)
    a(f"v_cmp_gt_u32 vcc, 44, v{vL}")
    a(f"s_and_saveexec_b64 s[58:59], vcc")
    a(f"ds_write_b128 v27, v[28:31]")
    a(f"s_mov_b64 exec, s[58:59]")
    a(f"s_lshl_b32 s58, s66, 2")
    a(f"s_sub_u32 s58, s72, s58")
    a(f"s_sub_u32 s58, s58, 192")
    a(f"v_mov_b32 v27, s58")
    vm.wait('WB6')
    a(f"ds_write_b32 v27, v25")
    a(f"s_cmp_eq_u32 s66, 0")
    a(f"s_cbranch_scc1 L_cv_nofix")
    a(f"ds_write_b32 v27, v26 offset:192")
    a.label("L_cv_nofix")
    a("s_barrier")
    stamp(a, 2, 2)
    w2_dma(a, vm, 0, 1, 3); w2_dma(a, vm, 1, 1, 4); w2_dma(a, vm, 2, 1, 5); w2_dma(a, vm, 3, 1, 6)
    stamp(a, 3, 2)
    stage_read(a, vm, 0, 3, 40); w2_dma(a, vm, 4, 1, 3)
    stage_read(a, vm, 1, 4, 40); sig(a, 'CV0'); w2_dma(a, vm, 5, 1, 4)
    stamp(a, 4); stamp(a, 4, 2)
    stage_read(a, vm, 2, 5, 40); w2_dma(a, vm, 6, 1, 5)
    stage_read(a, vm, 3, 6, 40); w2_dma(a, vm, 0, 0)
    lwait(a, 'F6', 34)
    w2_dma(a, vm, 1, 0)
    stage_read(a, vm, 4, 3, 40)
    w2_dma(a, vm, 2, 0)
    stamp(a, 5, 2)
    stage_read(a, vm, 5, 4, 40)
    w2_dma(a, vm, 3, 0)
    stage_read(a, vm, 6, 5, 40)
    stamp(a, 6, 2)
    NLATE = opt("nlate", 0)
    for b in range(4, 7 - NLATE): w2_dma(a, vm, b, 0)
    stamp(a, 5); stamp(a, 7, 2)
    g2_setup(a, 1)
    a(f"s_setprio {opt('prio3', 3)}")
    spoll(a, 64, 7)
    stamp(a, 6); stamp(a, 8, 2)
    for j in range(HRN): hload(a, vm, j, 1)
    for b in range(7 - NLATE, 7): w2_dma(a, vm, b, 0)
    stamp(a, 7)
    E0 = 144
    def hook(j):
        if j == (0 if NLATE == 0 else HRN): sig(a, 'W2M')
        if j == 15:
            a(f"v_and_b32 v6, 31, v{vL}")
            a(f"v_lshrrev_b32 v7, 5, v{vL}")
            a(f"s_lshl_b32 s68, s{sTT}, 6")
            a(f"v_add_u32 v6, s68, v6")
            a(f"v_lshlrev_b32 v4, 4, v6")
            a(f"s_mov_b32 s71, {WS_STATS}")
            for th in range(2): a(f"buffer_load_dwordx2 v[{E0+2*th}:{E0+1+2*th}], v4, {srd(sWS)}, s71 offen offset:{512*th} sc1")
            a(f"v_mul_u32_u24 v4, 896, v6")
            a(f"v_lshl_add_u32 v4, v7, 4, v4")
            a(f"s_lshl_b32 s71, s{sLR}, 7")
            a(f"s_lshl_b32 s73, s{sA}, 5")
            a(f"s_add_u32 s71, s71, s73")
            a(f"s_add_u32 s72, s71, {32*896}")
            for th in range(2): a(f"buffer_load_dwordx4 v[{E0+4+4*th}:{E0+7+4*th}], v4, {srd(sQ)}, s{71+th} offen")
            vm.add('e', 4)
            a(f"v_and_b32 v5, 0x7f8, v6")
            a(f"v_and_b32 v9, 1, v6")
            a(f"v_lshl_add_u32 v5, v9, 2, v5")
            a(f"v_bfe_u32 v9, v6, 1, 2")
            a(f"v_add_u32 v5, v5, v9")
            a(f"v_lshlrev_b32 v5, 2, v5")
            a(f"v_lshl_add_u32 v5, v7, 15, v5")
            a(f"s_lshl_b32 s73, s{sLR}, 5")
            a(f"s_lshl_b32 s75, s{sA}, 3")
            a(f"s_add_u32 s73, s73, s75")
            a(f"s_lshl_b32 s73, s73, 13")
            a(f"s_add_u32 s73, s73, {WS_Y}")
            a(f"s_lshl_b32 s75, s{sLR}, 9")
            a(f"s_lshr_b32 s76, s{sTT}, 3")
            a(f"s_lshl_b32 s76, s76, 7")
            a(f"s_add_u32 s75, s75, s76")
            a(f"s_lshl_b32 s76, s{sA}, 5")
            a(f"s_add_u32 s75, s75, s76")
            a(f"s_add_u32 s75, s75, {WS_F4}")
    g2_loop(a, vm, 1, hook)
    stamp(a, 8)
    a("s_setprio 0")
    a("s_nop 7")
    lwait(a, 'PRE', 8, own=True)
    g2_partials(a, 0, 1)
    sig(a, 'MP')
    a(f"s_lshl_b32 s76, s{sA}, 14")
    a(f"v_add_u32 v9, s76, v{vH}")
    a(f"v_add_u32 v10, 0x10000, v9")
    lwait(a, 'MP', 8)
    Y0 = E0 + 12
    def rd_part(vb, dst):
        for th in range(2):
            for src in range(4):
                r0 = dst + 32*th + 8*src
                a(f"ds_read_b128 v[{r0}:{r0+3}], v{vb} offset:{4096*src + 2048*th}")
                a(f"ds_read_b128 v[{r0+4}:{r0+7}], v{vb} offset:{4096*src + 2048*th + 1024}")
    rd_part(9, 16)
    spoll(a, 75, 8)
    for p in range(4):
        for th in range(2): a(f"buffer_load_dword v{Y0+4*th+p}, v5, {srd(sWS)}, s73 offen offset:{128*th} sc1")
        a(f"s_add_u32 s73, s73, 8192")
    XB, XN = 176, 192
    a("s_waitcnt vmcnt(8)")
    for th in range(2):
        for p in range(4):
            lo(a, XB+8*th+2*p, E0+4+4*th+p); hi(a, XB+1+8*th+2*p, E0+4+4*th+p)
        for e in range(8):
            a(f"v_sub_f32 v{XN+8*th+e}, v{XB+8*th+e}, v{E0+2*th}")
            a(f"v_mul_f32 v{XN+8*th+e}, v{XN+8*th+e}, v{E0+1+2*th}")
        a(f"v_mul_f32 v{E0+1+2*th}, v{E0+1+2*th}, v{E0+1+2*th}")
    a("s_waitcnt lgkmcnt(0)")
    SM = 208
    for th in range(2):
        b = 16 + 32*th
        for e in range(8):
            a(f"v_add_f32 v{b+e}, v{b+e}, v{b+8+e}")
            a(f"v_add_f32 v{b+16+e}, v{b+16+e}, v{b+24+e}")
        for e in range(8): a(f"v_add_f32 v{SM+8*th+e}, v{b+e}, v{b+16+e}")
    a("s_waitcnt vmcnt(0)")
    for th in range(2):
        for p in range(4):
            lo(a, 224+2*p, Y0+4*th+p); hi(a, 225+2*p, Y0+4*th+p)
        for e in range(8): a(f"v_fmac_f32 v{XB+8*th+e}, v{XN+8*th+e}, v{224+e}")
    stamp(a, 9)
    lwait(a, 'XP', 8)
    rd_part(10, 16)
    for th in range(2):
        b = 16 + 32*th
        a(f"s_waitcnt lgkmcnt({8*(1-th)})")
        for e in range(8):
            a(f"v_add_f32 v{b+e}, v{b+e}, v{b+8+e}")
            a(f"v_add_f32 v{b+16+e}, v{b+16+e}, v{b+24+e}")
        for e in range(8): a(f"v_add_f32 v{b+e}, v{b+e}, v{SM+8*th+e}")
        for e in range(8): a(f"v_add_f32 v{b+e}, v{b+e}, v{b+16+e}")
        for rr in range(4): a(f"v_permlane32_swap_b32 v{b+rr}, v{b+4+rr}")
        for e in range(8): a(f"v_fmac_f32 v{XB+8*th+e}, v{E0+1+2*th}, v{b+e}")
        for p in range(4): a(f"v_cvt_pk_bf16_f32 v{224+4*th+p}, v{XB+8*th+2*p}, v{XB+8*th+1+2*p}")
        a(f"buffer_store_dwordx4 v[{224+4*th}:{227+4*th}], v4, {srd(sO)}, s{71+th} offen")
    a("s_branch L_fin")

def cost(s):
    m = s.split()[0]
    return 8 if m in TRANS else 4
def mwave(a):
    vm = VM(a)
    sTH, sCH = 60, 61
    a(f"s_setprio {opt('prio', 2)}")
    a(f"s_and_b32 s{sTH}, s{sA}, 1")
    a(f"s_lshr_b32 s{sCH}, s{sA}, 1")
    vXa = [[4, 5, 6, 7], [76, 77, 78, 79]]
    vWa = [8, 9, 10]
    a(f"v_and_b32 v10, 31, v{vL}")
    a(f"v_lshrrev_b32 v11, 5, v{vL}")
    P = 16
    KR, VR, SHR, HLO = P+4, P+16, P+24, P+1
    a(f"s_lshl_b32 s74, s{sLR}, 9")
    a(f"v_lshlrev_b32 v13, 4, v10")
    a(f"s_mul_i32 s73, s{sTT}, {64*896}")
    a(f"s_lshl_b32 s58, s{sLR}, 7")
    a(f"s_add_u32 s73, s73, s58")
    a(f"s_sub_u32 s73, s73, 2688")
    a(f"s_cmp_eq_u32 s{sTT}, 0")
    a(f"s_cselect_b32 s73, 0x40000000, s73")
    a(f"v_lshlrev_b32 v12, 2, v10")
    kernarg_wait(a)
    a(f"buffer_load_dwordx4 v[{SHR}:{SHR+3}], v13, {srd(sSH)}, s74 offen")
    a(f"s_cmp_lg_u32 s{sA}, 0")
    a(f"s_cbranch_scc1 L_nohalo")
    for j in range(3): a(f"buffer_load_dword v{HLO+j}, v12, {srd(sK)}, s73 offen offset:{896*j}")
    a.label("L_nohalo")
    a(f"v_bfe_u32 v14, v10, 1, 3")
    a(f"v_xor_b32 v14, v14, v11")
    a(f"s_lshl_b32 s58, s{sTH}, 13")
    a(f"v_lshlrev_b32 v48, 7, v10")
    a(f"v_add_u32 v48, s58, v48")
    for ks in range(4):
        a(f"v_xor_b32 v49, {2*ks}, v14")
        a(f"v_lshl_add_u32 v{vXa[0][ks]}, v49, 4, v48")
        a(f"v_add_u32 v{vXa[1][ks]}, 0x10000, v{vXa[0][ks]}")
    a(f"s_lshl_b32 s58, s{sA}, 11")
    a(f"s_add_u32 s58, s58, {KVL - 384}")
    a(f"v_lshl_add_u32 v12, v11, 10, v12")
    a(f"v_add_u32 v12, s58, v12")
    a(f"v_lshlrev_b32 v{P}, 6, v10")
    a(f"v_lshlrev_b32 v48, 4, v11")
    a(f"v_sub_u32 v{P}, v{P}, v48")
    a(f"s_add_u32 s58, s58, {8192 + 384 + 16}")
    a(f"v_add_u32 v{P}, s58, v{P}")
    a(f"v_bfe_u32 v14, v{vL}, 2, 2")
    a(f"v_lshl_add_u32 v48, v11, 3, v14")
    a(f"v_lshlrev_b32 v48, 7, v48")
    a(f"v_lshrrev_b32 v14, 1, v14")
    a(f"v_xor_b32 v14, s{sCH}, v14")
    a(f"v_lshl_add_u32 v48, v14, 6, v48")
    a(f"v_bfe_u32 v14, v{vL}, 4, 1")
    a(f"v_lshl_add_u32 v48, v14, 5, v48")
    a(f"v_and_b32 v14, 3, v{vL}")
    a(f"v_lshl_add_u32 v{vWa[0]}, v14, 3, v48")
    a(f"v_add_u32 v{vWa[1]}, 0x10000, v{vWa[0]}")
    a(f"v_add_u32 v{vWa[2]}, 0x20000, v{vWa[0]}")
    flag_setup(a)
    rot_setup(a)
    a(f"s_lshl_b32 s67, s{sI}, 1")
    a(f"s_add_u32 s67, s67, s{sTH}")
    a(f"s_lshl_b32 s62, s67, 10")
    a(f"s_add_u32 s62, s62, {WS_STATS}")
    a(f"s_lshl_b32 s63, s{sJ}, 11")
    a(f"s_lshl_b32 s58, s{sCH}, 9")
    a(f"s_add_u32 s63, s63, s58")
    a(f"s_add_u32 s63, s63, {WS_CS}")
    a(f"s_add_u32 s64, s63, {F*16}")
    a(f"s_lshl_b32 s66, s{sJ}, 1")
    a(f"s_add_u32 s66, s66, s{sCH}")
    a(f"s_mul_i32 s68, s67, 56")
    a(f"s_add_u32 s68, s68, s66")
    a(f"s_lshl_b32 s68, s68, 11")
    a(f"s_add_u32 s68, s68, {WS_H}")
    a(f"s_add_u32 s69, s68, {56*1024}")
    a(f"s_add_u32 s70, s68, {HTYPE}")
    a(f"s_add_u32 s71, s69, {HTYPE}")
    a(f"s_mul_i32 s58, s66, 37")
    a(f"s_lshr_b32 s58, s58, 8")
    a(f"s_add_u32 s66, s66, s58")
    a(f"s_lshl_b32 s72, s67, 7")
    a(f"s_lshl_b32 s66, s66, 2")
    a(f"s_add_u32 s72, s72, s66")
    a(f"s_add_u32 s72, s72, {WS_F3}")
    a(f"s_add_u32 s73, s72, 4096")
    a(f"s_cmp_eq_u32 s{sA}, 0")
    a(f"s_cselect_b32 s74, -1, 0")
    a(f"s_mov_b32 s75, 0")
    r = Rec()
    for j in range(11): r(f"ds_read_b32 v{KR+j}, v12 offset:{128*j}")
    for j in range(8): r(f"ds_read_b32 v{VR+j}, v12 offset:{8192 + 384 + 128*j}")
    r(";GAP"); r(";GAP"); r(";GAP")
    r("s_waitcnt vmcnt(0) lgkmcnt(0)")
    for j in range(3): r(f"v_cndmask_b32 v{KR+j}, v{KR+j}, v{HLO+j}, s[74:75]")
    for h in range(2):
        un = lo if h == 0 else hi
        T = P + 28; O = T + 16; R_ = O + 8
        for j in range(11): un(r, T+j, KR+j)
        lo(r, T+11, SHR+2*h); hi(r, T+12, SHR+2*h); lo(r, T+13, SHR+1+2*h); hi(r, T+14, SHR+1+2*h)
        for t in range(8): r(f"v_mul_f32 v{O+t}, v{T+14}, v{T+t}")
        for t in range(8): r(f"v_fmac_f32 v{O+t}, v{T+13}, v{T+1+t}")
        for t in range(8): r(f"v_fmac_f32 v{O+t}, v{T+12}, v{T+2+t}")
        for t in range(8): r(f"v_fmac_f32 v{O+t}, v{T+11}, v{T+3+t}")
        for j in range(8): un(r, T+j, VR+j)
        for t in range(8): r(f"v_mul_f32 v{O+t}, v{O+t}, v{T+t}")
        for p in range(4): r(f"v_cvt_pk_bf16_f32 v{R_+4*h+p}, v{O+7-2*p}, v{O+6-2*p}")
    for h in range(2): r(f"ds_write_b128 v{P}, v[{R_+4*h}:{R_+4*h+3}] offset:{32*h}")
    prep_side = r.l
    epoch_hash(a)
    a(f"v_mov_b32 v{vE}, s{sE}")
    stamp(a, 1)
    ACCB = {(0,0): 128, (0,1): 160, (1,0): 192, (1,1): 224}
    CSF = {(0,0): 48, (0,1): 52, (1,0): 56, (1,1): 60}
    MF = [64, 68]
    ST = [40, 44]
    def epilogue(r, half):
        for tt in range(2):
            nrs = ST[tt] + 1
            G = ACCB[(half, 0)] + 16*tt; U = ACCB[(half, 1)] + 16*tt
            for kp in range(2):
                T = 20 + 8*((2*tt + kp) % 2)
                g = lambda e8: G + 8*kp + e8
                u = lambda e8: U + 8*kp + e8
                for e8 in range(10):
                    if e8 < 8: r(f"v_mul_f32 v{T+e8}, v{nrs}, v{g(e8)}")
                    if 1 <= e8 < 9:
                        r(f"v_exp_f32 v{T+e8-1}, v{T+e8-1}")
                        r(f"v_mul_f32 v{g(e8-1)}, v{g(e8-1)}, v{u(e8-1)}")
                    if 2 <= e8:
                        r(f"v_add_f32 v{T+e8-2}, 1.0, v{T+e8-2}")
                for e8 in range(9):
                    if e8 < 8: r(f"v_rcp_f32 v{T+e8}, v{T+e8}")
                    if e8 >= 1:
                        r(f"v_mul_f32 v{g(e8-1)}, v{g(e8-1)}, v{T+e8-1}")
                        if e8 % 2 == 0: r(f"v_cvt_pk_bf16_f32 v{U+8*kp+(e8-2)//2}, v{g(e8-2)}, v{g(e8-1)}")
    def hstores(half):
        if opt("nohst", 0): vm.add(f'h{"AB"[half]}', 1); a(f"buffer_load_dword v36, v{vH}, {srd(sQ)}, 0 offen"); return
        for tt in range(2):
            U = ACCB[(half, 1)] + 16*tt
            for kp in range(2):
                a(f"buffer_store_dwordx4 v[{U+8*kp}:{U+8*kp+3}], v{vH}, {srd(sWS)}, s{68 + 2*half + tt} offen offset:{1024*kp} sc1")
        vm.add(f'h{"AB"[half]}', 4)
    def opnd_loads():
        for tt in range(2): a(f"buffer_load_dwordx4 v[{ST[tt]}:{ST[tt]+3}], v13, {srd(sWS)}, s62 offen offset:{512*tt} sc1")
        for h in range(2):
            for m in range(2):
                a(f"buffer_load_dwordx4 v[{CSF[(h,m)]}:{CSF[(h,m)]+3}], v13, {srd(sWS)}, s{63+m} offen offset:{1024*h} sc1")
    def fold(half):
        for m in range(2):
            for tt in range(2):
                acc = ACCB[(half, m)] + 16*tt; f = CSF[(half, m)]
                a(f"v_mfma_f32_32x32x16_bf16 v[{acc}:{acc+15}], v[{f}:{f+3}], v[{MF[tt]}:{MF[tt]+3}], v[{acc}:{acc+15}]")
    units = [('F',0),('F',1),('F',2),('F',3),('F',4),('F',5),('B',6),('A',6)]
    NBAR = 7
    mf = []; frags = {}; order = []; started = set()
    for ui, (ty, p) in enumerate(units):
        halves = (0, 1) if ty == 'F' else (0,) if ty == 'A' else (1,)
        for ks in range(4):
            def fx(tt):
                n = ('X', ui, ks, tt)
                if n not in frags:
                    o = XS(p) + tt*4096
                    frags[n] = (ui, [f"ds_read_b128 v[{{r0}}:{{r3}}], v{vXa[o >> 16][ks]} offset:{o & 0xffff}"]); order.append(n)
                return n
            def fw(h, m):
                n = ('W', ui, ks, h, m)
                if n not in frags:
                    o = WS_(h, p) + m*8192 + ks*2048
                    frags[n] = (ui, [f"ds_read_b64_tr_b16 v[{{r0}}:{{r1}}], v{vWa[o >> 16]} offset:{o & 0xffff}",
                                     f"ds_read_b64_tr_b16 v[{{r2}}:{{r3}}], v{vWa[o >> 16]} offset:{(o & 0xffff) + 512}"]); order.append(n)
                return n
            for h in halves:
                for m in range(2):
                    for tt in range(2):
                        w = fw(h, m); x = fx(tt)
                        mf.append((ui, ACCB[(h, m)] + 16*tt, w, x))
    last_use = {}
    for i, (_, _, w, x) in enumerate(mf): last_use[w] = i; last_use[x] = i
    free = [80 + 4*i for i in range(12)]
    reg = {}; read_end = {}
    st = dict(lds=0, done=0, qi=0, unit=-1, since=99, i=-1, gap=0)
    rtime = []; side = []
    LA = opt("la", 8)
    ustart = {}
    for i, m in enumerate(mf): ustart.setdefault(m[0], i)
    def lds_op(text, late=False):
        a(text); st['lds'] += 1; rtime.append(st['i'] + (100 if late else 0)); st['gap'] += 4
    def issue_reads(maxn, force=False):
        n = 0
        while st['qi'] < len(order) and n < maxn and free:
            nme = order[st['qi']]; ui, tmpl = frags[nme]
            if ui > st['unit']:
                if ui == 2 and side: return
                if ui < NBAR:
                    if not force and (st['since'] < 3 or ustart[ui] - st['i'] > LA): return
                    if ui == 6: do_fold()
                    a("s_waitcnt lgkmcnt(0)"); st['done'] = st['lds']
                    a("s_barrier")
                st['unit'] = ui
                stamp(a, min(ui + 1, 9), 1)
                on_unit(ui)
            r0 = free.pop(0); reg[nme] = r0
            for t in tmpl:
                lds_op(t.format(r0=r0, r1=r0+1, r2=r0+2, r3=r0+3)); n += 1
            read_end[nme] = st['lds']; st['qi'] += 1; st['since'] = 0
            if st['qi'] == len(order): lds_op(f"ds_write_b32 v{vCo}, v{vE} offset:{EV['F6']}", True)
    def on_unit(ui):
        if ui == 0: stamp(a, 2)
        if ui == 1: side.extend(prep_side)
        if ui == 3: side.extend(f"v_mov_b32 v{r_}, 0" for r_ in (66, 67, 70, 71))
        if ui == 5:
            side.append(f"s_lshl_b32 s58, s{sCH}, 9")
            side.append(f"v_add_u32 v12, s58, v13")
            for h in range(2):
                for m in range(2):
                    side.append(f"ds_read_b128 v[{CSF[(h,m)]}:{CSF[(h,m)]+3}], v12 offset:{KVL + 2048*m + 1024*h}")
            side.append(f"s_lshl_b32 s58, s{sTH}, 10")
            side.append(f"v_add_u32 v14, s58, v13")
            for tt in range(2): side.append(f"ds_read_b128 v[{ST[tt]}:{ST[tt]+3}], v14 offset:{KVL + 4096 + 512*tt}")
    def do_fold():
        assert not side
        a("s_mov_b32 s59, 0")
        a.label("L_opnd")
        a("s_waitcnt vmcnt(0) lgkmcnt(0)")
        a(f"v_cmp_ne_u32 vcc, s{sE}, v{ST[0]+2}")
        for rg in (ST[1], 48, 52, 56, 60):
            a(f"v_cmp_ne_u32 s[74:75], s{sE}, v{rg+2}")
            a(f"s_or_b64 vcc, vcc, s[74:75]")
        a("s_cbranch_vccz L_opnd_ok")
        a("s_add_u32 s59, s59, 1")
        a("s_cmp_lt_u32 s59, 0x40000")
        a("s_cbranch_scc0 L_opnd_ok")
        a("s_sleep 12")
        opnd_loads()
        a("s_branch L_opnd")
        a.label("L_opnd_ok")
        a(f"v_cmp_gt_u32 vcc, 32, v{vL}")
        for tt in range(2):
            a(f"v_xor_b32 v{ST[tt]}, 0x80000000, v{ST[tt]}")
            a(f"v_cndmask_b32 v{ST[tt]}, 0, v{ST[tt]}, vcc")
            a(f"v_lshrrev_b32 v{MF[tt]+1}, 16, v{ST[tt]}")
            a(f"v_or_b32 v{MF[tt]}, v{MF[tt]+1}, v{ST[tt]}")
            a(f"v_mul_f32 v{ST[tt]+1}, {fh(-1.4426950408889634)}, v{ST[tt]+1}")
        fold(0); fold(1)
    issue_reads(12, True)
    BUD = opt("bud", 24)
    def run_side(budget):
        while side:
            s_ = side[0]
            if s_ == ";GAP": side.pop(0); return
            if s_ == ";AFTER2":
                if st['unit'] < 2: return
                side.pop(0); continue
            c = cost(s_)
            if st['gap'] + c > budget and st['gap'] > 0: return
            side.pop(0)
            if s_.startswith("ds_"): lds_op(s_, True)
            else:
                a(s_); st['gap'] += c
                if "lgkmcnt(0)" in s_: st['done'] = st['lds']
    for i, (ui, acc, w, x) in enumerate(mf):
        while w not in reg or x not in reg:
            st['gap'] = 0; run_side(1000 if ui == 2 else 0); issue_reads(2, True)
        need = max(read_end[w], read_end[x])
        if need > st['done']:
            old = [k+1 for k, t in enumerate(rtime) if t <= i - 4]
            need = max([need] + old)
            n = st['lds'] - need
            a(f"s_waitcnt lgkmcnt({min(n, 14)})"); st['done'] = st['lds'] - min(n, 14)
        st['i'] = i; st['gap'] = 0
        c = f"v[{acc}:{acc+15}]" if acc in started else "0"; started.add(acc)
        a(f"v_mfma_f32_32x32x16_bf16 v[{acc}:{acc+15}], v[{reg[w]}:{reg[w]+3}], v[{reg[x]}:{reg[x]+3}], {c}")
        st['since'] += 1
        for f in (w, x):
            if last_use[f] == i: free.append(reg[f])
        issue_reads(2 if len(free) < 6 else 3)
        if i == ustart[7] + 1:
            r = Rec(); epilogue(r, 1); side.extend(r.l)
        run_side(opt('pbud', 36) if st['unit'] == 1 else BUD)
    stamp(a, 3)
    st['gap'] = 0; run_side(100000)
    hstores(1)
    stamp(a, 4)
    epilogue(a, 0)
    vm.wait('hB'); wflag(a, 73, 36, 37); vm.add('fB')
    hstores(0)
    stamp(a, 5)
    a(f"s_mov_b32 s76, s72")
    conv_scalar(a)
    vA, vB, vDl = 8, 9, 11
    a(f"v_and_b32 v12, 15, v{vL}")
    a(f"v_lshrrev_b32 v13, 4, v{vL}")
    a(f"v_and_b32 v14, 1, v12")
    a(f"v_mov_b32 v17, {HB - 4 - 60 - 192}")
    a(f"v_mov_b32 v16, {HA - 60 - 192}")
    a(f"v_cmp_eq_u32 vcc, 1, v14")
    a(f"v_cndmask_b32 v17, v17, v16, vcc")
    a(f"v_lshl_add_u32 v17, v12, 2, v17")
    a(f"v_lshl_add_u32 v17, v13, 4, v17")
    a(f"v_add_u32 v17, s71, v17")
    a(f"s_lshl_b32 s72, s66, 8")
    a(f"v_add_u32 v{vA}, s72, v17")
    a(f"s_add_u32 s58, s71, {U0 + 4096}")
    a(f"v_mov_b32 v16, s58")
    a(f"s_cmp_eq_u32 s66, 0")
    a(f"s_cselect_b64 vcc, -1, 0")
    a(f"v_cndmask_b32 v{vDl}, v16, v17, vcc")
    a(f"v_mov_b32 v17, {U0 + 448}")
    a(f"v_mov_b32 v16, {U1 + 448}")
    a(f"v_cmp_eq_u32 vcc, 1, v14")
    a(f"v_cndmask_b32 v17, v17, v16, vcc")
    a(f"v_lshrrev_b32 v16, 1, v12")
    a(f"v_lshlrev_b32 v16, 6, v16")
    a(f"v_sub_u32 v17, v17, v16")
    a(f"v_lshl_add_u32 v17, v13, 4, v17")
    a(f"s_add_u32 s72, s72, s71")
    a(f"v_add_u32 v{vB}, s72, v17")
    lwait(a, 'CV0', 10)
    a(f"s_setprio {opt('prio2', 0)}")
    ACC = 16; HI = 48; LOW = [80, 112]; DL = 4
    def Areg(p, it): return (LOW[it % 2] + 4*p) if p < 4 else (HI + 4*(p-4))
    def Breg(q, it): return (LOW[it % 2] + 16 + 4*q) if q < 4 else (HI + 16 + 4*(q-4))
    def rdA(p, it):
        rg = Areg(p, it); o = 192 + 512*p + 64*it
        return [f"ds_read_b64 v[{rg}:{rg+1}], v{vA} offset:{o}", f"ds_read_b64 v[{rg+2}:{rg+3}], v{vA} offset:{o+8}"]
    def rdB(q, it):
        rg = Breg(q, it); o = 3584 - 512*q + 64*it
        return [f"ds_read_b128 v[{rg}:{rg+3}], v{vB} offset:{o}"]
    def cmf(T, A, B, first=False):
        c = "0" if first else f"v[{ACC+4*T}:{ACC+4*T+3}]"
        return f"v_mfma_f32_16x16x32_bf16 v[{ACC+4*T}:{ACC+4*T+3}], v[{A}:{A+3}], v[{B}:{B+3}], {c}"
    a(f"ds_read_b64 v[{DL}:{DL+1}], v{vDl}")
    a(f"ds_read_b64 v[{DL+2}:{DL+3}], v{vDl} offset:8")
    for p in range(4):
        for rr in rdA(p, 0) + rdB(p, 0): a(rr)
    for it in range(4):
        a("s_waitcnt lgkmcnt(0)")
        if it == opt("fai", 2):
            vm.wait('hA'); wflag(a, 76, 10, 11); vm.add('fA')
        rd = []
        for p in range(4, 8): rd += rdA(p, it) + rdB(p, it)
        ms = []
        if it == 0: ms += [cmf(T, DL, Breg(T, 0), True) for T in range(4)]
        seen = set(range(4)) if it == 0 else set(range(8))
        for p in range(4):
            for q in range(4):
                T = p + q
                ms.append(cmf(T, Areg(p, it), Breg(q, it), T not in seen)); seen.add(T)
        for k, m in enumerate(ms):
            a(m)
            if k < len(rd): a(rd[k])
        a("s_waitcnt lgkmcnt(0)")
        if it == 3: sig(a, 'CV1')
        rd = []
        if it < 3:
            for p in range(4): rd += rdA(p, it+1) + rdB(p, it+1)
        ms = []
        for hp in range(4, 8):
            for l in range(0, 8 - hp):
                T = hp + l
                ms.append(cmf(T, Areg(hp, it), Breg(l, it), T not in seen)); seen.add(T)
                ms.append(cmf(T, Areg(l, it), Breg(hp, it)))
        if it == 0: ms += [cmf(T, DL, Breg(T, 0)) for T in range(4, 8)]
        if it == 3:
            r = Rec()
            r(f"s_lshl_b32 s73, s{sA}, 13")
            r(f"s_add_u32 s73, s73, {CVL}")
            r(f"v_add_u32 v8, s73, v{vH}")
            r(f"s_lshl_b32 s73, s{sA}, 11")
            r(f"s_add_u32 s73, s73, {CVL}")
            r(f"v_add_u32 v5, s73, v{vH}")
            r(f"v_lshrrev_b32 v9, 1, v12")
            r(f"v_lshlrev_b32 v9, 7, v9")
            r(f"v_lshl_add_u32 v9, v13, 5, v9")
            r(f"v_lshl_add_u32 v9, v14, 4, v9")
            r(f"s_lshl_b32 s73, s74, 13")
            r(f"s_lshl_b32 s58, s{sA}, 11")
            r(f"s_add_u32 s73, s73, s58")
            r(f"s_add_u32 s73, s73, {WS_Y}")
            r(f"ds_read_b32 v10, v{vCa} offset:{EV['CV1']}")
            rd = r.l
        for k, m in enumerate(ms):
            a(m)
            if k < len(rd): a(rd[k])
    stamp(a, 6)
    a("s_waitcnt lgkmcnt(0)")
    a("s_nop 3")
    lwait(a, 'CV1', 10, pre=True)
    for T in range(8): a(f"ds_write_b128 v8, v[{ACC+4*T}:{ACC+4*T+3}] offset:{1024*T}")
    sig(a, 'CV2')
    g2_setup(a, 0)
    a(f"s_lshr_b32 s65, s74, 5")
    a(f"s_lshl_b32 s65, s65, 9")
    a(f"s_lshl_b32 s58, s{sA}, 7")
    a(f"s_add_u32 s65, s65, s58")
    a(f"s_and_b32 s58, s74, 31")
    a(f"s_lshl_b32 s58, s58, 2")
    a(f"s_add_u32 s65, s65, s58")
    a(f"s_add_u32 s65, s65, {WS_F4}")
    lwait(a, 'CV2', 10)
    for t2 in range(2):
        for w in range(4): a(f"ds_read_b128 v[{112+16*t2+4*w}:{115+16*t2+4*w}], v5 offset:{8192*w + 1024*t2}")
    sig(a, 'CV3')
    spoll(a, 64, 7)
    for t2 in range(2):
        b = 112 + 16*t2
        for rr in range(4):
            a(f"v_add_f32 v{b+rr}, v{b+rr}, v{b+8+rr}")
            a(f"v_add_f32 v{b+4+rr}, v{b+4+rr}, v{b+12+rr}")
        for rr in range(4): a(f"v_cvt_pk_bf16_f32 v{b+8+rr}, v{b+rr}, v{b+4+rr}")
        a(f"buffer_store_dwordx4 v[{b+8}:{b+11}], v9, {srd(sWS)}, s73 offen offset:{1024*t2} sc1")
    vm.add('y', 2)
    NH1 = opt("nh1", 8)
    for j in range(NH1): hload(a, vm, j, 0)
    stamp(a, 7)
    tr_setup(a, 4)
    lwait(a, 'W2M', 10, own=True)
    for b in range(7): pair_reads(a, b, W2BLK[b], 4)
    sig(a, 'PRE')
    lread(a, 'CV3', 11)
    vm.wait('y')
    wflag(a, 65, 8, 9); vm.add('f4')
    for j in range(NH1, HRN): hload(a, vm, j, 0)
    a("s_waitcnt lgkmcnt(0)")
    g2_loop(a, vm, 0)
    stamp(a, 8)
    a("s_nop 7")
    lwait(a, 'CV3', 11, pre=True)
    g2_partials(a, 1, 0)
    sig(a, 'XP')
    stamp(a, 9)

a = Asm()
stamp(a, 0)
DIL = opt("dil", 0)
if DIL: a("s_memrealtime s[80:81]")
prologue(a)
a(f"s_cmp_lt_u32 s{sSLOT}, 4")
a("s_cbranch_scc1 L_spare")
a(f"s_cmp_lt_u32 s{sWV}, 4")
a("s_cbranch_scc1 L_mwave")
aux(a)
a.label("L_spare")
spare(a)
a("s_branch L_fin")
a.label("L_mwave")
mwave(a)
a.label("L_fin")
if DIL:
    if opt("dilk", -1) >= 0:
        a(f"s_cmp_lg_u32 s2, {opt('dilk', -1)}")
        a("s_cbranch_scc1 L_end")
        a(f"s_cmp_lg_u32 s{sWV}, 0")
        a("s_cbranch_scc1 L_end")
    a.label("L_dil")
    a("s_memrealtime s[82:83]")
    a("s_waitcnt lgkmcnt(0)")
    a("s_sub_u32 s82, s82, s80")
    a(f"s_cmp_lt_u32 s82, {DIL}")
    a("s_cbranch_scc1 L_dil")
stamp_flush(a)
a.label("L_end")
a("s_endpgm")
kn = NAME + "_kernel"
hdr = open("cdna_kernels/%s.s.ref" % NAME).read().split("; Override launch")[0]
out = hdr + f"; @launch grid=(256,1,1) block=(512,1,1) lds={LDS_BYTES}\n"
out += '.amdgcn_target "amdgcn-amd-amdhsa--gfx950"\n.text\n'
out += f".globl {kn}\n.p2align 8\n.type {kn},@function\n{kn}:\n" + a.finalize()
out += f""".section .rodata,"a"
.p2align 6
.amdhsa_kernel {kn}
  .amdhsa_next_free_vgpr 256
  .amdhsa_next_free_sgpr 102
  .amdhsa_accum_offset 256
  .amdhsa_group_segment_fixed_size 0
  .amdhsa_kernarg_size 104
  .amdhsa_user_sgpr_count 2
  .amdhsa_user_sgpr_kernarg_segment_ptr 1
  .amdhsa_system_sgpr_workgroup_id_x 1
  .amdhsa_float_denorm_mode_32 3
.end_amdhsa_kernel
"""
dst = sys.argv[1] if len(sys.argv) > 1 and not sys.argv[1].startswith("--") else "cdna_kernels/%s.s" % NAME
open(dst, "w").write(out)
print("wrote", dst, len(out), "barriers:", out.count("s_barrier"))
```
